```python
import torch

def _softmax(x, axis=-1):
    return torch.softmax(x, dim=axis)
def _gelu(x):
    return torch.nn.functional.gelu(x, approximate="tanh")
def _silu(x):
    return torch.nn.functional.silu(x)
def _sigmoid(x):
    return torch.sigmoid(x)
def _layernorm(x, axis=-1, eps=1e-5):
    m = x.mean(dim=axis, keepdim=True)
    v = x.var(dim=axis, keepdim=True, unbiased=False)
    return (x - m) / torch.sqrt(v + eps)
def _scatter_add(tgt, idx, src, axis=0):
    return tgt.clone().index_add_(axis, idx, src)
def _segment_sum(src, seg, n):
    out = torch.zeros((n,) + src.shape[1:], dtype=src.dtype)
    return out.index_add_(0, seg, src)
def _pad(x, pw):
    flat = tuple(v for pair in reversed(pw) for v in pair)
    return torch.nn.functional.pad(x, flat)

kernel_name = 'recurrent_scan__sliding_block_cached__swiglu_ffn__decode'

def setup_inputs():

    _w = (lambda a: (lambda t: t.to(torch.bfloat16) if t.is_floating_point() else t)(torch.as_tensor(a)))
    def _A_setup():
        B, Sq, D = 8, 1, 512
        Hq, Hkv, Sk, Dh = 32, 8, 4096, 128
        assert Hq % Hkv == 0, (Hq, Hkv)
        return {
            "x": _w((lambda *s: torch.randn(*s, dtype=torch.bfloat16) * 0.05)(B, Sq, D)),
            "k_cache": _w((lambda *s: torch.randn(*s, dtype=torch.bfloat16) * 0.8)(B, Hkv, Sk, Dh)),
            "v_cache": _w((lambda *s: torch.randn(*s, dtype=torch.bfloat16) * 0.2)(B, Hkv, Sk, Dh)),
            "wq": _w((lambda *s: torch.randn(*s, dtype=torch.bfloat16) * 0.8)(D, Hq * Dh) * (D ** -0.5)),
            "wo": _w((lambda *s: torch.randn(*s, dtype=torch.bfloat16) * 0.2)(Hq * Dh, D) * ((Hq * Dh) ** -0.5)),
        }
    _A_in = _A_setup()

    def _B_setup():
        B, S, D, F = 8, 1, 512, 1792
        return {
            "x": _w((lambda *s: torch.randn(*s, dtype=torch.bfloat16) * 0.05)(B, S, D)),
            "w_gate": _w((lambda *s: torch.randn(*s, dtype=torch.bfloat16) * 0.1)(D, F)),
            "w_up": _w((lambda *s: torch.randn(*s, dtype=torch.bfloat16) * 0.1)(D, F)),
            "w_down": _w((lambda *s: torch.randn(*s, dtype=torch.bfloat16) * 0.1)(F, D)),
        }
    _B_in = _B_setup()

    return {
        "A_x": _A_in["x"],
        "A_k_cache": _A_in["k_cache"],
        "A_v_cache": _A_in["v_cache"],
        "A_wq": _A_in["wq"],
        "A_wo": _A_in["wo"],
        "B_x": _B_in["x"],
        "B_w_gate": _B_in["w_gate"],
        "B_w_up": _B_in["w_up"],
        "B_w_down": _B_in["w_down"],
    }

def reference(A_x, A_k_cache, A_v_cache, A_wq, A_wo, B_x, B_w_gate, B_w_up, B_w_down):
    def _A_ref(x, k_cache, v_cache, wq, wo):
        B, Sq, D = x.shape
        Hq, Dh = 32, 128
        Hkv, Sk = k_cache.shape[1], k_cache.shape[2]
        W = min(4096, max(256, Sk // 4))
        rep = Hq // Hkv
        q = (lambda x, *d: x.permute(*d))((x @ wq).reshape(B, Sq, Hq, Dh), 0, 2, 1, 3)
        k = (lambda x, n, axis: torch.repeat_interleave(x, n, dim=axis))(k_cache[:, :, Sk - W:, :], rep, axis=1)
        v = (lambda x, n, axis: torch.repeat_interleave(x, n, dim=axis))(v_cache[:, :, Sk - W:, :], rep, axis=1)
        scores = torch.einsum("bhqd,bhkd->bhqk", q, k) * (Dh ** -0.5)
        p = _softmax(scores, axis=-1)
        o = torch.einsum("bhqk,bhkd->bhqd", p, v)
        return (lambda x, *d: x.permute(*d))(o, 0, 2, 1, 3).reshape(B, Sq, Hq * Dh) @ wo

    def _B_ref(x, w_gate, w_up, w_down):
        g = _silu(x @ w_gate)
        u = x @ w_up
        return (g * u) @ w_down

    x = A_x
    xn = _layernorm(x, axis=-1)
    s = _A_ref(xn, A_k_cache, A_v_cache, A_wq, A_wo)
    g = _silu(_B_ref(xn, B_w_gate, B_w_up, B_w_down))
    return x + s * g
```

```python
import sys, struct

NAME = "recurrent_scan__sliding_block_cached__swiglu_ffn__decode_kernel"

WS_EPOCH = 0
QBUF = 0x10000
STBUF = 0x90000
OBUF = 0xA0000
GUBUF = 0x120000
SBUF = 0x200000
FBUF = 0x300000
DBG = 0x800000

R_K = 0
R_V = 65536
R_Q = 131072
MISC = 147456
XN = MISC
QF = MISC + 8192
PB = MISC + 12288
FLG = MISC + 14336
F_LAND, F_XN, F_QDONE, F_QF, F_MAX, F_P, F_GUDONE, F_RED = [FLG + 4*i for i in range(8)]
WMAX = FLG + 64
WSUM = FLG + 128
R_O = R_K
RED = R_K + 16384
R_GU = R_V + 32768
R_D = R_Q
LDS_BYTES = 163840

def f32(x):
    return "0x%08x" % struct.unpack("<I", struct.pack("<f", x))[0]

class G:
    def __init__(self, depth=24, stamps=False, spin_limit=1 << 20):
        self.L = []
        self.depth = depth
        self.stamps = stamps
        self.uid = 0
        self.spin_limit = spin_limit
    def e(self, s):
        self.L.append("    " + s)
    def lab(self, s):
        self.L.append(s + ":")
    def newlab(self, p="L"):
        self.uid += 1
        return f"{p}_{self.uid}"
    def c(self, s):
        self.L.append("    ; " + s)
    def nop(self, n):
        while n > 0:
            k = min(n, 16)
            self.e(f"s_nop {k-1}")
            n -= k
    def stamp(self, k):
        if not self.stamps:
            return
        self.e("s_memrealtime s[90:91]")
        self.e("s_waitcnt lgkmcnt(0)")
        self.e("v_mov_b32 v120, s90")
        self.e(f"v_writelane_b32 v121, s90, {k}")
    def stamp_flush(self):
        if not self.stamps:
            return
        self.e("s_mov_b64 exec, -1")
        self.e("global_store_dword v122, v121, s[26:27]")
        self.e("s_waitcnt vmcnt(0)")

    def wait_lds_ge(self, flag, val, vaddr="v3", vtmp="v4", stmp="s60", sleep=1):
        l0 = self.newlab("WL"); l1 = self.newlab("WD")
        self.e("s_mov_b32 s61, 0")
        self.lab(l0)
        self.e(f"ds_read_b32 {vtmp}, {vaddr} offset:{flag - FLG}")
        self.e("s_waitcnt lgkmcnt(0)")
        self.e(f"v_readfirstlane_b32 {stmp}, {vtmp}")
        self.e("s_add_u32 s61, s61, 1")
        self.e(f"s_cmp_ge_i32 {stmp}, {val}")
        self.e(f"s_cbranch_scc1 {l1}")
        if sleep:
            self.e(f"s_sleep {sleep}")
        self.e(f"s_cmp_lt_u32 s61, {self.spin_limit}")
        self.e(f"s_cbranch_scc1 {l0}")
        self.lab(l1)
    def lds_inc(self, flag, vaddr="v3", vone="v5"):
        self.e("s_mov_b64 exec, 1")
        self.e(f"ds_add_u32 {vaddr}, {vone} offset:{flag - FLG}")
        self.e("s_mov_b64 exec, -1")

    def allreduce(self, regs, op, tmp):
        for sh in (8, 4, 2, 1):
            self.nop(2 if len(regs) < 3 else 1)
            for r in regs:
                self.e(f"{op}_dpp {r}, {r}, {r} row_ror:{sh} row_mask:0xf bank_mask:0xf")
        self.xg_reduce(regs, op, tmp)
    def xg_reduce(self, regs, op, tmp):
        for sw in ("v_permlane16_swap_b32", "v_permlane32_swap_b32"):
            for r, t in zip(regs, tmp):
                self.e(f"v_mov_b32 {t}, {r}")
            self.nop(2)
            for r, t in zip(regs, tmp):
                self.e(f"{sw} {r}, {t}")
            self.nop(1)
            for r, t in zip(regs, tmp):
                self.e(f"{op} {r}, {r}, {t}")

    def tagcheck(self, tagregs, acc, t2, stag="s34"):
        first = True
        i = 0
        while i < len(tagregs):
            if first:
                self.e(f"v_xor_b32 {acc}, {stag}, {tagregs[i]}"); i += 1; first = False
            elif i + 1 < len(tagregs):
                self.e(f"v_xor_b32 {t2}, {stag}, {tagregs[i]}")
                self.e(f"v_xor_b32 {tagregs[i+1]}, {stag}, {tagregs[i+1]}")
                self.e(f"v_or3_b32 {acc}, {acc}, {t2}, {tagregs[i+1]}")
                i += 2
            else:
                self.e(f"v_xor_b32 {t2}, {stag}, {tagregs[i]}")
                self.e(f"v_or_b32 {acc}, {acc}, {t2}")
                i += 1
        self.e(f"v_cmp_ne_u32 s[62:63], 0, {acc}")
        self.e("s_cmp_eq_u64 s[62:63], 0")

    def poll(self, loads, tagregs, acc, t2, sleep=2, pre=None):
        l0 = self.newlab("PL"); l1 = self.newlab("PD")
        self.e("s_mov_b32 s61, 0")
        self.lab(l0)
        if pre:
            for p in pre: self.e(p)
        for s in loads:
            self.e(s)
        self.e("s_waitcnt vmcnt(0)")
        self.tagcheck(tagregs, acc, t2)
        self.e(f"s_cbranch_scc1 {l1}")
        self.e("s_add_u32 s61, s61, 1")
        if sleep:
            self.e(f"s_sleep {sleep}")
        self.e(f"s_cmp_lt_u32 s61, {self.spin_limit >> 3}")
        self.e(f"s_cbranch_scc1 {l0}")
        self.lab(l1)

    def mfma(self, d, a, b, c=None):
        cc = f"v[{d}:{d+3}]" if c is None else c
        self.e(f"v_mfma_f32_16x16x32_bf16 v[{d}:{d+3}], v[{a}:{a+3}], v[{b}:{b+3}], {cc}")

    def bf16r(self, dst, src, tmp=None):
        self.e(f"v_cvt_pk_bf16_f32 {dst}, {src}, {src}")
        self.e(f"v_lshlrev_b32 {dst}, 16, {dst}")

    def silu(self, dst, x, t):
        self.e(f"v_mul_f32 {t}, {f32(-1.4426950408889634)}, {x}")
        self.e(f"v_exp_f32 {t}, {t}")
        self.nop(1)
        self.e(f"v_add_f32 {t}, 1.0, {t}")
        self.e(f"v_rcp_f32 {t}, {t}")
        self.nop(1)
        self.e(f"v_mul_f32 {dst}, {x}, {t}")

    def prologue(self):
        e = self.e
        e("s_cmp_ge_u32 s2, 256")
        e("s_cbranch_scc1 L_end")
        e("s_load_dwordx16 s[4:19], s[0:1], 0")
        e("s_load_dwordx8 s[20:27], s[0:1], 64")
        e("v_lshrrev_b32 v1, 6, v0")
        e("v_and_b32 v0, 63, v0")
        e("s_and_b32 s28, s2, 7")
        e("v_readfirstlane_b32 s32, v1")
        e("s_lshr_b32 s29, s2, 3")
        e("s_lshr_b32 s30, s29, 2")
        e("s_and_b32 s31, s29, 3")
        e("s_mov_b32 s33, 3")
        e("s_cmp_lt_u32 s29, 28"); e("s_cselect_b32 s33, 2, s33")
        e("s_cmp_lt_u32 s29, 14"); e("s_cselect_b32 s33, 1, s33")
        e("s_cmp_lt_u32 s29, 7"); e("s_cselect_b32 s33, 0, s33")
        e("s_cmp_lt_u32 s33, 2")
        e("s_cselect_b32 s35, 48, 16")
        e("s_cselect_b32 s38, 48, 0x60")
        e("s_add_u32 s36, s35, 64")
        e("s_cmp_eq_u32 s33, 2")
        e("s_cselect_b32 s36, 0x60, s36")
        e("s_add_u32 s37, s36, 0x50")
        e(f"v_mov_b32 v3, {FLG}")
        e("v_mov_b32 v5, 1")
        if self.stamps:
            e("v_mov_b32 v121, 0")
            e("s_lshl_b32 s92, s2, 3"); e("s_add_u32 s92, s92, s32"); e("s_lshl_b32 s92, s92, 8"); e(f"s_add_u32 s92, s92, {DBG}")
            e("v_lshlrev_b32 v122, 2, v0"); e("v_add_u32 v122, s92, v122")
        e("s_waitcnt lgkmcnt(0)")
        e("s_load_dword s34, s[26:27], 0")
        self.stamp(0)
        e("s_cmp_eq_u32 s32, 4"); e("s_cbranch_scc1 L_loader")
        e("s_cmp_eq_u32 s32, 5"); e("s_cbranch_scc1 L_fwave")

    def seg(self, base, nrec, soff_code, step, lds, count, voffs, first=False):
        e = self.e
        D = self.depth
        e(f"s_mov_b32 s40, s{base}"); e(f"s_and_b32 s41, s{base+1}, 0xffff"); e(f"s_mov_b32 s42, {nrec}"); e("s_mov_b32 s43, 0x20000")
        for s in soff_code: e(s)
        e(f"s_mov_b32 s45, {lds}")
        e(f"s_mov_b32 s46, {count//4}")
        l0 = self.newlab("SEG")
        self.lab(l0)
        for u in range(4):
            if not first:
                e(f"s_waitcnt vmcnt({D-1})")
                e("v_mov_b32 v20, s47")
                e(f"ds_write_b32 v3, v20 offset:{F_LAND-FLG}")
            e("s_mov_b32 m0, s45")
            e("s_add_u32 s47, s47, 1")
            e(f"buffer_load_dwordx4 {voffs[u]}, s[40:43], s44 offen nt lds")
            e("s_add_u32 s45, s45, 1024")
            e(f"s_add_u32 s44, s44, {step}")
        e("s_sub_u32 s46, s46, 1")
        e("s_cmp_lg_u32 s46, 0")
        e(f"s_cbranch_scc1 {l0}")

    def loader(self):
        e = self.e
        D = self.depth
        assert D >= 17
        self.lab("L_loader")
        e("v_lshrrev_b32 v6, 4, v0")
        e("v_lshrrev_b32 v7, 3, v0")
        e("v_and_b32 v8, 1, v0"); e("v_lshlrev_b32 v8, 4, v8")
        e("v_bfe_u32 v9, v0, 1, 2"); e("v_xor_b32 v9, v9, v6"); e("v_lshl_or_b32 v9, v9, 5, v8")
        e("v_lshl_add_u32 v10, v7, 13, v9")
        e(f"s_mov_b32 s47, {-(D-1)}")
        self.seg(10, 4 << 20, ["s_lshr_b32 s44, s29, 3", "s_lshl_b32 s44, s44, 20", "s_lshl_b32 s48, s28, 10", "s_add_u32 s44, s44, s48",
                               "s_and_b32 s48, s29, 7", "s_lshl_b32 s48, s48, 7", "s_add_u32 s44, s44, s48"],
                 65536, R_Q, 16, ["v10"]*4, first=True)
        e("v_mov_b32 v20, 0")
        e("v_lshlrev_b32 v21, 2, v0"); e(f"v_add_u32 v21, {FLG}, v21")
        e("ds_write_b32 v21, v20")
        e("s_waitcnt lgkmcnt(0)")
        e("s_barrier")
        self.stamp(1)
        e("v_and_b32 v11, 15, v0"); e("v_xor_b32 v11, v11, v6"); e("v_lshlrev_b32 v11, 4, v11"); e("v_lshl_add_u32 v11, v6, 8, v11")
        e("v_xor_b32 v12, 64, v11"); e("v_xor_b32 v13, 0x80, v11"); e("v_xor_b32 v14, 0xc0, v11")
        e("v_bfe_u32 v15, v0, 1, 3"); e("v_xor_b32 v15, v15, v6"); e("v_lshl_or_b32 v15, v15, 5, v8")
        e("v_lshl_add_u32 v16, v6, 8, v15"); e("v_xor_b32 v17, 0x80, v16")
        e("v_lshl_add_u32 v18, v6, 10, v15"); e("v_xor_b32 v19, 0x80, v18")
        e("v_lshl_add_u32 v22, v7, 10, v9")
        e("s_movk_i32 s48, 3584"); e("v_mul_lo_u32 v23, v7, s48"); e("v_add_u32 v23, v23, v9")
        e("s_lshl_b32 s50, s30, 3"); e("s_add_u32 s50, s50, s28"); e("s_lshl_b32 s50, s50, 20")
        e("s_lshl_b32 s48, s31, 16"); e("s_add_u32 s50, s50, s48"); e("s_add_u32 s50, s50, 786432")
        e("s_cmp_lt_u32 s33, 2"); e("s_cbranch_scc0 L_noGU")
        e("s_mul_i32 s51, s28, 7"); e("s_add_u32 s51, s51, s29"); e("s_mul_i32 s48, s33, 7"); e("s_sub_u32 s51, s51, s48")
        e("s_cmp_eq_u32 s33, 0")
        e("s_cselect_b32 s52, s16, s18"); e("s_cselect_b32 s53, s17, s19")
        self.seg(52, 512*3584, ["s_and_b32 s44, s51, 1", f"s_mul_i32 s44, s44, {256*3584}", "s_lshr_b32 s48, s51, 1", "s_lshl_b32 s48, s48, 7", "s_add_u32 s44, s44, s48"],
                 8*3584, R_GU, 32, ["v23"]*4)
        self.lab("L_noGU")
        self.seg(6, 64 << 20, ["s_mov_b32 s44, s50"], 1024, R_K, 64, ["v11", "v12", "v13", "v14"])
        self.stamp(2)
        e("s_cmp_eq_u32 s33, 2"); e("s_cbranch_scc0 L_noD")
        self.wait_lds_ge(F_QDONE, 4)
        e("s_mul_i32 s51, s28, 14"); e("s_add_u32 s51, s51, s29"); e("s_sub_u32 s51, s51, 14")
        self.seg(20, 1792*1024, ["s_lshr_b32 s44, s51, 2", "s_lshl_b32 s44, s44, 16", "s_and_b32 s48, s51, 3", "s_lshl_b32 s48, s48, 8", "s_add_u32 s44, s44, s48"],
                 4096, R_D, 16, ["v18", "v19", "v18", "v19"])
        self.lab("L_noD")
        self.seg(8, 64 << 20, ["s_mov_b32 s44, s50"], 1024, R_V, 32, ["v16", "v17", "v16", "v17"])
        e("s_cmp_lt_u32 s33, 2"); e("s_cbranch_scc0 L_noGUw")
        self.wait_lds_ge(F_GUDONE, 1)
        self.lab("L_noGUw")
        self.seg(8, 64 << 20, ["s_add_u32 s44, s50, 32768"], 1024, R_V + 32768, 32, ["v16", "v17", "v16", "v17"])
        self.stamp(3)
        self.wait_lds_ge(F_P, 4)
        self.seg(12, 4 << 20, ["s_lshl_b32 s44, s28, 2", "s_lshr_b32 s48, s29, 3", "s_add_u32 s44, s44, s48", "s_lshl_b32 s44, s44, 17",
                               "s_and_b32 s48, s29, 7", "s_lshl_b32 s48, s48, 7", "s_add_u32 s44, s44, s48"],
                 8192, R_O, 16, ["v22"]*4)
        self.stamp(4)
        for k in range(D-1, -1, -1):
            e(f"s_waitcnt vmcnt({k})")
            e(f"s_sub_u32 s48, s37, {k}")
            e("v_mov_b32 v20, s48")
            e(f"ds_write_b32 v3, v20 offset:{F_LAND-FLG}")
        self.stamp(5)
        self.stamp_flush()
        e("s_endpgm")

    def cwave(self):
        e = self.e
        e("s_lshl_b32 s48, s32, 11")
        e("v_lshlrev_b32 v6, 4, v0"); e("v_add_u32 v6, s48, v6")
        e("global_load_dwordx4 v[8:11], v6, s[4:5]")
        e("global_load_dwordx4 v[12:15], v6, s[4:5] offset:1024")
        e("v_and_b32 v1, 15, v0")
        e("v_lshrrev_b32 v2, 4, v0")
        e("s_barrier")
        e("v_lshrrev_b32 v6, 2, v0"); e("v_lshlrev_b32 v6, 9, v6")
        e("v_and_b32 v7, 1, v0"); e("v_lshl_add_u32 v6, v7, 8, v6")
        e("v_bfe_u32 v7, v0, 1, 1"); e("v_lshl_add_u32 v6, v7, 3, v6")
        e("s_lshl_b32 s48, s32, 5"); e(f"s_add_u32 s48, s48, {XN}"); e("v_add_u32 v6, s48, v6")
        e("s_waitcnt vmcnt(0)")
        self.stamp(1)
        for rb, src in ((16, 8), (24, 12)):
            for i in range(4):
                e(f"v_lshlrev_b32 v{rb+2*i}, 16, v{src+i}")
                e(f"v_and_b32 v{rb+2*i+1}, 0xffff0000, v{src+i}")
        for rb, d in ((16, 32), (24, 33)):
            e(f"v_add_f32 v{d}, v{rb}, v{rb+1}")
            e(f"v_add_f32 v34, v{rb+2}, v{rb+3}")
            e(f"v_add_f32 v35, v{rb+4}, v{rb+5}")
            e(f"v_add_f32 v36, v{rb+6}, v{rb+7}")
            e(f"v_add_f32 v{d}, v{d}, v34"); e("v_add_f32 v35, v35, v36"); e(f"v_add_f32 v{d}, v{d}, v35")
        self.allreduce(["v32", "v33"], "v_add_f32", ["v34", "v35"])
        e(f"v_mul_f32 v32, {f32(1/512)}, v32"); e(f"v_mul_f32 v33, {f32(1/512)}, v33")
        for rb, m, d in ((16, 32, 36), (24, 33, 37)):
            e(f"v_sub_f32 v38, v{rb}, v{m}"); e(f"v_mul_f32 v{d}, v38, v38")
            for i in range(1, 8):
                e(f"v_sub_f32 v38, v{rb+i}, v{m}"); e(f"v_fmac_f32 v{d}, v38, v38")
        self.allreduce(["v36", "v37"], "v_add_f32", ["v34", "v35"])
        e(f"v_mul_f32 v36, {f32(1/512)}, v36"); e(f"v_mul_f32 v37, {f32(1/512)}, v37")
        for m, v in ((32, 36), (33, 37)):
            e(f"v_cvt_pk_bf16_f32 v38, v{m}, v{v}")
            e(f"v_lshlrev_b32 v{m}, 16, v38")
            e(f"v_and_b32 v{v}, 0xffff0000, v38")
            e(f"v_add_f32 v{v}, {f32(1e-5)}, v{v}")
            self.bf16r(f"v{v}", f"v{v}")
            e(f"v_sqrt_f32 v{v}, v{v}")
            self.nop(1)
            self.bf16r(f"v{v}", f"v{v}")
            e(f"v_rcp_f32 v{v}, v{v}")
            self.nop(1)
        for rb, m, v, out in ((16, 32, 36, 40), (24, 33, 37, 44)):
            for i in range(4):
                e(f"v_sub_f32 v38, v{rb+2*i}, v{m}"); e(f"v_sub_f32 v39, v{rb+2*i+1}, v{m}")
                e("v_cvt_pk_bf16_f32 v38, v38, v39")
                e("v_and_b32 v39, 0xffff0000, v38"); e("v_lshlrev_b32 v38, 16, v38")
                e(f"v_mul_f32 v38, v38, v{v}"); e(f"v_mul_f32 v39, v39, v{v}")
                e(f"v_cvt_pk_bf16_f32 v{out+i}, v38, v39")
        e("ds_write_b64 v6, v[40:41]"); e("ds_write_b64 v6, v[42:43] offset:128")
        e("ds_write_b64 v6, v[44:45] offset:16"); e("ds_write_b64 v6, v[46:47] offset:144")
        e("s_waitcnt lgkmcnt(0)")
        self.lds_inc(F_XN)
        self.stamp(2)
        e("v_lshrrev_b32 v48, 2, v0")
        e("v_and_b32 v49, 3, v0"); e("v_lshlrev_b32 v49, 3, v49")
        e("v_bfe_u32 v50, v0, 3, 2"); e("v_lshl_or_b32 v50, v50, 5, v49"); e("v_lshl_add_u32 v50, v48, 7, v50")
        e("v_and_b32 v51, 7, v48"); e("v_lshl_or_b32 v51, v51, 5, v49"); e("v_lshl_add_u32 v51, v48, 8, v51")
        e("v_and_b32 v52, 7, v0"); e("v_lshlrev_b32 v52, 4, v52"); e("v_lshl_add_u32 v52, v2, 7, v52")
        e("s_lshr_b32 s49, s29, 3")
        e("s_lshl_b32 s48, s49, 11"); e(f"s_add_u32 s48, s48, {XN}"); e("v_add_u32 v52, s48, v52")
        e("s_lshl_b32 s48, s32, 5"); e("v_xor_b32 v53, s48, v50"); e(f"v_add_u32 v53, {R_Q}, v53")
        e("s_lshl_b32 s48, s28, 5"); e("s_add_u32 s48, s48, s49"); e("s_lshl_b32 s48, s48, 11")
        e("s_and_b32 s50, s29, 7"); e("s_lshl_b32 s50, s50, 8"); e("s_add_u32 s48, s48, s50")
        e("s_lshl_b32 s50, s32, 6"); e("s_add_u32 s48, s48, s50"); e(f"s_add_u32 s48, s48, {QBUF}")
        e("v_lshlrev_b32 v54, 13, v1"); e("v_lshl_add_u32 v54, v2, 4, v54"); e("v_add_u32 v54, s48, v54")
        e("s_lshl_b32 s48, s28, 3"); e("s_add_u32 s48, s48, s30"); e("s_lshl_b32 s48, s48, 13")
        e("s_lshl_b32 s50, s32, 7"); e("s_add_u32 s48, s48, s50"); e(f"s_add_u32 s48, s48, {QBUF}")
        e("v_lshrrev_b32 v55, 2, v1"); e("v_lshlrev_b32 v55, 11, v55")
        e("v_and_b32 v56, 3, v1"); e("v_lshl_add_u32 v55, v56, 9, v55"); e("v_lshl_add_u32 v55, v2, 5, v55"); e("v_add_u32 v55, s48, v55")
        self.wait_lds_ge(F_XN, 4)
        for j in range(4):
            e(f"ds_read_b128 v[{64+4*j}:{67+4*j}], v52 offset:{j*512}")
        self.wait_lds_ge(F_LAND, 16)
        self.stamp(3)
        for j in range(4):
            e(f"ds_read_b64_tr_b16 v[{80+4*j}:{81+4*j}], v53 offset:{(32*j)*128}")
            e(f"ds_read_b64_tr_b16 v[{82+4*j}:{83+4*j}], v53 offset:{(32*j+16)*128}")
        for j in range(4):
            e(f"s_waitcnt lgkmcnt({6-2*j})")
            self.mfma(96, 80+4*j, 64+4*j, "0" if j == 0 else None)
        self.lds_inc(F_QDONE)
        self.nop(6)
        e("v_cvt_pk_bf16_f32 v100, v96, v97"); e("v_cvt_pk_bf16_f32 v102, v98, v99")
        e("s_add_u32 s34, s34, 1")
        e("v_mov_b32 v101, s34"); e("v_mov_b32 v103, s34")
        e("s_mov_b32 s58, 0x00ff00ff"); e("s_mov_b32 s59, 0x00ff00ff")
        e("s_mov_b64 exec, s[58:59]")
        e("global_store_dwordx4 v54, v[100:103], s[26:27] sc1")
        e("s_mov_b64 exec, -1")
        self.stamp(4)
        self.poll(["global_load_dwordx4 v[64:67], v55, s[26:27] sc1", "global_load_dwordx4 v[68:71], v55, s[26:27] offset:16 sc1"],
                  ["v65", "v67", "v69", "v71"], "v72", "v73")
        e("v_mov_b32 v65, v66"); e("v_mov_b32 v66, v68"); e("v_mov_b32 v67, v70")
        e("v_lshlrev_b32 v56, 4, v0"); e(f"v_add_u32 v56, {QF}, v56")
        e("s_lshl_b32 s48, s32, 10"); e("v_add_u32 v57, s48, v56")
        e("ds_write_b128 v57, v[64:67]")
        e("s_waitcnt lgkmcnt(0)")
        self.lds_inc(F_QF)
        self.stamp(5)
        e("v_xor_b32 v58, v2, v1"); e("v_lshlrev_b32 v58, 4, v58"); e("v_lshl_add_u32 v58, v1, 8, v58")
        e("s_lshl_b32 s48, s32, 14"); e(f"s_add_u32 s48, s48, {R_K}"); e("v_add_u32 v58, s48, v58")
        e("v_xor_b32 v59, 64, v58"); e("v_xor_b32 v60, 0x80, v58"); e("v_xor_b32 v61, 0xc0, v58")
        self.wait_lds_ge(F_QF, 4)
        for j in range(4):
            e(f"ds_read_b128 v[{64+4*j}:{67+4*j}], v56 offset:{j*1024}")
        e("s_lshl_b32 s48, s32, 4"); e("s_add_u32 s48, s48, s35"); e("s_add_u32 s48, s48, 16")
        self.wait_lds_ge(F_LAND, "s48")
        self.stamp(6)
        kaddr = ["v58", "v59", "v60", "v61"]
        for T in range(4):
            for j in range(4):
                e(f"ds_read_b128 v[{16+16*(T%2)+4*j}:{19+16*(T%2)+4*j}], {kaddr[j]} offset:{T*4096}")
            if T >= 1:
                pass
            for j in range(4):
                e(f"s_waitcnt lgkmcnt({3-j})")
                self.mfma(96+4*T, 16+16*(T%2)+4*j, 64+4*j, "0" if j == 0 else None)
        self.nop(8)
        S = [f"v{96+i}" for i in range(16)]
        for sh in (4, 8):
            for r in S:
                e(f"v_add_f32_dpp {r}, {r}, {r} row_ror:{sh} row_mask:0xf bank_mask:0xf")
        c1 = 128 ** -0.5 * 1.4426950408889634
        for r in S:
            e(f"v_mul_f32 {r}, {f32(c1)}, {r}")
        e("v_max3_f32 v16, v96, v97, v98")
        for i in range(3, 15, 2):
            e(f"v_max3_f32 v16, v16, v{96+i}, v{97+i}")
        e("v_max_f32 v16, v16, v111")
        self.xg_reduce(["v16"], "v_max_f32", ["v17"])
        e("v_and_b32 v18, 3, v0"); e("v_lshlrev_b32 v18, 2, v18"); e(f"v_add_u32 v19, {FLG}, v18")
        e("s_lshl_b32 s48, s32, 4"); e("v_add_u32 v18, s48, v19")
        e(f"ds_write_b32 v18, v16 offset:{WMAX-FLG}")
        e("s_waitcnt lgkmcnt(0)")
        self.lds_inc(F_MAX)
        self.wait_lds_ge(F_MAX, 4, sleep=0)
        for w in range(4):
            e(f"ds_read_b32 v{20+w}, v19 offset:{WMAX-FLG+16*w}")
        e("s_waitcnt lgkmcnt(0)")
        e("v_max3_f32 v62, v20, v21, v22"); e("v_max_f32 v62, v62, v23")
        for r in S:
            e(f"v_sub_f32 {r}, {r}, v62")
        for r in S:
            e(f"v_exp_f32 {r}, {r}")
        self.nop(1)
        e("v_add_f32 v16, v96, v97")
        for i in range(2, 16):
            e(f"v_add_f32 v16, v16, v{96+i}")
        self.xg_reduce(["v16"], "v_add_f32", ["v17"])
        e(f"ds_write_b32 v18, v16 offset:{WSUM-FLG}")
        for h in range(2):
            for i in range(4):
                e(f"v_cvt_pk_bf16_f32 v{24+4*h+i}, v{96+8*h+2*i}, v{97+8*h+2*i}")
        e("v_and_b32 v63, 3, v0"); e("v_lshl_add_u32 v63, v2, 2, v63"); e("v_lshlrev_b32 v63, 4, v63"); e(f"v_add_u32 v63, {PB}, v63")
        e("s_lshl_b32 s48, s32, 9"); e("v_add_u32 v21, s48, v63")
        e("ds_write_b128 v21, v[24:27]"); e("ds_write_b128 v21, v[28:31] offset:256")
        e("s_waitcnt lgkmcnt(0)")
        e("s_mov_b64 exec, 1")
        e(f"ds_add_rtn_u32 v22, v3, v5 offset:{F_P-FLG}")
        e("s_waitcnt lgkmcnt(0)")
        e("s_mov_b64 exec, -1")
        e("v_readfirstlane_b32 s48, v22")
        self.stamp(7)
        e("s_lshl_b32 s51, s28, 3"); e("s_add_u32 s51, s51, s30"); e("s_lshl_b32 s51, s51, 8"); e(f"s_add_u32 s51, s51, {STBUF}")
        e("s_cmp_eq_u32 s48, 3"); e("s_cbranch_scc0 L_nostat")
        for w in range(4):
            e(f"ds_read_b32 v{20+w}, v19 offset:{WSUM-FLG+16*w}")
        e("s_waitcnt lgkmcnt(0)")
        e("v_add_f32 v20, v20, v21"); e("v_add_f32 v22, v22, v23"); e("v_add_f32 v26, v20, v22")
        e("v_mov_b32 v24, v62"); e("v_mov_b32 v25, s34"); e("v_mov_b32 v27, s34")
        e("s_lshl_b32 s48, s31, 6"); e("s_add_u32 s48, s48, s51")
        e("v_lshlrev_b32 v20, 4, v0"); e("v_add_u32 v20, s48, v20")
        e("s_mov_b64 exec, 15")
        e("global_store_dwordx4 v20, v[24:27], s[26:27] sc1")
        e("s_mov_b64 exec, -1")
        self.lab("L_nostat")
        e("v_and_b32 v57, 3, v0"); e("v_lshlrev_b32 v57, 4, v57"); e("v_lshl_add_u32 v57, v2, 6, v57"); e("v_add_u32 v57, s51, v57")
        self.wait_lds_ge(F_P, 4, sleep=0)
        for s in range(8):
            e(f"ds_read_b128 v[{64+4*s}:{67+4*s}], v63 offset:{s*256}")
        e("s_lshl_b32 s48, s32, 6"); e("v_xor_b32 v58, s48, v51"); e(f"v_add_u32 v58, {R_V}, v58"); e("v_xor_b32 v59, 32, v58")
        e("s_lshl_b32 s48, s28, 7"); e("s_lshl_b32 s50, s31, 3"); e("s_add_u32 s48, s48, s50"); e("s_add_u32 s48, s48, s30"); e("s_lshl_b32 s48, s48, 9")
        e("s_lshl_b32 s50, s32, 7"); e("s_add_u32 s48, s48, s50"); e(f"s_add_u32 s48, s48, {OBUF}")
        e("v_and_b32 v60, 3, v0"); e("v_lshlrev_b32 v60, 14, v60"); e("v_lshl_add_u32 v60, v2, 4, v60"); e("v_add_u32 v60, s48, v60")
        e("s_lshl_b32 s48, s28, 2"); e("s_add_u32 s48, s48, s49"); e("s_lshl_b32 s48, s48, 14")
        e("s_add_u32 s48, s48, s50"); e(f"s_add_u32 s48, s48, {OBUF}")
        e("v_lshlrev_b32 v61, 9, v1"); e("v_lshl_add_u32 v61, v2, 4, v61"); e("v_add_u32 v61, s48, v61")
        e("v_add_u32 v56, 0x2000, v61")
        for s in range(8):
            e(f"s_add_u32 s48, s36, {8*(s+1)}")
            self.wait_lds_ge(F_LAND, "s48", sleep=(0 if s >= 6 else 1))
            o = 32*s*256
            rb = 16 + 8*(s % 2)
            e(f"ds_read_b64_tr_b16 v[{rb}:{rb+1}], v58 offset:{o}")
            e(f"ds_read_b64_tr_b16 v[{rb+2}:{rb+3}], v58 offset:{o+4096}")
            e(f"ds_read_b64_tr_b16 v[{rb+4}:{rb+5}], v59 offset:{o}")
            e(f"ds_read_b64_tr_b16 v[{rb+6}:{rb+7}], v59 offset:{o+4096}")
            if s == 5:
                e("global_load_dwordx4 v[40:43], v57, s[26:27] sc1")
            e("s_waitcnt lgkmcnt(2)")
            self.mfma(96, rb, 64+4*s, "0" if s == 0 else None)
            e("s_waitcnt lgkmcnt(0)")
            self.mfma(100, rb+4, 64+4*s, "0" if s == 0 else None)
        self.stamp(8)
        e("s_waitcnt vmcnt(0)")
        self.tagcheck(["v41", "v43"], "v44", "v45")
        e("s_cbranch_scc1 L_statok")
        self.poll(["global_load_dwordx4 v[40:43], v57, s[26:27] sc1"], ["v41", "v43"], "v44", "v45", sleep=1)
        self.lab("L_statok")
        e("v_mov_b32 v44, v40")
        self.xg_reduce(["v44"], "v_max_f32", ["v45"])
        e("v_sub_f32 v40, v40, v44"); e("v_exp_f32 v40, v40"); e("v_sub_f32 v46, v62, v44"); e("v_exp_f32 v46, v46")
        e("v_mul_f32 v42, v42, v40")
        self.xg_reduce(["v42"], "v_add_f32", ["v45"])
        e("v_rcp_f32 v42, v42")
        self.nop(1)
        e("v_mul_f32 v46, v46, v42")
        for i in range(8):
            e(f"v_mul_f32 v{96+i}, v{96+i}, v46")
        e("v_cvt_pk_bf16_f32 v16, v96, v97"); e("v_mov_b32 v17, s34"); e("v_cvt_pk_bf16_f32 v18, v98, v99"); e("v_mov_b32 v19, s34")
        e("v_cvt_pk_bf16_f32 v20, v100, v101"); e("v_mov_b32 v21, s34"); e("v_cvt_pk_bf16_f32 v22, v102, v103"); e("v_mov_b32 v23, s34")
        e("s_mov_b32 s56, 0x000f000f"); e("s_mov_b32 s57, 0x000f000f")
        e("s_mov_b64 exec, s[56:57]")
        e("global_store_dwordx4 v60, v[16:19], s[26:27] sc1")
        e("global_store_dwordx4 v60, v[20:23], s[26:27] offset:64 sc1")
        e("s_mov_b64 exec, -1")
        self.stamp(9)
        e("s_lshl_b32 s48, s32, 12"); e(f"s_add_u32 s48, s48, {R_O}"); e("v_add_u32 v53, s48, v50")
        self.wait_lds_ge(F_LAND, "s37")
        for ct in range(4):
            if ct: e(f"v_xor_b32 v52, {ct<<5}, v53")
            a = "v53" if ct == 0 else "v52"
            e(f"ds_read_b64_tr_b16 v[{64+4*ct}:{65+4*ct}], {a}")
            e(f"ds_read_b64_tr_b16 v[{66+4*ct}:{67+4*ct}], {a} offset:2048")
        self.stamp(10)
        self.poll(["global_load_dwordx4 v[24:27], v61, s[26:27] sc1", "global_load_dwordx4 v[28:31], v61, s[26:27] offset:64 sc1",
                   "global_load_dwordx4 v[32:35], v56, s[26:27] sc1", "global_load_dwordx4 v[36:39], v56, s[26:27] offset:64 sc1"],
                  ["v25", "v27", "v29", "v31", "v33", "v35", "v37", "v39"], "v44", "v45", sleep=1)
        self.stamp(11)
        e("v_mov_b32 v25, v26"); e("v_mov_b32 v26, v28"); e("v_mov_b32 v27, v30")
        e("v_mov_b32 v33, v34"); e("v_mov_b32 v34, v36"); e("v_mov_b32 v35, v38")
        e("s_waitcnt lgkmcnt(0)")
        self.nop(1)
        for ct in range(4):
            self.mfma(96+4*ct, 64+4*ct, 24, "0")
        for ct in range(4):
            self.mfma(96+4*ct, 64+4*ct, 32)
        e("v_and_b32 v16, 7, v0"); e("v_lshl_add_u32 v16, v2, 3, v16"); e("v_lshlrev_b32 v16, 4, v16"); e(f"v_add_u32 v16, {RED}, v16")
        e("s_lshl_b32 s48, s32, 11"); e("v_add_u32 v17, s48, v16")
        e("s_lshl_b32 s48, s32, 9"); e("v_add_u32 v18, s48, v16")
        self.nop(4)
        for r in S:
            e(f"v_add_f32_dpp {r}, {r}, {r} row_ror:8 row_mask:0xf bank_mask:0xf")
        e("s_mov_b64 exec, s[58:59]")
        for ct in range(4):
            e(f"ds_write_b128 v17, v[{96+4*ct}:{99+4*ct}] offset:{ct*512}")
        e("s_mov_b64 exec, -1")
        e("s_waitcnt lgkmcnt(0)")
        self.lds_inc(F_RED)
        e("s_and_b32 s48, s29, 7"); e("s_lshl_b32 s48, s48, 2"); e("s_add_u32 s48, s48, s32"); e("s_lshl_b32 s48, s48, 5")
        e("s_lshl_b32 s50, s28, 2"); e("s_add_u32 s48, s48, s50"); e("s_add_u32 s48, s48, s49"); e("s_lshl_b32 s48, s48, 7"); e(f"s_add_u32 s48, s48, {SBUF}")
        e("v_lshlrev_b32 v19, 17, v1"); e("v_lshl_add_u32 v19, v2, 5, v19"); e("v_add_u32 v19, s48, v19")
        self.wait_lds_ge(F_RED, 4, sleep=0)
        for j in range(4):
            e(f"ds_read_b128 v[{64+4*j}:{67+4*j}], v18 offset:{j*2048}")
        e("s_waitcnt lgkmcnt(0)")
        for i in range(4):
            e(f"v_add_f32 v{64+i}, v{64+i}, v{68+i}"); e(f"v_add_f32 v{72+i}, v{72+i}, v{76+i}")
        e("v_add_f32 v24, v64, v72"); e("v_mov_b32 v25, s34"); e("v_add_f32 v26, v65, v73"); e("v_mov_b32 v27, s34")
        e("v_add_f32 v28, v66, v74"); e("v_mov_b32 v29, s34"); e("v_add_f32 v30, v67, v75"); e("v_mov_b32 v31, s34")
        e("s_mov_b64 exec, s[58:59]")
        e("global_store_dwordx4 v19, v[24:27], s[26:27] sc1")
        e("global_store_dwordx4 v19, v[28:31], s[26:27] offset:16 sc1")
        e("s_mov_b64 exec, -1")
        self.stamp(12)
        self.stamp_flush()
        e("s_endpgm")

    def fwave(self):
        e = self.e
        self.lab("L_fwave")
        e("v_and_b32 v1, 15, v0"); e("v_lshrrev_b32 v2, 4, v0")
        e("s_waitcnt lgkmcnt(0)")
        e("s_barrier")
        e("v_lshrrev_b32 v48, 2, v0")
        e("v_and_b32 v49, 3, v0"); e("v_lshlrev_b32 v49, 3, v49")
        e("v_bfe_u32 v50, v0, 3, 2"); e("v_lshl_or_b32 v50, v50, 5, v49"); e("v_lshl_add_u32 v50, v48, 7, v50")
        e("v_and_b32 v51, 7, v48"); e("v_lshl_or_b32 v51, v51, 5, v49"); e("v_lshl_add_u32 v51, v48, 8, v51")
        e("s_mov_b32 s58, 0x00ff00ff"); e("s_mov_b32 s59, 0x00ff00ff")
        e("s_waitcnt lgkmcnt(0)")
        e("s_add_u32 s34, s34, 1")
        e("s_lshl_b32 s52, s28, 2"); e("s_add_u32 s52, s52, s31")
        e("s_lshl_b32 s53, s30, 10"); e("s_lshl_b32 s48, s52, 5"); e("s_add_u32 s53, s53, s48")
        e("v_and_b32 v6, 7, v0"); e("v_lshlrev_b32 v6, 2, v6"); e("v_add_u32 v6, s53, v6")
        e("global_load_dword v7, v6, s[4:5]")
        e("s_cmp_eq_u32 s33, 3"); e("s_cbranch_scc1 L_final")
        e("s_cmp_eq_u32 s33, 2"); e("s_cbranch_scc1 L_dunit")
        e("s_mul_i32 s51, s28, 7"); e("s_add_u32 s51, s51, s29"); e("s_mul_i32 s48, s33, 7"); e("s_sub_u32 s51, s51, s48")
        e("v_and_b32 v52, 7, v0"); e("v_lshlrev_b32 v52, 4, v52"); e("v_lshl_add_u32 v52, v2, 7, v52")
        e("s_and_b32 s48, s51, 1"); e("s_lshl_b32 s48, s48, 12"); e(f"s_add_u32 s48, s48, {XN}"); e("v_add_u32 v52, s48, v52")
        e(f"v_add_u32 v53, {R_GU}, v50")
        e("s_mul_i32 s48, s33, 56"); e("s_add_u32 s48, s48, s51"); e("s_lshl_b32 s48, s48, 11"); e(f"s_add_u32 s48, s48, {GUBUF}")
        e("v_lshlrev_b32 v54, 8, v1"); e("v_lshl_add_u32 v54, v2, 4, v54"); e("v_add_u32 v54, s48, v54")
        self.wait_lds_ge(F_XN, 4)
        for j in range(8):
            e(f"ds_read_b128 v[{64+4*j}:{67+4*j}], v52 offset:{j*512}")
        self.wait_lds_ge(F_LAND, "s38")
        self.stamp(1)
        for ct in range(4):
            if ct: e(f"v_xor_b32 v55, {ct<<5}, v53")
            a = "v53" if ct == 0 else "v55"
            for jh in range(2):
                for j in range(4*jh, 4*jh+4):
                    rb = 16 + 4*j
                    e(f"ds_read_b64_tr_b16 v[{rb}:{rb+1}], {a} offset:{32*j*128}")
                    e(f"ds_read_b64_tr_b16 v[{rb+2}:{rb+3}], {a} offset:{(32*j+16)*128}")
                for j in range(4*jh, 4*jh+4):
                    e(f"s_waitcnt lgkmcnt({6-2*(j%4)})")
                    self.mfma(96+4*ct, 16+4*j, 64+4*j, "0" if j == 0 else None)
        self.lds_inc(F_GUDONE)
        self.nop(6)
        e("s_mov_b64 exec, s[58:59]")
        for ct in range(4):
            rb = 16 + 4*ct
            e(f"v_cvt_pk_bf16_f32 v{rb}, v{96+4*ct}, v{97+4*ct}"); e(f"v_mov_b32 v{rb+1}, s34")
            e(f"v_cvt_pk_bf16_f32 v{rb+2}, v{98+4*ct}, v{99+4*ct}"); e(f"v_mov_b32 v{rb+3}, s34")
            e(f"global_store_dwordx4 v54, v[{rb}:{rb+3}], s[26:27] offset:{ct*64} sc1")
        e("s_mov_b64 exec, -1")
        self.stamp(2)
        e("s_branch L_final")
        self.lab("L_dunit")
        e("s_mul_i32 s51, s28, 14"); e("s_add_u32 s51, s51, s29"); e("s_sub_u32 s51, s51, 14")
        e("s_lshr_b32 s50, s51, 2")
        e("s_lshl_b32 s48, s50, 12"); e(f"s_add_u32 s48, s48, {GUBUF}")
        e("v_and_b32 v52, 7, v0"); e("v_lshlrev_b32 v52, 8, v52"); e("v_bfe_u32 v53, v0, 3, 1"); e("v_lshl_add_u32 v52, v53, 7, v52")
        e("v_lshl_add_u32 v52, v2, 4, v52"); e("v_add_u32 v52, s48, v52")
        e(f"v_add_u32 v53, {56*2048}, v52")
        loads = []
        tags = []
        for m, a in ((0, "v52"), (1, "v53")):
            for kh in range(2):
                for un in range(2):
                    rb = 16 + 16*m + 8*kh + 4*un
                    loads.append(f"global_load_dwordx4 v[{rb}:{rb+3}], {a}, s[26:27] offset:{kh*2048 + un*64} sc1")
                    tags += [f"v{rb+1}", f"v{rb+3}"]
        self.poll(loads, tags, "v54", "v55", sleep=4)
        self.stamp(1)
        for un in range(2):
            for dd in range(2):
                g0 = 16 + 4*un + 2*dd; g1 = g0 + 8; u0 = g0 + 16; u1 = g0 + 24
                for hi in range(2):
                    ex = (lambda d, s: f"v_and_b32 {d}, 0xffff0000, {s}") if hi else (lambda d, s: f"v_lshlrev_b32 {d}, 16, {s}")
                    e(ex("v56", f"v{g0}")); e(ex("v57", f"v{g1}")); e("v_add_f32 v56, v56, v57")
                    e(ex("v58", f"v{u0}")); e(ex("v57", f"v{u1}")); e("v_add_f32 v58, v58, v57")
                    e("v_cvt_pk_bf16_f32 v57, v56, v58")
                    e("v_lshlrev_b32 v56, 16, v57"); e("v_and_b32 v58, 0xffff0000, v57")
                    self.silu("v56", "v56", "v57")
                    self.bf16r("v56", "v56")
                    e(f"v_mul_f32 v{60+hi}, v56, v58")
                e(f"v_cvt_pk_bf16_f32 v{64+2*un+dd}, v60, v61")
        e(f"v_add_u32 v53, {R_D}, v51")
        e("s_and_b32 s48, s51, 3"); e("s_lshl_b32 s48, s48, 8"); e("s_add_u32 s48, s48, s50"); e("s_lshl_b32 s48, s48, 7"); e(f"s_add_u32 s48, s48, {FBUF}")
        e("v_lshlrev_b32 v54, 17, v1"); e("v_lshl_add_u32 v54, v2, 5, v54"); e("v_add_u32 v54, s48, v54")
        self.wait_lds_ge(F_LAND, "s38")
        for half in range(2):
            for c2 in range(2):
                for c4 in range(2*c2, 2*c2+2):
                    ct = 4*half + c4
                    e(f"v_xor_b32 v55, {ct<<5}, v53")
                    rb = 16 + 8*c4
                    for j in range(2):
                        e(f"ds_read_b64_tr_b16 v[{rb+4*j}:{rb+4*j+1}], v55 offset:{32*j*256}")
                        e(f"ds_read_b64_tr_b16 v[{rb+4*j+2}:{rb+4*j+3}], v55 offset:{(32*j+16)*256}")
                for c4 in range(2*c2, 2*c2+2):
                    rb = 16 + 8*c4
                    e(f"s_waitcnt lgkmcnt({6-4*(c4%2)})")
                    self.mfma(72+8*c4, rb, 64, "0")
                    e(f"s_waitcnt lgkmcnt({4-4*(c4%2)})")
                    self.mfma(76+8*c4, rb+4, 64, "0")
            self.nop(8)
            for c4 in range(4):
                for r in range(4):
                    e(f"v_add_f32_dpp v{72+8*c4+r}, v{76+8*c4+r}, v{72+8*c4+r} row_ror:8 row_mask:0xf bank_mask:0xf")
            e("s_mov_b64 exec, s[58:59]")
            for c4 in range(4):
                ct = 4*half + c4
                rb = 16 + 8*c4
                a = 72 + 8*c4
                e(f"v_mov_b32 v{rb}, v{a}"); e(f"v_mov_b32 v{rb+1}, s34"); e(f"v_mov_b32 v{rb+2}, v{a+1}"); e(f"v_mov_b32 v{rb+3}, s34")
                e(f"v_mov_b32 v{rb+4}, v{a+2}"); e(f"v_mov_b32 v{rb+5}, s34"); e(f"v_mov_b32 v{rb+6}, v{a+3}"); e(f"v_mov_b32 v{rb+7}, s34")
                e(f"v_add_u32 v55, {ct*4096}, v54")
                e(f"global_store_dwordx4 v55, v[{rb}:{rb+3}], s[26:27] sc1")
                e(f"global_store_dwordx4 v55, v[{rb+4}:{rb+7}], s[26:27] offset:16 sc1")
            e("s_mov_b64 exec, -1")
            self.nop(2)
        self.stamp(2)
        self.lab("L_final")
        e("s_lshl_b32 s48, s30, 5"); e("s_add_u32 s48, s48, s52"); e("s_lshl_b32 s48, s48, 12")
        e("v_lshlrev_b32 v10, 4, v0"); e("v_add_u32 v10, s48, v10")
        e(f"v_add_u32 v11, {FBUF}, v10"); e(f"v_add_u32 v10, {SBUF}, v10")
        loads = [f"global_load_dwordx4 v[{16+4*t}:{19+4*t}], v11, s[26:27] offset:{t*1024} sc1" for t in range(3)]
        loads += ["s_mov_b32 exec_hi, 0", "global_load_dwordx4 v[28:31], v11, s[26:27] offset:3072 sc1", "s_mov_b64 exec, -1"]
        pre = ["v_mov_b32 v28, 0", "v_mov_b32 v29, s34", "v_mov_b32 v30, 0", "v_mov_b32 v31, s34"]
        self.poll(loads, [f"v{17+2*i}" for i in range(8)], "v12", "v13", sleep=4, pre=pre)
        self.stamp(3)
        e("v_add_f32 v32, v16, v20"); e("v_add_f32 v33, v18, v22"); e("v_add_f32 v34, v24, v28"); e("v_add_f32 v35, v26, v30")
        e("v_add_f32 v32, v32, v34"); e("v_add_f32 v33, v33, v35")
        self.nop(2)
        e("v_add_f32_dpp v32, v32, v32 row_ror:8 row_mask:0xf bank_mask:0xf"); e("v_add_f32_dpp v33, v33, v33 row_ror:8 row_mask:0xf bank_mask:0xf")
        self.xg_reduce(["v32", "v33"], "v_add_f32", ["v34", "v35"])
        e("v_cvt_pk_bf16_f32 v34, v32, v33"); e("v_lshlrev_b32 v32, 16, v34"); e("v_and_b32 v33, 0xffff0000, v34")
        self.silu("v32", "v32", "v34"); self.silu("v33", "v33", "v34")
        e("v_cvt_pk_bf16_f32 v34, v32, v33"); e("v_lshlrev_b32 v32, 16, v34"); e("v_and_b32 v33, 0xffff0000, v34")
        e("v_lshlrev_b32 v8, 16, v7"); e("v_and_b32 v9, 0xffff0000, v7")
        loads = [f"global_load_dwordx4 v[{16+4*t}:{19+4*t}], v10, s[26:27] offset:{t*1024} sc1" for t in range(4)]
        self.poll(loads, [f"v{17+2*i}" for i in range(8)], "v12", "v13", sleep=1)
        self.stamp(4)
        e("v_add_f32 v36, v16, v20"); e("v_add_f32 v37, v18, v22"); e("v_add_f32 v34, v24, v28"); e("v_add_f32 v35, v26, v30")
        e("v_add_f32 v36, v36, v34"); e("v_add_f32 v37, v37, v35")
        self.nop(2)
        e("v_add_f32_dpp v36, v36, v36 row_ror:8 row_mask:0xf bank_mask:0xf"); e("v_add_f32_dpp v37, v37, v37 row_ror:8 row_mask:0xf bank_mask:0xf")
        self.xg_reduce(["v36", "v37"], "v_add_f32", ["v34", "v35"])
        e("v_cvt_pk_bf16_f32 v34, v36, v37"); e("v_lshlrev_b32 v36, 16, v34"); e("v_and_b32 v37, 0xffff0000, v34")
        e("v_mul_f32 v36, v36, v32"); e("v_mul_f32 v37, v37, v33")
        e("v_cvt_pk_bf16_f32 v34, v36, v37"); e("v_lshlrev_b32 v36, 16, v34"); e("v_and_b32 v37, 0xffff0000, v34")
        e("v_add_f32 v36, v36, v8"); e("v_add_f32 v37, v37, v9")
        e("v_cvt_pk_bf16_f32 v34, v36, v37")
        e("s_mov_b64 exec, 0xff")
        e("global_store_dword v6, v34, s[22:23]")
        e("s_cmp_lg_u32 s2, 0"); e("s_cbranch_scc1 L_noep")
        e("s_mov_b64 exec, 1")
        e("v_mov_b32 v35, s34"); e("v_mov_b32 v36, 0")
        e("global_store_dword v36, v35, s[26:27] sc1")
        self.lab("L_noep")
        e("s_mov_b64 exec, -1")
        self.stamp(5)
        self.stamp_flush()

    def build(self):
        hdr = open("recurrent_scan__sliding_block_cached__swiglu_ffn__decode.s.ref").read().split("\n")
        out = []
        for line in hdr:
            if line.startswith("; @launch"):
                out.append(f"; @launch grid=(256,1,1) block=(384,1,1) lds={LDS_BYTES}")
            elif line.startswith(";"):
                out.append(line)
            else:
                break
        out += ['.amdgcn_target "amdgcn-amd-amdhsa--gfx950"', ".text", f".globl {NAME}", ".p2align 8", f".type {NAME},@function", f"{NAME}:"]
        self.prologue()
        self.cwave()
        self.loader()
        self.fwave()
        self.lab("L_end")
        self.e("s_endpgm")
        out += self.L
        out += ['.section .rodata,"a"', ".p2align 6", f".amdhsa_kernel {NAME}",
                "  .amdhsa_next_free_vgpr 128", "  .amdhsa_next_free_sgpr 102", "  .amdhsa_accum_offset 128",
                "  .amdhsa_group_segment_fixed_size 0", "  .amdhsa_kernarg_size 96", "  .amdhsa_user_sgpr_count 2",
                "  .amdhsa_user_sgpr_kernarg_segment_ptr 1", "  .amdhsa_system_sgpr_workgroup_id_x 1", ".end_amdhsa_kernel", ""]
        return "\n".join(out)

if __name__ == "__main__":
    import argparse
    ap = argparse.ArgumentParser()
    ap.add_argument("-o", default="recurrent_scan__sliding_block_cached__swiglu_ffn__decode.s")
    ap.add_argument("--depth", type=int, default=24)
    ap.add_argument("--stamps", action="store_true")
    a = ap.parse_args()
    g = G(depth=a.depth, stamps=a.stamps)
    open(a.o, "w").write(g.build())
    print("wrote", a.o, len(g.L), "lines")
```

```python
import sys, struct

NAME = "recurrent_scan__sliding_block_cached__swiglu_ffn__decode_kernel"

WS_EPOCH = 0
QBUF = 0x10000
STBUF = 0x90000
OBUF = 0xA0000
GUBUF = 0x120000
SBUF = 0x200000
FBUF = 0x300000
DBG = 0x800000

R_K = 0
R_V = 65536
R_Q = 131072
MISC = 147456
XN = MISC
QF = MISC + 8192
PB = MISC + 12288
FLG = MISC + 14336
F_LAND, F_XN, F_QDONE, F_QF, F_MAX, F_P, F_GUDONE, F_RED = [FLG + 4*i for i in range(8)]
WMAX = FLG + 64
WSUM = FLG + 128
R_O = R_K
RED = R_K + 16384
R_GU = R_V + 32768
R_D = R_Q
LDS_BYTES = 163840

def f32(x):
    return "0x%08x" % struct.unpack("<I", struct.pack("<f", x))[0]

class G:
    def __init__(self, depth=24, stamps=False, spin_limit=1 << 20, opt=None):
        self.opt = opt or {}
        self.L = []
        self.depth = depth
        self.stamps = stamps
        self.uid = 0
        self.spin_limit = spin_limit
    def e(self, s):
        self.L.append("    " + s)
    def lab(self, s):
        self.L.append(s + ":")
    def newlab(self, p="L"):
        self.uid += 1
        return f"{p}_{self.uid}"
    def c(self, s):
        self.L.append("    ; " + s)
    def nop(self, n):
        while n > 0:
            k = min(n, 16)
            self.e(f"s_nop {k-1}")
            n -= k
    def stamp(self, k):
        if not self.stamps:
            return
        self.e("s_memrealtime s[90:91]")
        self.e("s_waitcnt lgkmcnt(0)")
        self.e("v_mov_b32 v120, s90")
        self.e(f"v_writelane_b32 v121, s90, {k}")
    def stop(self, n):
        if self.opt.get("stop") == n:
            self.stamp_flush()
            self.e("s_endpgm")
    def stamp_flush(self):
        if not self.stamps:
            return
        self.e("s_mov_b64 exec, -1")
        self.e("global_store_dword v122, v121, s[26:27]")
        self.e("s_waitcnt vmcnt(0)")

    def wait_lds_ge(self, flag, val, vaddr="v3", vtmp="v4", stmp="s60", sleep=1):
        l0 = self.newlab("WL"); l1 = self.newlab("WD")
        self.e("s_mov_b32 s61, 0")
        self.lab(l0)
        self.e(f"ds_read_b32 {vtmp}, {vaddr} offset:{flag - FLG}")
        self.e("s_waitcnt lgkmcnt(0)")
        self.e(f"v_readfirstlane_b32 {stmp}, {vtmp}")
        self.e("s_add_u32 s61, s61, 1")
        self.e(f"s_cmp_ge_i32 {stmp}, {val}")
        self.e(f"s_cbranch_scc1 {l1}")
        if sleep:
            self.e(f"s_sleep {sleep}")
        self.e(f"s_cmp_lt_u32 s61, {self.spin_limit}")
        self.e(f"s_cbranch_scc1 {l0}")
        self.lab(l1)
    def lds_inc(self, flag, vaddr="v3", vone="v5"):
        self.e("s_mov_b64 exec, 1")
        self.e(f"ds_add_u32 {vaddr}, {vone} offset:{flag - FLG}")
        self.e("s_mov_b64 exec, -1")

    def allreduce(self, regs, op, tmp):
        for sh in (8, 4, 2, 1):
            self.nop(2 if len(regs) < 3 else 1)
            for r in regs:
                self.e(f"{op}_dpp {r}, {r}, {r} row_ror:{sh} row_mask:0xf bank_mask:0xf")
        self.xg_reduce(regs, op, tmp)
    def xg_reduce(self, regs, op, tmp):
        for sw in ("v_permlane16_swap_b32", "v_permlane32_swap_b32"):
            for r, t in zip(regs, tmp):
                self.e(f"v_mov_b32 {t}, {r}")
            self.nop(2)
            for r, t in zip(regs, tmp):
                self.e(f"{sw} {r}, {t}")
            self.nop(1)
            for r, t in zip(regs, tmp):
                self.e(f"{op} {r}, {r}, {t}")

    def tagcheck(self, tagregs, acc, t2, stag="s34"):
        first = True
        i = 0
        while i < len(tagregs):
            if first:
                self.e(f"v_xor_b32 {acc}, {stag}, {tagregs[i]}"); i += 1; first = False
            elif i + 1 < len(tagregs):
                self.e(f"v_xor_b32 {t2}, {stag}, {tagregs[i]}")
                self.e(f"v_xor_b32 {tagregs[i+1]}, {stag}, {tagregs[i+1]}")
                self.e(f"v_or3_b32 {acc}, {acc}, {t2}, {tagregs[i+1]}")
                i += 2
            else:
                self.e(f"v_xor_b32 {t2}, {stag}, {tagregs[i]}")
                self.e(f"v_or_b32 {acc}, {acc}, {t2}")
                i += 1
        self.e(f"v_cmp_ne_u32 s[62:63], 0, {acc}")
        self.e("s_cmp_eq_u64 s[62:63], 0")

    def poll(self, loads, tagregs, acc, t2, sleep=2, pre=None):
        l0 = self.newlab("PL"); l1 = self.newlab("PD")
        self.e("s_mov_b32 s61, 0")
        self.lab(l0)
        if pre:
            for p in pre: self.e(p)
        for s in loads:
            self.e(s)
        self.e("s_waitcnt vmcnt(0)")
        self.tagcheck(tagregs, acc, t2)
        self.e(f"s_cbranch_scc1 {l1}")
        self.e("s_add_u32 s61, s61, 1")
        if sleep:
            self.e(f"s_sleep {sleep}")
        self.e(f"s_cmp_lt_u32 s61, {self.spin_limit >> 3}")
        self.e(f"s_cbranch_scc1 {l0}")
        self.lab(l1)

    def mfma(self, d, a, b, c=None):
        cc = f"v[{d}:{d+3}]" if c is None else c
        self.e(f"v_mfma_f32_16x16x32_bf16 v[{d}:{d+3}], v[{a}:{a+3}], v[{b}:{b+3}], {cc}")

    def bf16r(self, dst, src, tmp=None):
        self.e(f"v_cvt_pk_bf16_f32 {dst}, {src}, {src}")
        self.e(f"v_lshlrev_b32 {dst}, 16, {dst}")

    def silu(self, dst, x, t):
        self.e(f"v_mul_f32 {t}, {f32(-1.4426950408889634)}, {x}")
        self.e(f"v_exp_f32 {t}, {t}")
        self.nop(1)
        self.e(f"v_add_f32 {t}, 1.0, {t}")
        self.e(f"v_rcp_f32 {t}, {t}")
        self.nop(1)
        self.e(f"v_mul_f32 {dst}, {x}, {t}")

    def prologue(self):
        e = self.e
        e("s_cmp_ge_u32 s2, 256")
        e("s_cbranch_scc1 L_end")
        e("s_load_dwordx16 s[4:19], s[0:1], 0")
        e("s_load_dwordx8 s[20:27], s[0:1], 64")
        e("v_lshrrev_b32 v1, 6, v0")
        e("v_and_b32 v0, 63, v0")
        e("s_and_b32 s28, s2, 7")
        e("v_readfirstlane_b32 s32, v1")
        e("s_lshr_b32 s29, s2, 3")
        e("s_lshr_b32 s30, s29, 2")
        e("s_and_b32 s31, s29, 3")
        e("s_mov_b32 s33, 3")
        e("s_cmp_lt_u32 s29, 28"); e("s_cselect_b32 s33, 2, s33")
        e("s_cmp_lt_u32 s29, 14"); e("s_cselect_b32 s33, 1, s33")
        e("s_cmp_lt_u32 s29, 7"); e("s_cselect_b32 s33, 0, s33")
        e("s_cmp_lt_u32 s33, 2")
        e("s_cselect_b32 s35, 48, 16")
        e("s_cselect_b32 s38, 48, 0x60")
        e("s_add_u32 s36, s35, 64")
        e("s_cmp_eq_u32 s33, 2")
        e("s_cselect_b32 s36, 0x60, s36")
        e("s_add_u32 s37, s36, 0x50")
        e(f"v_mov_b32 v3, {FLG}")
        e("v_mov_b32 v5, 1")
        if self.stamps:
            e("v_mov_b32 v121, 0")
            e("s_lshl_b32 s92, s2, 3"); e("s_add_u32 s92, s92, s32"); e("s_lshl_b32 s92, s92, 8"); e(f"s_add_u32 s92, s92, {DBG}")
            e("v_lshlrev_b32 v122, 2, v0"); e("v_add_u32 v122, s92, v122")
        e("s_waitcnt lgkmcnt(0)")
        e("s_load_dword s34, s[26:27], 0")
        self.stamp(0)
        e("s_cmp_eq_u32 s32, 4"); e("s_cbranch_scc1 L_loader")
        e("s_cmp_eq_u32 s32, 5"); e("s_cbranch_scc1 L_fwave")

    def seg(self, base, nrec, soff_code, step, lds, count, voffs, first=False):
        e = self.e
        D = self.depth
        e(f"s_mov_b32 s40, s{base}"); e(f"s_and_b32 s41, s{base+1}, 0xffff"); e(f"s_mov_b32 s42, {nrec}"); e("s_mov_b32 s43, 0x20000")
        for s in soff_code: e(s)
        e(f"s_mov_b32 s45, {lds}")
        e(f"s_mov_b32 s46, {count//4}")
        l0 = self.newlab("SEG")
        self.lab(l0)
        for u in range(4):
            if not first:
                e(f"s_waitcnt vmcnt({D-1})")
                e("v_mov_b32 v20, s47")
                e(f"ds_write_b32 v3, v20 offset:{F_LAND-FLG}")
            e("s_mov_b32 m0, s45")
            e("s_add_u32 s47, s47, 1")
            e(f"buffer_load_dwordx4 {voffs[u]}, s[40:43], s44 offen nt lds")
            e("s_add_u32 s45, s45, 1024")
            e(f"s_add_u32 s44, s44, {step}")
        e("s_sub_u32 s46, s46, 1")
        e("s_cmp_lg_u32 s46, 0")
        e(f"s_cbranch_scc1 {l0}")

    def loader(self):
        e = self.e
        D = self.depth
        assert D >= 17
        self.lab("L_loader")
        e("v_lshrrev_b32 v6, 4, v0")
        e("v_lshrrev_b32 v7, 3, v0")
        e("v_and_b32 v8, 1, v0"); e("v_lshlrev_b32 v8, 4, v8")
        e("v_bfe_u32 v9, v0, 1, 2"); e("v_xor_b32 v9, v9, v6"); e("v_lshl_or_b32 v9, v9, 5, v8")
        e("v_lshl_add_u32 v10, v7, 13, v9")
        e(f"s_mov_b32 s47, {-(D-1)}")
        self.seg(10, 4 << 20, ["s_lshr_b32 s44, s29, 3", "s_lshl_b32 s44, s44, 20", "s_lshl_b32 s48, s28, 10", "s_add_u32 s44, s44, s48",
                               "s_and_b32 s48, s29, 7", "s_lshl_b32 s48, s48, 7", "s_add_u32 s44, s44, s48"],
                 65536, R_Q, 16, ["v10"]*4, first=True)
        e("v_mov_b32 v20, 0")
        e("v_lshlrev_b32 v21, 2, v0"); e(f"v_add_u32 v21, {FLG}, v21")
        e("ds_write_b32 v21, v20")
        e("s_waitcnt lgkmcnt(0)")
        e("s_barrier")
        self.stamp(1)
        e("v_and_b32 v11, 15, v0"); e("v_xor_b32 v11, v11, v6"); e("v_lshlrev_b32 v11, 4, v11"); e("v_lshl_add_u32 v11, v6, 8, v11")
        e("v_xor_b32 v12, 64, v11"); e("v_xor_b32 v13, 0x80, v11"); e("v_xor_b32 v14, 0xc0, v11")
        e("v_bfe_u32 v15, v0, 1, 3"); e("v_xor_b32 v15, v15, v6"); e("v_lshl_or_b32 v15, v15, 5, v8")
        e("v_lshl_add_u32 v16, v6, 8, v15"); e("v_xor_b32 v17, 0x80, v16")
        e("v_lshl_add_u32 v18, v6, 10, v15"); e("v_xor_b32 v19, 0x80, v18")
        e("v_lshl_add_u32 v22, v7, 10, v9")
        e("s_movk_i32 s48, 3584"); e("v_mul_lo_u32 v23, v7, s48"); e("v_add_u32 v23, v23, v9")
        e("s_lshl_b32 s50, s30, 3"); e("s_add_u32 s50, s50, s28"); e("s_lshl_b32 s50, s50, 20")
        e("s_lshl_b32 s48, s31, 16"); e("s_add_u32 s50, s50, s48"); e("s_add_u32 s50, s50, 786432")
        e("s_cmp_lt_u32 s33, 2"); e("s_cbranch_scc0 L_noGU")
        e("s_mul_i32 s51, s28, 7"); e("s_add_u32 s51, s51, s29"); e("s_mul_i32 s48, s33, 7"); e("s_sub_u32 s51, s51, s48")
        e("s_cmp_eq_u32 s33, 0")
        e("s_cselect_b32 s52, s16, s18"); e("s_cselect_b32 s53, s17, s19")
        self.seg(52, 512*3584, ["s_and_b32 s44, s51, 1", f"s_mul_i32 s44, s44, {256*3584}", "s_lshr_b32 s48, s51, 1", "s_lshl_b32 s48, s48, 7", "s_add_u32 s44, s44, s48"],
                 8*3584, R_GU, 32, ["v23"]*4)
        self.lab("L_noGU")
        self.seg(6, 64 << 20, ["s_mov_b32 s44, s50"], 1024, R_K, 64, ["v11", "v12", "v13", "v14"])
        self.stamp(2)
        e("s_cmp_eq_u32 s33, 2"); e("s_cbranch_scc0 L_noD")
        if not self.opt.get("stop"): self.wait_lds_ge(F_QDONE, 4)
        e("s_mul_i32 s51, s28, 14"); e("s_add_u32 s51, s51, s29"); e("s_sub_u32 s51, s51, 14")
        self.seg(20, 1792*1024, ["s_lshr_b32 s44, s51, 2", "s_lshl_b32 s44, s44, 16", "s_and_b32 s48, s51, 3", "s_lshl_b32 s48, s48, 8", "s_add_u32 s44, s44, s48"],
                 4096, R_D, 16, ["v18", "v19", "v18", "v19"])
        self.lab("L_noD")
        self.seg(8, 64 << 20, ["s_mov_b32 s44, s50"], 1024, R_V, 32, ["v16", "v17", "v16", "v17"])
        e("s_cmp_lt_u32 s33, 2"); e("s_cbranch_scc0 L_noGUw")
        if not self.opt.get("stop"): self.wait_lds_ge(F_GUDONE, 1)
        self.lab("L_noGUw")
        self.seg(8, 64 << 20, ["s_add_u32 s44, s50, 32768"], 1024, R_V + 32768, 32, ["v16", "v17", "v16", "v17"])
        self.stamp(3)
        if not self.opt.get("stop"): self.wait_lds_ge(F_P, 4)
        self.seg(12, 4 << 20, ["s_lshl_b32 s44, s28, 2", "s_lshr_b32 s48, s29, 3", "s_add_u32 s44, s44, s48", "s_lshl_b32 s44, s44, 17",
                               "s_and_b32 s48, s29, 7", "s_lshl_b32 s48, s48, 7", "s_add_u32 s44, s44, s48"],
                 8192, R_O, 16, ["v22"]*4)
        self.stamp(4)
        for k in range(D-1, -1, -1):
            e(f"s_waitcnt vmcnt({k})")
            e(f"s_sub_u32 s48, s37, {k}")
            e("v_mov_b32 v20, s48")
            e(f"ds_write_b32 v3, v20 offset:{F_LAND-FLG}")
        self.stamp(5)
        self.stamp_flush()
        e("s_endpgm")

    def cwave(self):
        e = self.e
        e("s_lshl_b32 s48, s32, 11")
        e("v_lshlrev_b32 v6, 4, v0"); e("v_add_u32 v6, s48, v6")
        e("global_load_dwordx4 v[8:11], v6, s[4:5]")
        e("global_load_dwordx4 v[12:15], v6, s[4:5] offset:1024")
        e("v_and_b32 v1, 15, v0")
        e("v_lshrrev_b32 v2, 4, v0")
        e("s_barrier")
        e("v_lshrrev_b32 v6, 2, v0"); e("v_lshlrev_b32 v6, 9, v6")
        e("v_and_b32 v7, 1, v0"); e("v_lshl_add_u32 v6, v7, 8, v6")
        e("v_bfe_u32 v7, v0, 1, 1"); e("v_lshl_add_u32 v6, v7, 3, v6")
        e("s_lshl_b32 s48, s32, 5"); e(f"s_add_u32 s48, s48, {XN}"); e("v_add_u32 v6, s48, v6")
        e("s_waitcnt vmcnt(0)")
        self.stamp(1)
        self.stop(1)
        for rb, src in ((16, 8), (24, 12)):
            for i in range(4):
                e(f"v_lshlrev_b32 v{rb+2*i}, 16, v{src+i}")
                e(f"v_and_b32 v{rb+2*i+1}, 0xffff0000, v{src+i}")
        for rb, d in ((16, 32), (24, 33)):
            e(f"v_add_f32 v{d}, v{rb}, v{rb+1}")
            e(f"v_add_f32 v34, v{rb+2}, v{rb+3}")
            e(f"v_add_f32 v35, v{rb+4}, v{rb+5}")
            e(f"v_add_f32 v36, v{rb+6}, v{rb+7}")
            e(f"v_add_f32 v{d}, v{d}, v34"); e("v_add_f32 v35, v35, v36"); e(f"v_add_f32 v{d}, v{d}, v35")
        self.allreduce(["v32", "v33"], "v_add_f32", ["v34", "v35"])
        e(f"v_mul_f32 v32, {f32(1/512)}, v32"); e(f"v_mul_f32 v33, {f32(1/512)}, v33")
        for rb, m, d in ((16, 32, 36), (24, 33, 37)):
            e(f"v_sub_f32 v38, v{rb}, v{m}"); e(f"v_mul_f32 v{d}, v38, v38")
            for i in range(1, 8):
                e(f"v_sub_f32 v38, v{rb+i}, v{m}"); e(f"v_fmac_f32 v{d}, v38, v38")
        self.allreduce(["v36", "v37"], "v_add_f32", ["v34", "v35"])
        e(f"v_mul_f32 v36, {f32(1/512)}, v36"); e(f"v_mul_f32 v37, {f32(1/512)}, v37")
        for m, v in ((32, 36), (33, 37)):
            e(f"v_cvt_pk_bf16_f32 v38, v{m}, v{v}")
            e(f"v_lshlrev_b32 v{m}, 16, v38")
            e(f"v_and_b32 v{v}, 0xffff0000, v38")
            e(f"v_add_f32 v{v}, {f32(1e-5)}, v{v}")
            self.bf16r(f"v{v}", f"v{v}")
            e(f"v_sqrt_f32 v{v}, v{v}")
            self.nop(1)
            self.bf16r(f"v{v}", f"v{v}")
            e(f"v_rcp_f32 v{v}, v{v}")
            self.nop(1)
        for rb, m, v, out in ((16, 32, 36, 40), (24, 33, 37, 44)):
            for i in range(4):
                e(f"v_sub_f32 v38, v{rb+2*i}, v{m}"); e(f"v_sub_f32 v39, v{rb+2*i+1}, v{m}")
                e("v_cvt_pk_bf16_f32 v38, v38, v39")
                e("v_and_b32 v39, 0xffff0000, v38"); e("v_lshlrev_b32 v38, 16, v38")
                e(f"v_mul_f32 v38, v38, v{v}"); e(f"v_mul_f32 v39, v39, v{v}")
                e(f"v_cvt_pk_bf16_f32 v{out+i}, v38, v39")
        e("ds_write_b64 v6, v[40:41]"); e("ds_write_b64 v6, v[42:43] offset:128")
        e("ds_write_b64 v6, v[44:45] offset:16"); e("ds_write_b64 v6, v[46:47] offset:144")
        e("s_waitcnt lgkmcnt(0)")
        self.lds_inc(F_XN)
        self.stamp(2)
        e("v_lshrrev_b32 v48, 2, v0")
        e("v_and_b32 v49, 3, v0"); e("v_lshlrev_b32 v49, 3, v49")
        e("v_bfe_u32 v50, v0, 3, 2"); e("v_lshl_or_b32 v50, v50, 5, v49"); e("v_lshl_add_u32 v50, v48, 7, v50")
        e("v_and_b32 v51, 7, v48"); e("v_lshl_or_b32 v51, v51, 5, v49"); e("v_lshl_add_u32 v51, v48, 8, v51")
        e("v_and_b32 v52, 7, v0"); e("v_lshlrev_b32 v52, 4, v52"); e("v_lshl_add_u32 v52, v2, 7, v52")
        e("s_lshr_b32 s49, s29, 3")
        e("s_lshl_b32 s48, s49, 11"); e(f"s_add_u32 s48, s48, {XN}"); e("v_add_u32 v52, s48, v52")
        e("s_lshl_b32 s48, s32, 5"); e("v_xor_b32 v53, s48, v50"); e(f"v_add_u32 v53, {R_Q}, v53")
        e("s_lshl_b32 s48, s28, 5"); e("s_add_u32 s48, s48, s49"); e("s_lshl_b32 s48, s48, 11")
        e("s_and_b32 s50, s29, 7"); e("s_lshl_b32 s50, s50, 8"); e("s_add_u32 s48, s48, s50")
        e("s_lshl_b32 s50, s32, 6"); e("s_add_u32 s48, s48, s50"); e(f"s_add_u32 s48, s48, {QBUF}")
        e("v_lshlrev_b32 v54, 13, v1"); e("v_lshl_add_u32 v54, v2, 4, v54"); e("v_add_u32 v54, s48, v54")
        e("s_lshl_b32 s48, s28, 3"); e("s_add_u32 s48, s48, s30"); e("s_lshl_b32 s48, s48, 13")
        e("s_lshl_b32 s50, s32, 7"); e("s_add_u32 s48, s48, s50"); e(f"s_add_u32 s48, s48, {QBUF}")
        e("v_lshrrev_b32 v55, 2, v1"); e("v_lshlrev_b32 v55, 11, v55")
        e("v_and_b32 v56, 3, v1"); e("v_lshl_add_u32 v55, v56, 9, v55"); e("v_lshl_add_u32 v55, v2, 5, v55"); e("v_add_u32 v55, s48, v55")
        self.wait_lds_ge(F_XN, 4)
        for j in range(4):
            e(f"ds_read_b128 v[{64+4*j}:{67+4*j}], v52 offset:{j*512}")
        self.wait_lds_ge(F_LAND, 16)
        self.stamp(3)
        for j in range(4):
            e(f"ds_read_b64_tr_b16 v[{80+4*j}:{81+4*j}], v53 offset:{(32*j)*128}")
            e(f"ds_read_b64_tr_b16 v[{82+4*j}:{83+4*j}], v53 offset:{(32*j+16)*128}")
        for j in range(4):
            e(f"s_waitcnt lgkmcnt({6-2*j})")
            self.mfma(96, 80+4*j, 64+4*j, "0" if j == 0 else None)
        self.lds_inc(F_QDONE)
        self.nop(6)
        e("v_cvt_pk_bf16_f32 v100, v96, v97"); e("v_cvt_pk_bf16_f32 v102, v98, v99")
        e("s_add_u32 s34, s34, 1")
        e("v_mov_b32 v101, s34"); e("v_mov_b32 v103, s34")
        e("s_mov_b32 s58, 0x00ff00ff"); e("s_mov_b32 s59, 0x00ff00ff")
        e("s_mov_b64 exec, s[58:59]")
        e("global_store_dwordx4 v54, v[100:103], s[26:27] sc1")
        e("s_mov_b64 exec, -1")
        self.stamp(4)
        self.stop(2)
        e(f"s_add_u32 s48, s35, {self.opt.get('qtrig', 48)}")
        self.wait_lds_ge(F_LAND, "s48")
        self.poll(["global_load_dwordx4 v[64:67], v55, s[26:27] sc1", "global_load_dwordx4 v[68:71], v55, s[26:27] offset:16 sc1"],
                  ["v65", "v67", "v69", "v71"], "v72", "v73", sleep=self.opt.get("qsleep", 8))
        e("v_mov_b32 v65, v66"); e("v_mov_b32 v66, v68"); e("v_mov_b32 v67, v70")
        e("v_lshlrev_b32 v56, 4, v0"); e(f"v_add_u32 v56, {QF}, v56")
        e("s_lshl_b32 s48, s32, 10"); e("v_add_u32 v57, s48, v56")
        e("ds_write_b128 v57, v[64:67]")
        e("s_waitcnt lgkmcnt(0)")
        self.lds_inc(F_QF)
        self.stamp(5)
        self.stop(3)
        e("v_xor_b32 v58, v2, v1"); e("v_lshlrev_b32 v58, 4, v58"); e("v_lshl_add_u32 v58, v1, 8, v58")
        e("s_lshl_b32 s48, s32, 14"); e(f"s_add_u32 s48, s48, {R_K}"); e("v_add_u32 v58, s48, v58")
        e("v_xor_b32 v59, 64, v58"); e("v_xor_b32 v60, 0x80, v58"); e("v_xor_b32 v61, 0xc0, v58")
        self.wait_lds_ge(F_QF, 4)
        for j in range(4):
            e(f"ds_read_b128 v[{64+4*j}:{67+4*j}], v56 offset:{j*1024}")
        e("s_lshl_b32 s48, s32, 4"); e("s_add_u32 s48, s48, s35"); e("s_add_u32 s48, s48, 16")
        self.wait_lds_ge(F_LAND, "s48")
        self.stamp(6)
        kaddr = ["v58", "v59", "v60", "v61"]
        for T in range(4):
            for j in range(4):
                e(f"ds_read_b128 v[{16+16*(T%2)+4*j}:{19+16*(T%2)+4*j}], {kaddr[j]} offset:{T*4096}")
            if T >= 1:
                pass
            for j in range(4):
                e(f"s_waitcnt lgkmcnt({3-j})")
                self.mfma(96+4*T, 16+16*(T%2)+4*j, 64+4*j, "0" if j == 0 else None)
        self.nop(8)
        S = [f"v{96+i}" for i in range(16)]
        for sh in (4, 8):
            for r in S:
                e(f"v_add_f32_dpp {r}, {r}, {r} row_ror:{sh} row_mask:0xf bank_mask:0xf")
        c1 = 128 ** -0.5 * 1.4426950408889634
        for r in S:
            e(f"v_mul_f32 {r}, {f32(c1)}, {r}")
        e("v_max3_f32 v16, v96, v97, v98")
        for i in range(3, 15, 2):
            e(f"v_max3_f32 v16, v16, v{96+i}, v{97+i}")
        e("v_max_f32 v16, v16, v111")
        self.xg_reduce(["v16"], "v_max_f32", ["v17"])
        e("v_and_b32 v18, 3, v0"); e("v_lshlrev_b32 v18, 2, v18"); e(f"v_add_u32 v19, {FLG}, v18")
        e("s_lshl_b32 s48, s32, 4"); e("v_add_u32 v18, s48, v19")
        e(f"ds_write_b32 v18, v16 offset:{WMAX-FLG}")
        e("s_waitcnt lgkmcnt(0)")
        self.lds_inc(F_MAX)
        self.wait_lds_ge(F_MAX, 4, sleep=0)
        for w in range(4):
            e(f"ds_read_b32 v{20+w}, v19 offset:{WMAX-FLG+16*w}")
        e("s_waitcnt lgkmcnt(0)")
        e("v_max3_f32 v62, v20, v21, v22"); e("v_max_f32 v62, v62, v23")
        for r in S:
            e(f"v_sub_f32 {r}, {r}, v62")
        for r in S:
            e(f"v_exp_f32 {r}, {r}")
        self.nop(1)
        e("v_add_f32 v16, v96, v97")
        for i in range(2, 16):
            e(f"v_add_f32 v16, v16, v{96+i}")
        self.xg_reduce(["v16"], "v_add_f32", ["v17"])
        e(f"ds_write_b32 v18, v16 offset:{WSUM-FLG}")
        for h in range(2):
            for i in range(4):
                e(f"v_cvt_pk_bf16_f32 v{24+4*h+i}, v{96+8*h+2*i}, v{97+8*h+2*i}")
        e("v_and_b32 v63, 3, v0"); e("v_lshl_add_u32 v63, v2, 2, v63"); e("v_lshlrev_b32 v63, 4, v63"); e(f"v_add_u32 v63, {PB}, v63")
        e("s_lshl_b32 s48, s32, 9"); e("v_add_u32 v21, s48, v63")
        e("ds_write_b128 v21, v[24:27]"); e("ds_write_b128 v21, v[28:31] offset:256")
        e("s_waitcnt lgkmcnt(0)")
        e("s_mov_b64 exec, 1")
        e(f"ds_add_rtn_u32 v22, v3, v5 offset:{F_P-FLG}")
        e("s_waitcnt lgkmcnt(0)")
        e("s_mov_b64 exec, -1")
        e("v_readfirstlane_b32 s48, v22")
        self.stamp(7)
        e("s_lshl_b32 s51, s28, 3"); e("s_add_u32 s51, s51, s30"); e("s_lshl_b32 s51, s51, 8"); e(f"s_add_u32 s51, s51, {STBUF}")
        e("s_cmp_eq_u32 s48, 3"); e("s_cbranch_scc0 L_nostat")
        for w in range(4):
            e(f"ds_read_b32 v{20+w}, v19 offset:{WSUM-FLG+16*w}")
        e("s_waitcnt lgkmcnt(0)")
        e("v_add_f32 v20, v20, v21"); e("v_add_f32 v22, v22, v23"); e("v_add_f32 v26, v20, v22")
        e("v_mov_b32 v24, v62"); e("v_mov_b32 v25, s34"); e("v_mov_b32 v27, s34")
        e("s_lshl_b32 s48, s31, 6"); e("s_add_u32 s48, s48, s51")
        e("v_lshlrev_b32 v20, 4, v0"); e("v_add_u32 v20, s48, v20")
        e("s_mov_b64 exec, 15")
        e("global_store_dwordx4 v20, v[24:27], s[26:27] sc1")
        e("s_mov_b64 exec, -1")
        self.lab("L_nostat")
        e("v_and_b32 v57, 3, v0"); e("v_lshlrev_b32 v57, 4, v57"); e("v_lshl_add_u32 v57, v2, 6, v57"); e("v_add_u32 v57, s51, v57")
        self.wait_lds_ge(F_P, 4, sleep=0)
        for s in range(8):
            e(f"ds_read_b128 v[{64+4*s}:{67+4*s}], v63 offset:{s*256}")
        e("s_lshl_b32 s48, s32, 6"); e("v_xor_b32 v58, s48, v51"); e(f"v_add_u32 v58, {R_V}, v58"); e("v_xor_b32 v59, 32, v58")
        e("s_lshl_b32 s48, s28, 7"); e("s_lshl_b32 s50, s31, 3"); e("s_add_u32 s48, s48, s50"); e("s_add_u32 s48, s48, s30"); e("s_lshl_b32 s48, s48, 9")
        e("s_lshl_b32 s50, s32, 7"); e("s_add_u32 s48, s48, s50"); e(f"s_add_u32 s48, s48, {OBUF}")
        e("v_and_b32 v60, 3, v0"); e("v_lshlrev_b32 v60, 14, v60"); e("v_lshl_add_u32 v60, v2, 4, v60"); e("v_add_u32 v60, s48, v60")
        e("s_lshl_b32 s48, s28, 2"); e("s_add_u32 s48, s48, s49"); e("s_lshl_b32 s48, s48, 14")
        e("s_add_u32 s48, s48, s50"); e(f"s_add_u32 s48, s48, {OBUF}")
        e("v_lshlrev_b32 v61, 9, v1"); e("v_lshl_add_u32 v61, v2, 4, v61"); e("v_add_u32 v61, s48, v61")
        e("v_add_u32 v56, 0x2000, v61")
        for s in range(8):
            e(f"s_add_u32 s48, s36, {8*(s+1)}")
            self.wait_lds_ge(F_LAND, "s48", sleep=(0 if s >= 6 else 1))
            o = 32*s*256
            rb = 16 + 8*(s % 2)
            e(f"ds_read_b64_tr_b16 v[{rb}:{rb+1}], v58 offset:{o}")
            e(f"ds_read_b64_tr_b16 v[{rb+2}:{rb+3}], v58 offset:{o+4096}")
            e(f"ds_read_b64_tr_b16 v[{rb+4}:{rb+5}], v59 offset:{o}")
            e(f"ds_read_b64_tr_b16 v[{rb+6}:{rb+7}], v59 offset:{o+4096}")
            if s == 5:
                e("global_load_dwordx4 v[40:43], v57, s[26:27] sc1")
            e("s_waitcnt lgkmcnt(2)")
            self.mfma(96, rb, 64+4*s, "0" if s == 0 else None)
            e("s_waitcnt lgkmcnt(0)")
            self.mfma(100, rb+4, 64+4*s, "0" if s == 0 else None)
        self.stamp(8)
        e("s_waitcnt vmcnt(0)")
        self.tagcheck(["v41", "v43"], "v44", "v45")
        e("s_cbranch_scc1 L_statok")
        self.poll(["global_load_dwordx4 v[40:43], v57, s[26:27] sc1"], ["v41", "v43"], "v44", "v45", sleep=1)
        self.lab("L_statok")
        e("v_mov_b32 v44, v40")
        self.xg_reduce(["v44"], "v_max_f32", ["v45"])
        e("v_sub_f32 v40, v40, v44"); e("v_exp_f32 v40, v40"); e("v_sub_f32 v46, v62, v44"); e("v_exp_f32 v46, v46")
        e("v_mul_f32 v42, v42, v40")
        self.xg_reduce(["v42"], "v_add_f32", ["v45"])
        e("v_rcp_f32 v42, v42")
        self.nop(1)
        e("v_mul_f32 v46, v46, v42")
        for i in range(8):
            e(f"v_mul_f32 v{96+i}, v{96+i}, v46")
        e("v_cvt_pk_bf16_f32 v16, v96, v97"); e("v_mov_b32 v17, s34"); e("v_cvt_pk_bf16_f32 v18, v98, v99"); e("v_mov_b32 v19, s34")
        e("v_cvt_pk_bf16_f32 v20, v100, v101"); e("v_mov_b32 v21, s34"); e("v_cvt_pk_bf16_f32 v22, v102, v103"); e("v_mov_b32 v23, s34")
        e("s_mov_b32 s56, 0x000f000f"); e("s_mov_b32 s57, 0x000f000f")
        e("s_mov_b64 exec, s[56:57]")
        e("global_store_dwordx4 v60, v[16:19], s[26:27] sc1")
        e("global_store_dwordx4 v60, v[20:23], s[26:27] offset:64 sc1")
        e("s_mov_b64 exec, -1")
        self.stamp(9)
        e("s_lshl_b32 s48, s32, 12"); e(f"s_add_u32 s48, s48, {R_O}"); e("v_add_u32 v53, s48, v50")
        self.wait_lds_ge(F_LAND, "s37")
        for ct in range(4):
            if ct: e(f"v_xor_b32 v52, {ct<<5}, v53")
            a = "v53" if ct == 0 else "v52"
            e(f"ds_read_b64_tr_b16 v[{64+4*ct}:{65+4*ct}], {a}")
            e(f"ds_read_b64_tr_b16 v[{66+4*ct}:{67+4*ct}], {a} offset:2048")
        self.stamp(10)
        self.poll(["global_load_dwordx4 v[24:27], v61, s[26:27] sc1", "global_load_dwordx4 v[28:31], v61, s[26:27] offset:64 sc1",
                   "global_load_dwordx4 v[32:35], v56, s[26:27] sc1", "global_load_dwordx4 v[36:39], v56, s[26:27] offset:64 sc1"],
                  ["v25", "v27", "v29", "v31", "v33", "v35", "v37", "v39"], "v44", "v45", sleep=1)
        self.stamp(11)
        e("v_mov_b32 v25, v26"); e("v_mov_b32 v26, v28"); e("v_mov_b32 v27, v30")
        e("v_mov_b32 v33, v34"); e("v_mov_b32 v34, v36"); e("v_mov_b32 v35, v38")
        e("s_waitcnt lgkmcnt(0)")
        self.nop(1)
        for ct in range(4):
            self.mfma(96+4*ct, 64+4*ct, 24, "0")
        for ct in range(4):
            self.mfma(96+4*ct, 64+4*ct, 32)
        e("v_and_b32 v16, 7, v0"); e("v_lshl_add_u32 v16, v2, 3, v16"); e("v_lshlrev_b32 v16, 4, v16"); e(f"v_add_u32 v16, {RED}, v16")
        e("s_lshl_b32 s48, s32, 11"); e("v_add_u32 v17, s48, v16")
        e("s_lshl_b32 s48, s32, 9"); e("v_add_u32 v18, s48, v16")
        self.nop(4)
        for r in S:
            e(f"v_add_f32_dpp {r}, {r}, {r} row_ror:8 row_mask:0xf bank_mask:0xf")
        e("s_mov_b64 exec, s[58:59]")
        for ct in range(4):
            e(f"ds_write_b128 v17, v[{96+4*ct}:{99+4*ct}] offset:{ct*512}")
        e("s_mov_b64 exec, -1")
        e("s_waitcnt lgkmcnt(0)")
        self.lds_inc(F_RED)
        e("s_and_b32 s48, s29, 7"); e("s_lshl_b32 s48, s48, 2"); e("s_add_u32 s48, s48, s32"); e("s_lshl_b32 s48, s48, 5")
        e("s_lshl_b32 s50, s28, 2"); e("s_add_u32 s48, s48, s50"); e("s_add_u32 s48, s48, s49"); e("s_lshl_b32 s48, s48, 7"); e(f"s_add_u32 s48, s48, {SBUF}")
        e("v_lshlrev_b32 v19, 17, v1"); e("v_lshl_add_u32 v19, v2, 5, v19"); e("v_add_u32 v19, s48, v19")
        self.wait_lds_ge(F_RED, 4, sleep=0)
        for j in range(4):
            e(f"ds_read_b128 v[{64+4*j}:{67+4*j}], v18 offset:{j*2048}")
        e("s_waitcnt lgkmcnt(0)")
        for i in range(4):
            e(f"v_add_f32 v{64+i}, v{64+i}, v{68+i}"); e(f"v_add_f32 v{72+i}, v{72+i}, v{76+i}")
        e("v_add_f32 v24, v64, v72"); e("v_mov_b32 v25, s34"); e("v_add_f32 v26, v65, v73"); e("v_mov_b32 v27, s34")
        e("v_add_f32 v28, v66, v74"); e("v_mov_b32 v29, s34"); e("v_add_f32 v30, v67, v75"); e("v_mov_b32 v31, s34")
        e("s_mov_b64 exec, s[58:59]")
        e("global_store_dwordx4 v19, v[24:27], s[26:27] sc1")
        e("global_store_dwordx4 v19, v[28:31], s[26:27] offset:16 sc1")
        e("s_mov_b64 exec, -1")
        self.stamp(12)
        self.stamp_flush()
        e("s_endpgm")

    def fwave(self):
        e = self.e
        self.lab("L_fwave")
        e("v_and_b32 v1, 15, v0"); e("v_lshrrev_b32 v2, 4, v0")
        e("s_waitcnt lgkmcnt(0)")
        e("s_barrier")
        if self.opt.get("stop"):
            self.stamp_flush(); e("s_endpgm")
        e("v_lshrrev_b32 v48, 2, v0")
        e("v_and_b32 v49, 3, v0"); e("v_lshlrev_b32 v49, 3, v49")
        e("v_bfe_u32 v50, v0, 3, 2"); e("v_lshl_or_b32 v50, v50, 5, v49"); e("v_lshl_add_u32 v50, v48, 7, v50")
        e("v_and_b32 v51, 7, v48"); e("v_lshl_or_b32 v51, v51, 5, v49"); e("v_lshl_add_u32 v51, v48, 8, v51")
        e("s_mov_b32 s58, 0x00ff00ff"); e("s_mov_b32 s59, 0x00ff00ff")
        e("s_waitcnt lgkmcnt(0)")
        e("s_add_u32 s34, s34, 1")
        e("s_lshl_b32 s52, s28, 2"); e("s_add_u32 s52, s52, s31")
        e("s_lshl_b32 s53, s30, 10"); e("s_lshl_b32 s48, s52, 5"); e("s_add_u32 s53, s53, s48")
        e("v_and_b32 v6, 7, v0"); e("v_lshlrev_b32 v6, 2, v6"); e("v_add_u32 v6, s53, v6")
        e("global_load_dword v7, v6, s[4:5]")
        e("s_cmp_eq_u32 s33, 3"); e("s_cbranch_scc1 L_final")
        e("s_cmp_eq_u32 s33, 2"); e("s_cbranch_scc1 L_dunit")
        e("s_mul_i32 s51, s28, 7"); e("s_add_u32 s51, s51, s29"); e("s_mul_i32 s48, s33, 7"); e("s_sub_u32 s51, s51, s48")
        e("v_and_b32 v52, 7, v0"); e("v_lshlrev_b32 v52, 4, v52"); e("v_lshl_add_u32 v52, v2, 7, v52")
        e("s_and_b32 s48, s51, 1"); e("s_lshl_b32 s48, s48, 12"); e(f"s_add_u32 s48, s48, {XN}"); e("v_add_u32 v52, s48, v52")
        e(f"v_add_u32 v53, {R_GU}, v50")
        e("s_mul_i32 s48, s33, 56"); e("s_add_u32 s48, s48, s51"); e("s_lshl_b32 s48, s48, 11"); e(f"s_add_u32 s48, s48, {GUBUF}")
        e("v_lshlrev_b32 v54, 8, v1"); e("v_lshl_add_u32 v54, v2, 4, v54"); e("v_add_u32 v54, s48, v54")
        self.wait_lds_ge(F_XN, 4)
        for j in range(8):
            e(f"ds_read_b128 v[{64+4*j}:{67+4*j}], v52 offset:{j*512}")
        self.wait_lds_ge(F_LAND, "s38")
        self.stamp(1)
        for ct in range(4):
            if ct: e(f"v_xor_b32 v55, {ct<<5}, v53")
            a = "v53" if ct == 0 else "v55"
            for jh in range(2):
                for j in range(4*jh, 4*jh+4):
                    rb = 16 + 4*j
                    e(f"ds_read_b64_tr_b16 v[{rb}:{rb+1}], {a} offset:{32*j*128}")
                    e(f"ds_read_b64_tr_b16 v[{rb+2}:{rb+3}], {a} offset:{(32*j+16)*128}")
                for j in range(4*jh, 4*jh+4):
                    e(f"s_waitcnt lgkmcnt({6-2*(j%4)})")
                    self.mfma(96+4*ct, 16+4*j, 64+4*j, "0" if j == 0 else None)
        self.lds_inc(F_GUDONE)
        self.nop(6)
        e("s_mov_b64 exec, s[58:59]")
        for ct in range(4):
            rb = 16 + 4*ct
            e(f"v_cvt_pk_bf16_f32 v{rb}, v{96+4*ct}, v{97+4*ct}"); e(f"v_mov_b32 v{rb+1}, s34")
            e(f"v_cvt_pk_bf16_f32 v{rb+2}, v{98+4*ct}, v{99+4*ct}"); e(f"v_mov_b32 v{rb+3}, s34")
            e(f"global_store_dwordx4 v54, v[{rb}:{rb+3}], s[26:27] offset:{ct*64} sc1")
        e("s_mov_b64 exec, -1")
        self.stamp(2)
        e("s_branch L_final")
        self.lab("L_dunit")
        e("s_mul_i32 s51, s28, 14"); e("s_add_u32 s51, s51, s29"); e("s_sub_u32 s51, s51, 14")
        e("s_lshr_b32 s50, s51, 2")
        e("s_lshl_b32 s48, s50, 12"); e(f"s_add_u32 s48, s48, {GUBUF}")
        e("v_and_b32 v52, 7, v0"); e("v_lshlrev_b32 v52, 8, v52"); e("v_bfe_u32 v53, v0, 3, 1"); e("v_lshl_add_u32 v52, v53, 7, v52")
        e("v_lshl_add_u32 v52, v2, 4, v52"); e("v_add_u32 v52, s48, v52")
        e(f"v_add_u32 v53, {56*2048}, v52")
        loads = []
        tags = []
        for m, a in ((0, "v52"), (1, "v53")):
            for kh in range(2):
                for un in range(2):
                    rb = 16 + 16*m + 8*kh + 4*un
                    loads.append(f"global_load_dwordx4 v[{rb}:{rb+3}], {a}, s[26:27] offset:{kh*2048 + un*64} sc1")
                    tags += [f"v{rb+1}", f"v{rb+3}"]
        self.wait_lds_ge(F_LAND, "s38")
        self.poll(loads, tags, "v54", "v55", sleep=self.opt.get("dsleep", 8))
        self.stamp(1)
        for un in range(2):
            for dd in range(2):
                g0 = 16 + 4*un + 2*dd; g1 = g0 + 8; u0 = g0 + 16; u1 = g0 + 24
                for hi in range(2):
                    ex = (lambda d, s: f"v_and_b32 {d}, 0xffff0000, {s}") if hi else (lambda d, s: f"v_lshlrev_b32 {d}, 16, {s}")
                    e(ex("v56", f"v{g0}")); e(ex("v57", f"v{g1}")); e("v_add_f32 v56, v56, v57")
                    e(ex("v58", f"v{u0}")); e(ex("v57", f"v{u1}")); e("v_add_f32 v58, v58, v57")
                    e("v_cvt_pk_bf16_f32 v57, v56, v58")
                    e("v_lshlrev_b32 v56, 16, v57"); e("v_and_b32 v58, 0xffff0000, v57")
                    self.silu("v56", "v56", "v57")
                    self.bf16r("v56", "v56")
                    e(f"v_mul_f32 v{60+hi}, v56, v58")
                e(f"v_cvt_pk_bf16_f32 v{64+2*un+dd}, v60, v61")
        e(f"v_add_u32 v53, {R_D}, v51")
        e("s_and_b32 s48, s51, 3"); e("s_lshl_b32 s48, s48, 8"); e("s_add_u32 s48, s48, s50"); e("s_lshl_b32 s48, s48, 7"); e(f"s_add_u32 s48, s48, {FBUF}")
        e("v_lshlrev_b32 v54, 17, v1"); e("v_lshl_add_u32 v54, v2, 5, v54"); e("v_add_u32 v54, s48, v54")
        self.wait_lds_ge(F_LAND, "s38")
        for half in range(2):
            for c2 in range(2):
                for c4 in range(2*c2, 2*c2+2):
                    ct = 4*half + c4
                    e(f"v_xor_b32 v55, {ct<<5}, v53")
                    rb = 16 + 8*c4
                    for j in range(2):
                        e(f"ds_read_b64_tr_b16 v[{rb+4*j}:{rb+4*j+1}], v55 offset:{32*j*256}")
                        e(f"ds_read_b64_tr_b16 v[{rb+4*j+2}:{rb+4*j+3}], v55 offset:{(32*j+16)*256}")
                for c4 in range(2*c2, 2*c2+2):
                    rb = 16 + 8*c4
                    e(f"s_waitcnt lgkmcnt({6-4*(c4%2)})")
                    self.mfma(72+8*c4, rb, 64, "0")
                    e(f"s_waitcnt lgkmcnt({4-4*(c4%2)})")
                    self.mfma(76+8*c4, rb+4, 64, "0")
            self.nop(8)
            for c4 in range(4):
                for r in range(4):
                    e(f"v_add_f32_dpp v{72+8*c4+r}, v{76+8*c4+r}, v{72+8*c4+r} row_ror:8 row_mask:0xf bank_mask:0xf")
            e("s_mov_b64 exec, s[58:59]")
            for c4 in range(4):
                ct = 4*half + c4
                rb = 16 + 8*c4
                a = 72 + 8*c4
                e(f"v_mov_b32 v{rb}, v{a}"); e(f"v_mov_b32 v{rb+1}, s34"); e(f"v_mov_b32 v{rb+2}, v{a+1}"); e(f"v_mov_b32 v{rb+3}, s34")
                e(f"v_mov_b32 v{rb+4}, v{a+2}"); e(f"v_mov_b32 v{rb+5}, s34"); e(f"v_mov_b32 v{rb+6}, v{a+3}"); e(f"v_mov_b32 v{rb+7}, s34")
                e(f"v_add_u32 v55, {ct*4096}, v54")
                e(f"global_store_dwordx4 v55, v[{rb}:{rb+3}], s[26:27] sc1")
                e(f"global_store_dwordx4 v55, v[{rb+4}:{rb+7}], s[26:27] offset:16 sc1")
            e("s_mov_b64 exec, -1")
            self.nop(2)
        self.stamp(2)
        self.lab("L_final")
        self.wait_lds_ge(F_LAND, "s37")
        e("s_lshl_b32 s48, s30, 5"); e("s_add_u32 s48, s48, s52"); e("s_lshl_b32 s48, s48, 12")
        e("v_lshlrev_b32 v10, 4, v0"); e("v_add_u32 v10, s48, v10")
        e(f"v_add_u32 v11, {FBUF}, v10"); e(f"v_add_u32 v10, {SBUF}, v10")
        loads = [f"global_load_dwordx4 v[{16+4*t}:{19+4*t}], v11, s[26:27] offset:{t*1024} sc1" for t in range(3)]
        loads += ["s_mov_b32 exec_hi, 0", "global_load_dwordx4 v[28:31], v11, s[26:27] offset:3072 sc1", "s_mov_b64 exec, -1"]
        pre = ["v_mov_b32 v28, 0", "v_mov_b32 v29, s34", "v_mov_b32 v30, 0", "v_mov_b32 v31, s34"]
        self.poll(loads, [f"v{17+2*i}" for i in range(8)], "v12", "v13", sleep=4, pre=pre)
        self.stamp(3)
        e("v_add_f32 v32, v16, v20"); e("v_add_f32 v33, v18, v22"); e("v_add_f32 v34, v24, v28"); e("v_add_f32 v35, v26, v30")
        e("v_add_f32 v32, v32, v34"); e("v_add_f32 v33, v33, v35")
        self.nop(2)
        e("v_add_f32_dpp v32, v32, v32 row_ror:8 row_mask:0xf bank_mask:0xf"); e("v_add_f32_dpp v33, v33, v33 row_ror:8 row_mask:0xf bank_mask:0xf")
        self.xg_reduce(["v32", "v33"], "v_add_f32", ["v34", "v35"])
        e("v_cvt_pk_bf16_f32 v34, v32, v33"); e("v_lshlrev_b32 v32, 16, v34"); e("v_and_b32 v33, 0xffff0000, v34")
        self.silu("v32", "v32", "v34"); self.silu("v33", "v33", "v34")
        e("v_cvt_pk_bf16_f32 v34, v32, v33"); e("v_lshlrev_b32 v32, 16, v34"); e("v_and_b32 v33, 0xffff0000, v34")
        e("v_lshlrev_b32 v8, 16, v7"); e("v_and_b32 v9, 0xffff0000, v7")
        loads = [f"global_load_dwordx4 v[{16+4*t}:{19+4*t}], v10, s[26:27] offset:{t*1024} sc1" for t in range(4)]
        self.wait_lds_ge(F_RED, 4)
        self.poll(loads, [f"v{17+2*i}" for i in range(8)], "v12", "v13", sleep=1)
        self.stamp(4)
        e("v_add_f32 v36, v16, v20"); e("v_add_f32 v37, v18, v22"); e("v_add_f32 v34, v24, v28"); e("v_add_f32 v35, v26, v30")
        e("v_add_f32 v36, v36, v34"); e("v_add_f32 v37, v37, v35")
        self.nop(2)
        e("v_add_f32_dpp v36, v36, v36 row_ror:8 row_mask:0xf bank_mask:0xf"); e("v_add_f32_dpp v37, v37, v37 row_ror:8 row_mask:0xf bank_mask:0xf")
        self.xg_reduce(["v36", "v37"], "v_add_f32", ["v34", "v35"])
        e("v_cvt_pk_bf16_f32 v34, v36, v37"); e("v_lshlrev_b32 v36, 16, v34"); e("v_and_b32 v37, 0xffff0000, v34")
        e("v_mul_f32 v36, v36, v32"); e("v_mul_f32 v37, v37, v33")
        e("v_cvt_pk_bf16_f32 v34, v36, v37"); e("v_lshlrev_b32 v36, 16, v34"); e("v_and_b32 v37, 0xffff0000, v34")
        e("v_add_f32 v36, v36, v8"); e("v_add_f32 v37, v37, v9")
        e("v_cvt_pk_bf16_f32 v34, v36, v37")
        e("s_mov_b64 exec, 0xff")
        e("global_store_dword v6, v34, s[22:23]")
        e("s_cmp_lg_u32 s2, 0"); e("s_cbranch_scc1 L_noep")
        e("s_mov_b64 exec, 1")
        e("v_mov_b32 v35, s34"); e("v_mov_b32 v36, 0")
        e("global_store_dword v36, v35, s[26:27] sc1")
        self.lab("L_noep")
        e("s_mov_b64 exec, -1")
        self.stamp(5)
        self.stamp_flush()

    def build(self):
        hdr = open("recurrent_scan__sliding_block_cached__swiglu_ffn__decode.s.ref").read().split("\n")
        out = []
        for line in hdr:
            if line.startswith("; @launch"):
                out.append(f"; @launch grid=(256,1,1) block=(384,1,1) lds={LDS_BYTES}")
            elif line.startswith(";"):
                out.append(line)
            else:
                break
        out += ['.amdgcn_target "amdgcn-amd-amdhsa--gfx950"', ".text", f".globl {NAME}", ".p2align 8", f".type {NAME},@function", f"{NAME}:"]
        self.prologue()
        self.cwave()
        self.loader()
        self.fwave()
        self.lab("L_end")
        self.e("s_endpgm")
        out += self.L
        out += ['.section .rodata,"a"', ".p2align 6", f".amdhsa_kernel {NAME}",
                "  .amdhsa_next_free_vgpr 128", "  .amdhsa_next_free_sgpr 102", "  .amdhsa_accum_offset 128",
                "  .amdhsa_group_segment_fixed_size 0", "  .amdhsa_kernarg_size 96", "  .amdhsa_user_sgpr_count 2",
                "  .amdhsa_user_sgpr_kernarg_segment_ptr 1", "  .amdhsa_system_sgpr_workgroup_id_x 1", ".end_amdhsa_kernel", ""]
        return "\n".join(out)

if __name__ == "__main__":
    import argparse
    ap = argparse.ArgumentParser()
    ap.add_argument("-o", default="recurrent_scan__sliding_block_cached__swiglu_ffn__decode.s")
    ap.add_argument("--depth", type=int, default=24)
    ap.add_argument("--stamps", action="store_true")
    ap.add_argument("--opt", default="")
    a = ap.parse_args()
    opt = {}
    for kv in a.opt.split(","):
        if kv:
            k, v = kv.split("="); opt[k] = int(v)
    g = G(depth=a.depth, stamps=a.stamps, opt=opt)
    open(a.o, "w").write(g.build())
    print("wrote", a.o, len(g.L), "lines")
```

```python
import sys, struct

NAME = "recurrent_scan__sliding_block_cached__swiglu_ffn__decode_kernel"

WS_EPOCH = 0
QBUF = 0x10000
STBUF = 0x90000
OBUF = 0xA0000
GUBUF = 0x120000
SBUF = 0x200000
FBUF = 0x300000
DBG = 0x800000

R_K = 0
R_V = 65536
R_Q = 131072
MISC = 147456
XN = MISC
QF = MISC + 8192
PB = MISC + 12288
FLG = MISC + 14336
F_LAND, F_XN, F_QDONE, F_QF, F_MAX, F_P, F_GUDONE, F_RED = [FLG + 4*i for i in range(8)]
WMAX = FLG + 64
WSUM = FLG + 128
R_O = R_K
RED = R_K + 16384
R_GU = R_V + 32768
R_D = R_Q
LDS_BYTES = 163840

def f32(x):
    return "0x%08x" % struct.unpack("<I", struct.pack("<f", x))[0]

class G:
    def __init__(self, depth=24, stamps=False, spin_limit=1 << 20, opt=None):
        self.opt = opt or {}
        self.L = []
        self.depth = depth
        self.stamps = stamps
        self.uid = 0
        self.spin_limit = spin_limit
    def e(self, s):
        self.L.append("    " + s)
    def lab(self, s):
        self.L.append(s + ":")
    def newlab(self, p="L"):
        self.uid += 1
        return f"{p}_{self.uid}"
    def c(self, s):
        self.L.append("    ; " + s)
    def nop(self, n):
        while n > 0:
            k = min(n, 16)
            self.e(f"s_nop {k-1}")
            n -= k
    def stamp(self, k):
        if not self.stamps:
            return
        self.e("s_memrealtime s[90:91]")
        self.e("s_waitcnt lgkmcnt(0)")
        self.e("v_mov_b32 v120, s90")
        self.e(f"v_writelane_b32 v121, s90, {k}")
        self.e("s_memtime s[90:91]")
        self.e("s_waitcnt lgkmcnt(0)")
        self.e(f"v_writelane_b32 v121, s90, {32+k}")
    def stop(self, n):
        if self.opt.get("stop") == n:
            self.stamp_flush()
            self.e("s_endpgm")
    def stamp_flush(self):
        if not self.stamps:
            return
        self.e("s_mov_b64 exec, -1")
        self.e("global_store_dword v122, v121, s[26:27]")
        self.e("s_waitcnt vmcnt(0)")

    def wait_lds_ge(self, flag, val, vaddr="v3", vtmp="v4", stmp="s60", sleep=1):
        l0 = self.newlab("WL"); l1 = self.newlab("WD")
        self.e("s_mov_b32 s61, 0")
        self.lab(l0)
        self.e(f"ds_read_b32 {vtmp}, {vaddr} offset:{flag - FLG}")
        self.e("s_waitcnt lgkmcnt(0)")
        self.e(f"v_readfirstlane_b32 {stmp}, {vtmp}")
        self.e("s_add_u32 s61, s61, 1")
        self.e(f"s_cmp_ge_i32 {stmp}, {val}")
        self.e(f"s_cbranch_scc1 {l1}")
        if sleep:
            self.e(f"s_sleep {sleep}")
        self.e(f"s_cmp_lt_u32 s61, {self.spin_limit}")
        self.e(f"s_cbranch_scc1 {l0}")
        self.lab(l1)
    def lds_inc(self, flag, vaddr="v3", vone="v5"):
        self.e("s_mov_b64 exec, 1")
        self.e(f"ds_add_u32 {vaddr}, {vone} offset:{flag - FLG}")
        self.e("s_mov_b64 exec, -1")

    def allreduce(self, regs, op, tmp):
        for sh in (8, 4, 2, 1):
            self.nop(2 if len(regs) < 3 else 1)
            for r in regs:
                self.e(f"{op}_dpp {r}, {r}, {r} row_ror:{sh} row_mask:0xf bank_mask:0xf")
        self.xg_reduce(regs, op, tmp)
    def xg_reduce(self, regs, op, tmp):
        for sw in ("v_permlane16_swap_b32", "v_permlane32_swap_b32"):
            for r, t in zip(regs, tmp):
                self.e(f"v_mov_b32 {t}, {r}")
            self.nop(2)
            for r, t in zip(regs, tmp):
                self.e(f"{sw} {r}, {t}")
            self.nop(1)
            for r, t in zip(regs, tmp):
                self.e(f"{op} {r}, {r}, {t}")

    def tagcheck(self, tagregs, acc, t2, stag="s34"):
        first = True
        i = 0
        while i < len(tagregs):
            if first:
                self.e(f"v_xor_b32 {acc}, {stag}, {tagregs[i]}"); i += 1; first = False
            elif i + 1 < len(tagregs):
                self.e(f"v_xor_b32 {t2}, {stag}, {tagregs[i]}")
                self.e(f"v_xor_b32 {tagregs[i+1]}, {stag}, {tagregs[i+1]}")
                self.e(f"v_or3_b32 {acc}, {acc}, {t2}, {tagregs[i+1]}")
                i += 2
            else:
                self.e(f"v_xor_b32 {t2}, {stag}, {tagregs[i]}")
                self.e(f"v_or_b32 {acc}, {acc}, {t2}")
                i += 1
        self.e(f"v_cmp_ne_u32 s[62:63], 0, {acc}")
        self.e("s_cmp_eq_u64 s[62:63], 0")

    def poll(self, loads, tagregs, acc, t2, sleep=2, pre=None):
        l0 = self.newlab("PL"); l1 = self.newlab("PD")
        self.e("s_mov_b32 s61, 0")
        self.lab(l0)
        if pre:
            for p in pre: self.e(p)
        for s in loads:
            self.e(s)
        self.e("s_waitcnt vmcnt(0)")
        self.tagcheck(tagregs, acc, t2)
        self.e(f"s_cbranch_scc1 {l1}")
        self.e("s_add_u32 s61, s61, 1")
        if sleep:
            self.e(f"s_sleep {sleep}")
        self.e(f"s_cmp_lt_u32 s61, {self.spin_limit >> 3}")
        self.e(f"s_cbranch_scc1 {l0}")
        self.lab(l1)

    def mfma(self, d, a, b, c=None):
        cc = f"v[{d}:{d+3}]" if c is None else c
        self.e(f"v_mfma_f32_16x16x32_bf16 v[{d}:{d+3}], v[{a}:{a+3}], v[{b}:{b+3}], {cc}")

    def bf16r(self, dst, src, tmp=None):
        self.e(f"v_cvt_pk_bf16_f32 {dst}, {src}, {src}")
        self.e(f"v_lshlrev_b32 {dst}, 16, {dst}")

    def silu(self, dst, x, t):
        self.e(f"v_mul_f32 {t}, {f32(-1.4426950408889634)}, {x}")
        self.e(f"v_exp_f32 {t}, {t}")
        self.nop(1)
        self.e(f"v_add_f32 {t}, 1.0, {t}")
        self.e(f"v_rcp_f32 {t}, {t}")
        self.nop(1)
        self.e(f"v_mul_f32 {dst}, {x}, {t}")

    def prologue(self):
        e = self.e
        e("s_cmp_ge_u32 s2, 256")
        e("s_cbranch_scc1 L_end")
        e("s_load_dwordx16 s[4:19], s[0:1], 0")
        e("s_load_dwordx8 s[20:27], s[0:1], 64")
        e("v_lshrrev_b32 v1, 6, v0")
        e("v_and_b32 v0, 63, v0")
        e("s_and_b32 s28, s2, 7")
        e("v_readfirstlane_b32 s32, v1")
        e("s_lshr_b32 s29, s2, 3")
        e("s_lshr_b32 s30, s29, 2")
        e("s_and_b32 s31, s29, 3")
        e("s_mov_b32 s33, 3")
        e("s_cmp_lt_u32 s29, 28"); e("s_cselect_b32 s33, 2, s33")
        e("s_cmp_lt_u32 s29, 14"); e("s_cselect_b32 s33, 1, s33")
        e("s_cmp_lt_u32 s29, 7"); e("s_cselect_b32 s33, 0, s33")
        e("s_cmp_lt_u32 s33, 2")
        e("s_cselect_b32 s35, 48, 16")
        e("s_cselect_b32 s38, 48, 0x60")
        e("s_add_u32 s36, s35, 64")
        e("s_cmp_eq_u32 s33, 2")
        e("s_cselect_b32 s36, 0x60, s36")
        e("s_add_u32 s37, s36, 0x50")
        e(f"v_mov_b32 v3, {FLG}")
        e("v_mov_b32 v5, 1")
        if self.stamps:
            e("v_mov_b32 v121, 0")
            e("s_lshl_b32 s92, s2, 3"); e("s_add_u32 s92, s92, s32"); e("s_lshl_b32 s92, s92, 8"); e(f"s_add_u32 s92, s92, {DBG}")
            e("v_lshlrev_b32 v122, 2, v0"); e("v_add_u32 v122, s92, v122")
        e("s_waitcnt lgkmcnt(0)")
        e("s_load_dword s34, s[26:27], 0")
        self.stamp(0)
        e("s_cmp_eq_u32 s32, 4"); e("s_cbranch_scc1 L_loader")
        e("s_cmp_eq_u32 s32, 5"); e("s_cbranch_scc1 L_fwave")

    def seg(self, base, nrec, soff_code, step, lds, count, voffs, first=False):
        e = self.e
        D = self.depth
        e(f"s_mov_b32 s40, s{base}"); e(f"s_and_b32 s41, s{base+1}, 0xffff"); e(f"s_mov_b32 s42, {nrec}"); e("s_mov_b32 s43, 0x20000")
        for s in soff_code: e(s)
        e(f"s_mov_b32 s45, {lds}")
        e(f"s_mov_b32 s46, {count//4}")
        l0 = self.newlab("SEG")
        self.lab(l0)
        for u in range(4):
            if not first:
                e(f"s_waitcnt vmcnt({D-1})")
                e("v_mov_b32 v20, s47")
                e(f"ds_write_b32 v3, v20 offset:{F_LAND-FLG}")
            e("s_mov_b32 m0, s45")
            e("s_add_u32 s47, s47, 1")
            e(f"buffer_load_dwordx4 {voffs[u]}, s[40:43], s44 offen nt lds")
            e("s_add_u32 s45, s45, 1024")
            e(f"s_add_u32 s44, s44, {step}")
        e("s_sub_u32 s46, s46, 1")
        e("s_cmp_lg_u32 s46, 0")
        e(f"s_cbranch_scc1 {l0}")

    def loader(self):
        e = self.e
        D = self.depth
        assert D >= 17
        self.lab("L_loader")
        e("v_lshrrev_b32 v6, 4, v0")
        e("v_lshrrev_b32 v7, 3, v0")
        e("v_and_b32 v8, 1, v0"); e("v_lshlrev_b32 v8, 4, v8")
        e("v_bfe_u32 v9, v0, 1, 2"); e("v_xor_b32 v9, v9, v6"); e("v_lshl_or_b32 v9, v9, 5, v8")
        e("v_lshl_add_u32 v10, v7, 13, v9")
        e(f"s_mov_b32 s47, {-(D-1)}")
        self.seg(10, 4 << 20, ["s_lshr_b32 s44, s29, 3", "s_lshl_b32 s44, s44, 20", "s_lshl_b32 s48, s28, 10", "s_add_u32 s44, s44, s48",
                               "s_and_b32 s48, s29, 7", "s_lshl_b32 s48, s48, 7", "s_add_u32 s44, s44, s48"],
                 65536, R_Q, 16, ["v10"]*4, first=True)
        e("v_mov_b32 v20, 0")
        e("v_lshlrev_b32 v21, 2, v0"); e(f"v_add_u32 v21, {FLG}, v21")
        e("ds_write_b32 v21, v20")
        e("s_waitcnt lgkmcnt(0)")
        e("s_barrier")
        self.stamp(1)
        e("v_and_b32 v11, 15, v0"); e("v_xor_b32 v11, v11, v6"); e("v_lshlrev_b32 v11, 4, v11"); e("v_lshl_add_u32 v11, v6, 8, v11")
        e("v_xor_b32 v12, 64, v11"); e("v_xor_b32 v13, 0x80, v11"); e("v_xor_b32 v14, 0xc0, v11")
        e("v_bfe_u32 v15, v0, 1, 3"); e("v_xor_b32 v15, v15, v6"); e("v_lshl_or_b32 v15, v15, 5, v8")
        e("v_lshl_add_u32 v16, v6, 8, v15"); e("v_xor_b32 v17, 0x80, v16")
        e("v_lshl_add_u32 v18, v6, 10, v15"); e("v_xor_b32 v19, 0x80, v18")
        e("v_lshl_add_u32 v22, v7, 10, v9")
        e("s_movk_i32 s48, 3584"); e("v_mul_lo_u32 v23, v7, s48"); e("v_add_u32 v23, v23, v9")
        e("s_lshl_b32 s50, s30, 3"); e("s_add_u32 s50, s50, s28"); e("s_lshl_b32 s50, s50, 20")
        e("s_lshl_b32 s48, s31, 16"); e("s_add_u32 s50, s50, s48"); e("s_add_u32 s50, s50, 786432")
        e("s_cmp_lt_u32 s33, 2"); e("s_cbranch_scc0 L_noGU")
        e("s_mul_i32 s51, s28, 7"); e("s_add_u32 s51, s51, s29"); e("s_mul_i32 s48, s33, 7"); e("s_sub_u32 s51, s51, s48")
        e("s_cmp_eq_u32 s33, 0")
        e("s_cselect_b32 s52, s16, s18"); e("s_cselect_b32 s53, s17, s19")
        self.seg(52, 512*3584, ["s_and_b32 s44, s51, 1", f"s_mul_i32 s44, s44, {256*3584}", "s_lshr_b32 s48, s51, 1", "s_lshl_b32 s48, s48, 7", "s_add_u32 s44, s44, s48"],
                 8*3584, R_GU, 32, ["v23"]*4)
        self.lab("L_noGU")
        self.seg(6, 64 << 20, ["s_mov_b32 s44, s50"], 1024, R_K, 64, ["v11", "v12", "v13", "v14"])
        self.stamp(2)
        e("s_cmp_eq_u32 s33, 2"); e("s_cbranch_scc0 L_noD")
        if not self.opt.get("stop"): self.wait_lds_ge(F_QDONE, 4)
        e("s_mul_i32 s51, s28, 14"); e("s_add_u32 s51, s51, s29"); e("s_sub_u32 s51, s51, 14")
        self.seg(20, 1792*1024, ["s_lshr_b32 s44, s51, 2", "s_lshl_b32 s44, s44, 16", "s_and_b32 s48, s51, 3", "s_lshl_b32 s48, s48, 8", "s_add_u32 s44, s44, s48"],
                 4096, R_D, 16, ["v18", "v19", "v18", "v19"])
        self.lab("L_noD")
        self.seg(8, 64 << 20, ["s_mov_b32 s44, s50"], 1024, R_V, 32, ["v16", "v17", "v16", "v17"])
        e("s_cmp_lt_u32 s33, 2"); e("s_cbranch_scc0 L_noGUw")
        if not self.opt.get("stop"): self.wait_lds_ge(F_GUDONE, 1)
        self.lab("L_noGUw")
        self.seg(8, 64 << 20, ["s_add_u32 s44, s50, 32768"], 1024, R_V + 32768, 32, ["v16", "v17", "v16", "v17"])
        self.stamp(3)
        if not self.opt.get("stop"): self.wait_lds_ge(F_P, 4)
        self.seg(12, 4 << 20, ["s_lshl_b32 s44, s28, 2", "s_lshr_b32 s48, s29, 3", "s_add_u32 s44, s44, s48", "s_lshl_b32 s44, s44, 17",
                               "s_and_b32 s48, s29, 7", "s_lshl_b32 s48, s48, 7", "s_add_u32 s44, s44, s48"],
                 8192, R_O, 16, ["v22"]*4)
        self.stamp(4)
        for k in range(D-1, -1, -1):
            e(f"s_waitcnt vmcnt({k})")
            e(f"s_sub_u32 s48, s37, {k}")
            e("v_mov_b32 v20, s48")
            e(f"ds_write_b32 v3, v20 offset:{F_LAND-FLG}")
        self.stamp(5)
        self.stamp_flush()
        e("s_endpgm")

    def cwave(self):
        e = self.e
        e("s_lshl_b32 s48, s32, 11")
        e("v_lshlrev_b32 v6, 4, v0"); e("v_add_u32 v6, s48, v6")
        e("global_load_dwordx4 v[8:11], v6, s[4:5]")
        e("global_load_dwordx4 v[12:15], v6, s[4:5] offset:1024")
        e("v_and_b32 v1, 15, v0")
        e("v_lshrrev_b32 v2, 4, v0")
        e("s_barrier")
        e("v_lshrrev_b32 v6, 2, v0"); e("v_lshlrev_b32 v6, 9, v6")
        e("v_and_b32 v7, 1, v0"); e("v_lshl_add_u32 v6, v7, 8, v6")
        e("v_bfe_u32 v7, v0, 1, 1"); e("v_lshl_add_u32 v6, v7, 3, v6")
        e("s_lshl_b32 s48, s32, 5"); e(f"s_add_u32 s48, s48, {XN}"); e("v_add_u32 v6, s48, v6")
        e("s_waitcnt vmcnt(0)")
        self.stamp(1)
        self.stop(1)
        for rb, src in ((16, 8), (24, 12)):
            for i in range(4):
                e(f"v_lshlrev_b32 v{rb+2*i}, 16, v{src+i}")
                e(f"v_and_b32 v{rb+2*i+1}, 0xffff0000, v{src+i}")
        for rb, d in ((16, 32), (24, 33)):
            e(f"v_add_f32 v{d}, v{rb}, v{rb+1}")
            e(f"v_add_f32 v34, v{rb+2}, v{rb+3}")
            e(f"v_add_f32 v35, v{rb+4}, v{rb+5}")
            e(f"v_add_f32 v36, v{rb+6}, v{rb+7}")
            e(f"v_add_f32 v{d}, v{d}, v34"); e("v_add_f32 v35, v35, v36"); e(f"v_add_f32 v{d}, v{d}, v35")
        self.allreduce(["v32", "v33"], "v_add_f32", ["v34", "v35"])
        e(f"v_mul_f32 v32, {f32(1/512)}, v32"); e(f"v_mul_f32 v33, {f32(1/512)}, v33")
        for rb, m, d in ((16, 32, 36), (24, 33, 37)):
            e(f"v_sub_f32 v38, v{rb}, v{m}"); e(f"v_mul_f32 v{d}, v38, v38")
            for i in range(1, 8):
                e(f"v_sub_f32 v38, v{rb+i}, v{m}"); e(f"v_fmac_f32 v{d}, v38, v38")
        self.allreduce(["v36", "v37"], "v_add_f32", ["v34", "v35"])
        e(f"v_mul_f32 v36, {f32(1/512)}, v36"); e(f"v_mul_f32 v37, {f32(1/512)}, v37")
        for m, v in ((32, 36), (33, 37)):
            e(f"v_cvt_pk_bf16_f32 v38, v{m}, v{v}")
            e(f"v_lshlrev_b32 v{m}, 16, v38")
            e(f"v_and_b32 v{v}, 0xffff0000, v38")
            e(f"v_add_f32 v{v}, {f32(1e-5)}, v{v}")
            self.bf16r(f"v{v}", f"v{v}")
            e(f"v_sqrt_f32 v{v}, v{v}")
            self.nop(1)
            self.bf16r(f"v{v}", f"v{v}")
            e(f"v_rcp_f32 v{v}, v{v}")
            self.nop(1)
        for rb, m, v, out in ((16, 32, 36, 40), (24, 33, 37, 44)):
            for i in range(4):
                e(f"v_sub_f32 v38, v{rb+2*i}, v{m}"); e(f"v_sub_f32 v39, v{rb+2*i+1}, v{m}")
                e("v_cvt_pk_bf16_f32 v38, v38, v39")
                e("v_and_b32 v39, 0xffff0000, v38"); e("v_lshlrev_b32 v38, 16, v38")
                e(f"v_mul_f32 v38, v38, v{v}"); e(f"v_mul_f32 v39, v39, v{v}")
                e(f"v_cvt_pk_bf16_f32 v{out+i}, v38, v39")
        e("ds_write_b64 v6, v[40:41]"); e("ds_write_b64 v6, v[42:43] offset:128")
        e("ds_write_b64 v6, v[44:45] offset:16"); e("ds_write_b64 v6, v[46:47] offset:144")
        e("s_waitcnt lgkmcnt(0)")
        self.lds_inc(F_XN)
        self.stamp(2)
        e("v_lshrrev_b32 v48, 2, v0")
        e("v_and_b32 v49, 3, v0"); e("v_lshlrev_b32 v49, 3, v49")
        e("v_bfe_u32 v50, v0, 3, 2"); e("v_lshl_or_b32 v50, v50, 5, v49"); e("v_lshl_add_u32 v50, v48, 7, v50")
        e("v_and_b32 v51, 7, v48"); e("v_lshl_or_b32 v51, v51, 5, v49"); e("v_lshl_add_u32 v51, v48, 8, v51")
        e("v_and_b32 v52, 7, v0"); e("v_lshlrev_b32 v52, 4, v52"); e("v_lshl_add_u32 v52, v2, 7, v52")
        e("s_lshr_b32 s49, s29, 3")
        e("s_lshl_b32 s48, s49, 11"); e(f"s_add_u32 s48, s48, {XN}"); e("v_add_u32 v52, s48, v52")
        e("s_lshl_b32 s48, s32, 5"); e("v_xor_b32 v53, s48, v50"); e(f"v_add_u32 v53, {R_Q}, v53")
        e("s_lshl_b32 s48, s28, 5"); e("s_add_u32 s48, s48, s49"); e("s_lshl_b32 s48, s48, 11")
        e("s_and_b32 s50, s29, 7"); e("s_lshl_b32 s50, s50, 8"); e("s_add_u32 s48, s48, s50")
        e("s_lshl_b32 s50, s32, 6"); e("s_add_u32 s48, s48, s50"); e(f"s_add_u32 s48, s48, {QBUF}")
        e("v_lshlrev_b32 v54, 13, v1"); e("v_lshl_add_u32 v54, v2, 4, v54"); e("v_add_u32 v54, s48, v54")
        e("s_lshl_b32 s48, s28, 3"); e("s_add_u32 s48, s48, s30"); e("s_lshl_b32 s48, s48, 13")
        e("s_lshl_b32 s50, s32, 7"); e("s_add_u32 s48, s48, s50"); e(f"s_add_u32 s48, s48, {QBUF}")
        e("v_lshrrev_b32 v55, 2, v1"); e("v_lshlrev_b32 v55, 11, v55")
        e("v_and_b32 v56, 3, v1"); e("v_lshl_add_u32 v55, v56, 9, v55"); e("v_lshl_add_u32 v55, v2, 5, v55"); e("v_add_u32 v55, s48, v55")
        self.wait_lds_ge(F_XN, 4)
        for j in range(4):
            e(f"ds_read_b128 v[{64+4*j}:{67+4*j}], v52 offset:{j*512}")
        self.wait_lds_ge(F_LAND, 16)
        self.stamp(3)
        for j in range(4):
            e(f"ds_read_b64_tr_b16 v[{80+4*j}:{81+4*j}], v53 offset:{(32*j)*128}")
            e(f"ds_read_b64_tr_b16 v[{82+4*j}:{83+4*j}], v53 offset:{(32*j+16)*128}")
        for j in range(4):
            e(f"s_waitcnt lgkmcnt({6-2*j})")
            self.mfma(96, 80+4*j, 64+4*j, "0" if j == 0 else None)
        self.lds_inc(F_QDONE)
        self.nop(6)
        e("v_cvt_pk_bf16_f32 v100, v96, v97"); e("v_cvt_pk_bf16_f32 v102, v98, v99")
        e("s_add_u32 s34, s34, 1")
        e("v_mov_b32 v101, s34"); e("v_mov_b32 v103, s34")
        e("s_mov_b32 s58, 0x00ff00ff"); e("s_mov_b32 s59, 0x00ff00ff")
        e("s_mov_b64 exec, s[58:59]")
        e("global_store_dwordx4 v54, v[100:103], s[26:27] sc1")
        e("s_mov_b64 exec, -1")
        self.stamp(4)
        self.stop(2)
        e(f"s_add_u32 s48, s35, {self.opt.get('qtrig', 48)}")
        self.wait_lds_ge(F_LAND, "s48")
        self.poll(["global_load_dwordx4 v[64:67], v55, s[26:27] sc1", "global_load_dwordx4 v[68:71], v55, s[26:27] offset:16 sc1"],
                  ["v65", "v67", "v69", "v71"], "v72", "v73", sleep=self.opt.get("qsleep", 8))
        e("v_mov_b32 v65, v66"); e("v_mov_b32 v66, v68"); e("v_mov_b32 v67, v70")
        e("v_lshlrev_b32 v56, 4, v0"); e(f"v_add_u32 v56, {QF}, v56")
        e("s_lshl_b32 s48, s32, 10"); e("v_add_u32 v57, s48, v56")
        e("ds_write_b128 v57, v[64:67]")
        e("s_waitcnt lgkmcnt(0)")
        self.lds_inc(F_QF)
        self.stamp(5)
        self.stop(3)
        e("v_xor_b32 v58, v2, v1"); e("v_lshlrev_b32 v58, 4, v58"); e("v_lshl_add_u32 v58, v1, 8, v58")
        e("s_lshl_b32 s48, s32, 14"); e(f"s_add_u32 s48, s48, {R_K}"); e("v_add_u32 v58, s48, v58")
        e("v_xor_b32 v59, 64, v58"); e("v_xor_b32 v60, 0x80, v58"); e("v_xor_b32 v61, 0xc0, v58")
        self.wait_lds_ge(F_QF, 4)
        for j in range(4):
            e(f"ds_read_b128 v[{64+4*j}:{67+4*j}], v56 offset:{j*1024}")
        e("s_lshl_b32 s48, s32, 4"); e("s_add_u32 s48, s48, s35"); e("s_add_u32 s48, s48, 16")
        self.wait_lds_ge(F_LAND, "s48")
        self.stamp(6)
        kaddr = ["v58", "v59", "v60", "v61"]
        for T in range(4):
            for j in range(4):
                e(f"ds_read_b128 v[{16+16*(T%2)+4*j}:{19+16*(T%2)+4*j}], {kaddr[j]} offset:{T*4096}")
            if T >= 1:
                pass
            for j in range(4):
                e(f"s_waitcnt lgkmcnt({3-j})")
                self.mfma(96+4*T, 16+16*(T%2)+4*j, 64+4*j, "0" if j == 0 else None)
        self.nop(8)
        S = [f"v{96+i}" for i in range(16)]
        for sh in (4, 8):
            for r in S:
                e(f"v_add_f32_dpp {r}, {r}, {r} row_ror:{sh} row_mask:0xf bank_mask:0xf")
        c1 = 128 ** -0.5 * 1.4426950408889634
        for r in S:
            e(f"v_mul_f32 {r}, {f32(c1)}, {r}")
        e("v_max3_f32 v16, v96, v97, v98")
        for i in range(3, 15, 2):
            e(f"v_max3_f32 v16, v16, v{96+i}, v{97+i}")
        e("v_max_f32 v16, v16, v111")
        self.xg_reduce(["v16"], "v_max_f32", ["v17"])
        e("v_and_b32 v18, 3, v0"); e("v_lshlrev_b32 v18, 2, v18"); e(f"v_add_u32 v19, {FLG}, v18")
        e("s_lshl_b32 s48, s32, 4"); e("v_add_u32 v18, s48, v19")
        e(f"ds_write_b32 v18, v16 offset:{WMAX-FLG}")
        e("s_waitcnt lgkmcnt(0)")
        self.lds_inc(F_MAX)
        self.wait_lds_ge(F_MAX, 4, sleep=0)
        for w in range(4):
            e(f"ds_read_b32 v{20+w}, v19 offset:{WMAX-FLG+16*w}")
        e("s_waitcnt lgkmcnt(0)")
        e("v_max3_f32 v62, v20, v21, v22"); e("v_max_f32 v62, v62, v23")
        for r in S:
            e(f"v_sub_f32 {r}, {r}, v62")
        for r in S:
            e(f"v_exp_f32 {r}, {r}")
        self.nop(1)
        e("v_add_f32 v16, v96, v97")
        for i in range(2, 16):
            e(f"v_add_f32 v16, v16, v{96+i}")
        self.xg_reduce(["v16"], "v_add_f32", ["v17"])
        e(f"ds_write_b32 v18, v16 offset:{WSUM-FLG}")
        for h in range(2):
            for i in range(4):
                e(f"v_cvt_pk_bf16_f32 v{24+4*h+i}, v{96+8*h+2*i}, v{97+8*h+2*i}")
        e("v_and_b32 v63, 3, v0"); e("v_lshl_add_u32 v63, v2, 2, v63"); e("v_lshlrev_b32 v63, 4, v63"); e(f"v_add_u32 v63, {PB}, v63")
        e("s_lshl_b32 s48, s32, 9"); e("v_add_u32 v21, s48, v63")
        e("ds_write_b128 v21, v[24:27]"); e("ds_write_b128 v21, v[28:31] offset:256")
        e("s_waitcnt lgkmcnt(0)")
        e("s_mov_b64 exec, 1")
        e(f"ds_add_rtn_u32 v22, v3, v5 offset:{F_P-FLG}")
        e("s_waitcnt lgkmcnt(0)")
        e("s_mov_b64 exec, -1")
        e("v_readfirstlane_b32 s48, v22")
        self.stamp(7)
        e("s_lshl_b32 s51, s28, 3"); e("s_add_u32 s51, s51, s30"); e("s_lshl_b32 s51, s51, 8"); e(f"s_add_u32 s51, s51, {STBUF}")
        e("s_cmp_eq_u32 s48, 3"); e("s_cbranch_scc0 L_nostat")
        for w in range(4):
            e(f"ds_read_b32 v{20+w}, v19 offset:{WSUM-FLG+16*w}")
        e("s_waitcnt lgkmcnt(0)")
        e("v_add_f32 v20, v20, v21"); e("v_add_f32 v22, v22, v23"); e("v_add_f32 v26, v20, v22")
        e("v_mov_b32 v24, v62"); e("v_mov_b32 v25, s34"); e("v_mov_b32 v27, s34")
        e("s_lshl_b32 s48, s31, 6"); e("s_add_u32 s48, s48, s51")
        e("v_lshlrev_b32 v20, 4, v0"); e("v_add_u32 v20, s48, v20")
        e("s_mov_b64 exec, 15")
        e("global_store_dwordx4 v20, v[24:27], s[26:27] sc1")
        e("s_mov_b64 exec, -1")
        self.lab("L_nostat")
        e("v_and_b32 v57, 3, v0"); e("v_lshlrev_b32 v57, 4, v57"); e("v_lshl_add_u32 v57, v2, 6, v57"); e("v_add_u32 v57, s51, v57")
        self.wait_lds_ge(F_P, 4, sleep=0)
        for s in range(8):
            e(f"ds_read_b128 v[{64+4*s}:{67+4*s}], v63 offset:{s*256}")
        e("s_lshl_b32 s48, s32, 6"); e("v_xor_b32 v58, s48, v51"); e(f"v_add_u32 v58, {R_V}, v58"); e("v_xor_b32 v59, 32, v58")
        e("s_lshl_b32 s48, s28, 7"); e("s_lshl_b32 s50, s31, 3"); e("s_add_u32 s48, s48, s50"); e("s_add_u32 s48, s48, s30"); e("s_lshl_b32 s48, s48, 9")
        e("s_lshl_b32 s50, s32, 7"); e("s_add_u32 s48, s48, s50"); e(f"s_add_u32 s48, s48, {OBUF}")
        e("v_and_b32 v60, 3, v0"); e("v_lshlrev_b32 v60, 14, v60"); e("v_lshl_add_u32 v60, v2, 4, v60"); e("v_add_u32 v60, s48, v60")
        e("s_lshl_b32 s48, s28, 2"); e("s_add_u32 s48, s48, s49"); e("s_lshl_b32 s48, s48, 14")
        e("s_add_u32 s48, s48, s50"); e(f"s_add_u32 s48, s48, {OBUF}")
        e("v_lshlrev_b32 v61, 9, v1"); e("v_lshl_add_u32 v61, v2, 4, v61"); e("v_add_u32 v61, s48, v61")
        e("v_add_u32 v56, 0x2000, v61")
        for s in range(8):
            e(f"s_add_u32 s48, s36, {8*(s+1)}")
            self.wait_lds_ge(F_LAND, "s48", sleep=(0 if s >= 6 else 1))
            o = 32*s*256
            rb = 16 + 8*(s % 2)
            e(f"ds_read_b64_tr_b16 v[{rb}:{rb+1}], v58 offset:{o}")
            e(f"ds_read_b64_tr_b16 v[{rb+2}:{rb+3}], v58 offset:{o+4096}")
            e(f"ds_read_b64_tr_b16 v[{rb+4}:{rb+5}], v59 offset:{o}")
            e(f"ds_read_b64_tr_b16 v[{rb+6}:{rb+7}], v59 offset:{o+4096}")
            if s == 5:
                e("global_load_dwordx4 v[40:43], v57, s[26:27] sc1")
            e("s_waitcnt lgkmcnt(2)")
            self.mfma(96, rb, 64+4*s, "0" if s == 0 else None)
            e("s_waitcnt lgkmcnt(0)")
            self.mfma(100, rb+4, 64+4*s, "0" if s == 0 else None)
        self.stamp(8)
        e("s_waitcnt vmcnt(0)")
        self.tagcheck(["v41", "v43"], "v44", "v45")
        e("s_cbranch_scc1 L_statok")
        self.poll(["global_load_dwordx4 v[40:43], v57, s[26:27] sc1"], ["v41", "v43"], "v44", "v45", sleep=1)
        self.lab("L_statok")
        e("v_mov_b32 v44, v40")
        self.xg_reduce(["v44"], "v_max_f32", ["v45"])
        e("v_sub_f32 v40, v40, v44"); e("v_exp_f32 v40, v40"); e("v_sub_f32 v46, v62, v44"); e("v_exp_f32 v46, v46")
        e("v_mul_f32 v42, v42, v40")
        self.xg_reduce(["v42"], "v_add_f32", ["v45"])
        e("v_rcp_f32 v42, v42")
        self.nop(1)
        e("v_mul_f32 v46, v46, v42")
        for i in range(8):
            e(f"v_mul_f32 v{96+i}, v{96+i}, v46")
        e("v_cvt_pk_bf16_f32 v16, v96, v97"); e("v_mov_b32 v17, s34"); e("v_cvt_pk_bf16_f32 v18, v98, v99"); e("v_mov_b32 v19, s34")
        e("v_cvt_pk_bf16_f32 v20, v100, v101"); e("v_mov_b32 v21, s34"); e("v_cvt_pk_bf16_f32 v22, v102, v103"); e("v_mov_b32 v23, s34")
        e("s_mov_b32 s56, 0x000f000f"); e("s_mov_b32 s57, 0x000f000f")
        e("s_mov_b64 exec, s[56:57]")
        e("global_store_dwordx4 v60, v[16:19], s[26:27] sc1")
        e("global_store_dwordx4 v60, v[20:23], s[26:27] offset:64 sc1")
        e("s_mov_b64 exec, -1")
        self.stamp(9)
        e("s_lshl_b32 s48, s32, 12"); e(f"s_add_u32 s48, s48, {R_O}"); e("v_add_u32 v53, s48, v50")
        self.wait_lds_ge(F_LAND, "s37")
        for ct in range(4):
            if ct: e(f"v_xor_b32 v52, {ct<<5}, v53")
            a = "v53" if ct == 0 else "v52"
            e(f"ds_read_b64_tr_b16 v[{64+4*ct}:{65+4*ct}], {a}")
            e(f"ds_read_b64_tr_b16 v[{66+4*ct}:{67+4*ct}], {a} offset:2048")
        self.stamp(10)
        self.poll(["global_load_dwordx4 v[24:27], v61, s[26:27] sc1", "global_load_dwordx4 v[28:31], v61, s[26:27] offset:64 sc1",
                   "global_load_dwordx4 v[32:35], v56, s[26:27] sc1", "global_load_dwordx4 v[36:39], v56, s[26:27] offset:64 sc1"],
                  ["v25", "v27", "v29", "v31", "v33", "v35", "v37", "v39"], "v44", "v45", sleep=1)
        self.stamp(11)
        e("v_mov_b32 v25, v26"); e("v_mov_b32 v26, v28"); e("v_mov_b32 v27, v30")
        e("v_mov_b32 v33, v34"); e("v_mov_b32 v34, v36"); e("v_mov_b32 v35, v38")
        e("s_waitcnt lgkmcnt(0)")
        self.nop(1)
        for ct in range(4):
            self.mfma(96+4*ct, 64+4*ct, 24, "0")
        for ct in range(4):
            self.mfma(96+4*ct, 64+4*ct, 32)
        e("v_and_b32 v16, 7, v0"); e("v_lshl_add_u32 v16, v2, 3, v16"); e("v_lshlrev_b32 v16, 4, v16"); e(f"v_add_u32 v16, {RED}, v16")
        e("s_lshl_b32 s48, s32, 11"); e("v_add_u32 v17, s48, v16")
        e("s_lshl_b32 s48, s32, 9"); e("v_add_u32 v18, s48, v16")
        self.nop(4)
        for r in S:
            e(f"v_add_f32_dpp {r}, {r}, {r} row_ror:8 row_mask:0xf bank_mask:0xf")
        e("s_mov_b64 exec, s[58:59]")
        for ct in range(4):
            e(f"ds_write_b128 v17, v[{96+4*ct}:{99+4*ct}] offset:{ct*512}")
        e("s_mov_b64 exec, -1")
        e("s_waitcnt lgkmcnt(0)")
        self.lds_inc(F_RED)
        e("s_and_b32 s48, s29, 7"); e("s_lshl_b32 s48, s48, 2"); e("s_add_u32 s48, s48, s32"); e("s_lshl_b32 s48, s48, 5")
        e("s_lshl_b32 s50, s28, 2"); e("s_add_u32 s48, s48, s50"); e("s_add_u32 s48, s48, s49"); e("s_lshl_b32 s48, s48, 7"); e(f"s_add_u32 s48, s48, {SBUF}")
        e("v_lshlrev_b32 v19, 17, v1"); e("v_lshl_add_u32 v19, v2, 5, v19"); e("v_add_u32 v19, s48, v19")
        self.wait_lds_ge(F_RED, 4, sleep=0)
        for j in range(4):
            e(f"ds_read_b128 v[{64+4*j}:{67+4*j}], v18 offset:{j*2048}")
        e("s_waitcnt lgkmcnt(0)")
        for i in range(4):
            e(f"v_add_f32 v{64+i}, v{64+i}, v{68+i}"); e(f"v_add_f32 v{72+i}, v{72+i}, v{76+i}")
        e("v_add_f32 v24, v64, v72"); e("v_mov_b32 v25, s34"); e("v_add_f32 v26, v65, v73"); e("v_mov_b32 v27, s34")
        e("v_add_f32 v28, v66, v74"); e("v_mov_b32 v29, s34"); e("v_add_f32 v30, v67, v75"); e("v_mov_b32 v31, s34")
        e("s_mov_b64 exec, s[58:59]")
        e("global_store_dwordx4 v19, v[24:27], s[26:27] sc1")
        e("global_store_dwordx4 v19, v[28:31], s[26:27] offset:16 sc1")
        e("s_mov_b64 exec, -1")
        self.stamp(12)
        self.stamp_flush()
        e("s_endpgm")

    def fwave(self):
        e = self.e
        self.lab("L_fwave")
        if self.opt.get("dbg"):
            e("s_memrealtime s[80:81]"); e("s_memtime s[82:83]")
        e("v_and_b32 v1, 15, v0"); e("v_lshrrev_b32 v2, 4, v0")
        e("s_waitcnt lgkmcnt(0)")
        e("s_barrier")
        if self.opt.get("stop"):
            self.stamp_flush(); e("s_endpgm")
        e("v_lshrrev_b32 v48, 2, v0")
        e("v_and_b32 v49, 3, v0"); e("v_lshlrev_b32 v49, 3, v49")
        e("v_bfe_u32 v50, v0, 3, 2"); e("v_lshl_or_b32 v50, v50, 5, v49"); e("v_lshl_add_u32 v50, v48, 7, v50")
        e("v_and_b32 v51, 7, v48"); e("v_lshl_or_b32 v51, v51, 5, v49"); e("v_lshl_add_u32 v51, v48, 8, v51")
        e("s_mov_b32 s58, 0x00ff00ff"); e("s_mov_b32 s59, 0x00ff00ff")
        e("s_waitcnt lgkmcnt(0)")
        e("s_add_u32 s34, s34, 1")
        e("s_lshl_b32 s52, s28, 2"); e("s_add_u32 s52, s52, s31")
        e("s_lshl_b32 s53, s30, 10"); e("s_lshl_b32 s48, s52, 5"); e("s_add_u32 s53, s53, s48")
        e("v_and_b32 v6, 7, v0"); e("v_lshlrev_b32 v6, 2, v6"); e("v_add_u32 v6, s53, v6")
        e("global_load_dword v7, v6, s[4:5]")
        e("s_cmp_eq_u32 s33, 3"); e("s_cbranch_scc1 L_final")
        e("s_cmp_eq_u32 s33, 2"); e("s_cbranch_scc1 L_dunit")
        e("s_mul_i32 s51, s28, 7"); e("s_add_u32 s51, s51, s29"); e("s_mul_i32 s48, s33, 7"); e("s_sub_u32 s51, s51, s48")
        e("v_and_b32 v52, 7, v0"); e("v_lshlrev_b32 v52, 4, v52"); e("v_lshl_add_u32 v52, v2, 7, v52")
        e("s_and_b32 s48, s51, 1"); e("s_lshl_b32 s48, s48, 12"); e(f"s_add_u32 s48, s48, {XN}"); e("v_add_u32 v52, s48, v52")
        e(f"v_add_u32 v53, {R_GU}, v50")
        e("s_mul_i32 s48, s33, 56"); e("s_add_u32 s48, s48, s51"); e("s_lshl_b32 s48, s48, 11"); e(f"s_add_u32 s48, s48, {GUBUF}")
        e("v_lshlrev_b32 v54, 8, v1"); e("v_lshl_add_u32 v54, v2, 4, v54"); e("v_add_u32 v54, s48, v54")
        self.wait_lds_ge(F_XN, 4)
        for j in range(8):
            e(f"ds_read_b128 v[{64+4*j}:{67+4*j}], v52 offset:{j*512}")
        self.wait_lds_ge(F_LAND, "s38")
        self.stamp(1)
        for ct in range(4):
            if ct: e(f"v_xor_b32 v55, {ct<<5}, v53")
            a = "v53" if ct == 0 else "v55"
            for jh in range(2):
                for j in range(4*jh, 4*jh+4):
                    rb = 16 + 4*j
                    e(f"ds_read_b64_tr_b16 v[{rb}:{rb+1}], {a} offset:{32*j*128}")
                    e(f"ds_read_b64_tr_b16 v[{rb+2}:{rb+3}], {a} offset:{(32*j+16)*128}")
                for j in range(4*jh, 4*jh+4):
                    e(f"s_waitcnt lgkmcnt({6-2*(j%4)})")
                    self.mfma(96+4*ct, 16+4*j, 64+4*j, "0" if j == 0 else None)
        self.lds_inc(F_GUDONE)
        self.nop(6)
        e("s_mov_b64 exec, s[58:59]")
        for ct in range(4):
            rb = 16 + 4*ct
            e(f"v_cvt_pk_bf16_f32 v{rb}, v{96+4*ct}, v{97+4*ct}"); e(f"v_mov_b32 v{rb+1}, s34")
            e(f"v_cvt_pk_bf16_f32 v{rb+2}, v{98+4*ct}, v{99+4*ct}"); e(f"v_mov_b32 v{rb+3}, s34")
            e(f"global_store_dwordx4 v54, v[{rb}:{rb+3}], s[26:27] offset:{ct*64} sc1")
        e("s_mov_b64 exec, -1")
        self.stamp(2)
        e("s_branch L_final")
        self.lab("L_dunit")
        e("s_mul_i32 s51, s28, 14"); e("s_add_u32 s51, s51, s29"); e("s_sub_u32 s51, s51, 14")
        e("s_lshr_b32 s50, s51, 2")
        e("s_lshl_b32 s48, s50, 12"); e(f"s_add_u32 s48, s48, {GUBUF}")
        e("v_and_b32 v52, 7, v0"); e("v_lshlrev_b32 v52, 8, v52"); e("v_bfe_u32 v53, v0, 3, 1"); e("v_lshl_add_u32 v52, v53, 7, v52")
        e("v_lshl_add_u32 v52, v2, 4, v52"); e("v_add_u32 v52, s48, v52")
        e(f"v_add_u32 v53, {56*2048}, v52")
        loads = []
        tags = []
        for m, a in ((0, "v52"), (1, "v53")):
            for kh in range(2):
                for un in range(2):
                    rb = 16 + 16*m + 8*kh + 4*un
                    loads.append(f"global_load_dwordx4 v[{rb}:{rb+3}], {a}, s[26:27] offset:{kh*2048 + un*64} sc1")
                    tags += [f"v{rb+1}", f"v{rb+3}"]
        self.wait_lds_ge(F_LAND, "s38")
        self.poll(loads, tags, "v54", "v55", sleep=self.opt.get("dsleep", 8))
        self.stamp(1)
        for un in range(2):
            for dd in range(2):
                g0 = 16 + 4*un + 2*dd; g1 = g0 + 8; u0 = g0 + 16; u1 = g0 + 24
                for hi in range(2):
                    ex = (lambda d, s: f"v_and_b32 {d}, 0xffff0000, {s}") if hi else (lambda d, s: f"v_lshlrev_b32 {d}, 16, {s}")
                    e(ex("v56", f"v{g0}")); e(ex("v57", f"v{g1}")); e("v_add_f32 v56, v56, v57")
                    e(ex("v58", f"v{u0}")); e(ex("v57", f"v{u1}")); e("v_add_f32 v58, v58, v57")
                    e("v_cvt_pk_bf16_f32 v57, v56, v58")
                    e("v_lshlrev_b32 v56, 16, v57"); e("v_and_b32 v58, 0xffff0000, v57")
                    self.silu("v56", "v56", "v57")
                    self.bf16r("v56", "v56")
                    e(f"v_mul_f32 v{60+hi}, v56, v58")
                e(f"v_cvt_pk_bf16_f32 v{64+2*un+dd}, v60, v61")
        e(f"v_add_u32 v53, {R_D}, v51")
        e("s_and_b32 s48, s51, 3"); e("s_lshl_b32 s48, s48, 8"); e("s_add_u32 s48, s48, s50"); e("s_lshl_b32 s48, s48, 7"); e(f"s_add_u32 s48, s48, {FBUF}")
        e("v_lshlrev_b32 v54, 17, v1"); e("v_lshl_add_u32 v54, v2, 5, v54"); e("v_add_u32 v54, s48, v54")
        self.wait_lds_ge(F_LAND, "s38")
        for half in range(2):
            for c2 in range(2):
                for c4 in range(2*c2, 2*c2+2):
                    ct = 4*half + c4
                    e(f"v_xor_b32 v55, {ct<<5}, v53")
                    rb = 16 + 8*c4
                    for j in range(2):
                        e(f"ds_read_b64_tr_b16 v[{rb+4*j}:{rb+4*j+1}], v55 offset:{32*j*256}")
                        e(f"ds_read_b64_tr_b16 v[{rb+4*j+2}:{rb+4*j+3}], v55 offset:{(32*j+16)*256}")
                for c4 in range(2*c2, 2*c2+2):
                    rb = 16 + 8*c4
                    e(f"s_waitcnt lgkmcnt({6-4*(c4%2)})")
                    self.mfma(72+8*c4, rb, 64, "0")
                    e(f"s_waitcnt lgkmcnt({4-4*(c4%2)})")
                    self.mfma(76+8*c4, rb+4, 64, "0")
            self.nop(8)
            for c4 in range(4):
                for r in range(4):
                    e(f"v_add_f32_dpp v{72+8*c4+r}, v{76+8*c4+r}, v{72+8*c4+r} row_ror:8 row_mask:0xf bank_mask:0xf")
            e("s_mov_b64 exec, s[58:59]")
            for c4 in range(4):
                ct = 4*half + c4
                rb = 16 + 8*c4
                a = 72 + 8*c4
                e(f"v_mov_b32 v{rb}, v{a}"); e(f"v_mov_b32 v{rb+1}, s34"); e(f"v_mov_b32 v{rb+2}, v{a+1}"); e(f"v_mov_b32 v{rb+3}, s34")
                e(f"v_mov_b32 v{rb+4}, v{a+2}"); e(f"v_mov_b32 v{rb+5}, s34"); e(f"v_mov_b32 v{rb+6}, v{a+3}"); e(f"v_mov_b32 v{rb+7}, s34")
                e(f"v_add_u32 v55, {ct*4096}, v54")
                e(f"global_store_dwordx4 v55, v[{rb}:{rb+3}], s[26:27] sc1")
                e(f"global_store_dwordx4 v55, v[{rb+4}:{rb+7}], s[26:27] offset:16 sc1")
            e("s_mov_b64 exec, -1")
            self.nop(2)
        self.stamp(2)
        self.lab("L_final")
        self.wait_lds_ge(F_LAND, "s37")
        e("s_lshl_b32 s48, s30, 5"); e("s_add_u32 s48, s48, s52"); e("s_lshl_b32 s48, s48, 12")
        e("v_lshlrev_b32 v10, 4, v0"); e("v_add_u32 v10, s48, v10")
        e(f"v_add_u32 v11, {FBUF}, v10"); e(f"v_add_u32 v10, {SBUF}, v10")
        loads = [f"global_load_dwordx4 v[{16+4*t}:{19+4*t}], v11, s[26:27] offset:{t*1024} sc1" for t in range(3)]
        loads += ["s_mov_b32 exec_hi, 0", "global_load_dwordx4 v[28:31], v11, s[26:27] offset:3072 sc1", "s_mov_b64 exec, -1"]
        pre = ["v_mov_b32 v28, 0", "v_mov_b32 v29, s34", "v_mov_b32 v30, 0", "v_mov_b32 v31, s34"]
        self.poll(loads, [f"v{17+2*i}" for i in range(8)], "v12", "v13", sleep=4, pre=pre)
        self.stamp(3)
        e("v_add_f32 v32, v16, v20"); e("v_add_f32 v33, v18, v22"); e("v_add_f32 v34, v24, v28"); e("v_add_f32 v35, v26, v30")
        e("v_add_f32 v32, v32, v34"); e("v_add_f32 v33, v33, v35")
        self.nop(2)
        e("v_add_f32_dpp v32, v32, v32 row_ror:8 row_mask:0xf bank_mask:0xf"); e("v_add_f32_dpp v33, v33, v33 row_ror:8 row_mask:0xf bank_mask:0xf")
        self.xg_reduce(["v32", "v33"], "v_add_f32", ["v34", "v35"])
        e("v_cvt_pk_bf16_f32 v34, v32, v33"); e("v_lshlrev_b32 v32, 16, v34"); e("v_and_b32 v33, 0xffff0000, v34")
        self.silu("v32", "v32", "v34"); self.silu("v33", "v33", "v34")
        e("v_cvt_pk_bf16_f32 v34, v32, v33"); e("v_lshlrev_b32 v32, 16, v34"); e("v_and_b32 v33, 0xffff0000, v34")
        e("v_lshlrev_b32 v8, 16, v7"); e("v_and_b32 v9, 0xffff0000, v7")
        loads = [f"global_load_dwordx4 v[{16+4*t}:{19+4*t}], v10, s[26:27] offset:{t*1024} sc1" for t in range(4)]
        self.wait_lds_ge(F_RED, 4)
        self.poll(loads, [f"v{17+2*i}" for i in range(8)], "v12", "v13", sleep=1)
        self.stamp(4)
        e("v_add_f32 v36, v16, v20"); e("v_add_f32 v37, v18, v22"); e("v_add_f32 v34, v24, v28"); e("v_add_f32 v35, v26, v30")
        e("v_add_f32 v36, v36, v34"); e("v_add_f32 v37, v37, v35")
        self.nop(2)
        e("v_add_f32_dpp v36, v36, v36 row_ror:8 row_mask:0xf bank_mask:0xf"); e("v_add_f32_dpp v37, v37, v37 row_ror:8 row_mask:0xf bank_mask:0xf")
        self.xg_reduce(["v36", "v37"], "v_add_f32", ["v34", "v35"])
        e("v_cvt_pk_bf16_f32 v34, v36, v37"); e("v_lshlrev_b32 v36, 16, v34"); e("v_and_b32 v37, 0xffff0000, v34")
        e("v_mul_f32 v36, v36, v32"); e("v_mul_f32 v37, v37, v33")
        e("v_cvt_pk_bf16_f32 v34, v36, v37"); e("v_lshlrev_b32 v36, 16, v34"); e("v_and_b32 v37, 0xffff0000, v34")
        e("v_add_f32 v36, v36, v8"); e("v_add_f32 v37, v37, v9")
        e("v_cvt_pk_bf16_f32 v34, v36, v37")
        e("s_mov_b64 exec, 0xff")
        e("global_store_dword v6, v34, s[22:23]")
        e("s_cmp_lg_u32 s2, 0"); e("s_cbranch_scc1 L_noep")
        e("s_mov_b64 exec, 1")
        e("v_mov_b32 v35, s34"); e("v_mov_b32 v36, 0")
        e("global_store_dword v36, v35, s[26:27] sc1")
        if self.opt.get("dbg"):
            e("s_memrealtime s[84:85]"); e("s_memtime s[86:87]"); e("s_waitcnt lgkmcnt(0)")
            e("s_sub_u32 s84, s84, s80"); e("s_sub_u32 s86, s86, s82")
            e("v_mov_b32 v40, s84"); e("v_mov_b32 v41, s86")
            e("global_store_dwordx2 v36, v[40:41], s[24:25]")
        self.lab("L_noep")
        e("s_mov_b64 exec, -1")
        self.stamp(5)
        self.stamp_flush()

    def build(self):
        hdr = open("recurrent_scan__sliding_block_cached__swiglu_ffn__decode.s.ref").read().split("\n")
        out = []
        for line in hdr:
            if line.startswith("; @launch"):
                out.append(f"; @launch grid=(256,1,1) block=(384,1,1) lds={LDS_BYTES}")
            elif line.startswith(";"):
                out.append(line)
            else:
                break
        out += ['.amdgcn_target "amdgcn-amd-amdhsa--gfx950"', ".text", f".globl {NAME}", ".p2align 8", f".type {NAME},@function", f"{NAME}:"]
        self.prologue()
        self.cwave()
        self.loader()
        self.fwave()
        self.lab("L_end")
        self.e("s_endpgm")
        out += self.L
        out += ['.section .rodata,"a"', ".p2align 6", f".amdhsa_kernel {NAME}",
                "  .amdhsa_next_free_vgpr 128", "  .amdhsa_next_free_sgpr 102", "  .amdhsa_accum_offset 128",
                "  .amdhsa_group_segment_fixed_size 0", "  .amdhsa_kernarg_size 96", "  .amdhsa_user_sgpr_count 2",
                "  .amdhsa_user_sgpr_kernarg_segment_ptr 1", "  .amdhsa_system_sgpr_workgroup_id_x 1", ".end_amdhsa_kernel", ""]
        return "\n".join(out)

if __name__ == "__main__":
    import argparse
    ap = argparse.ArgumentParser()
    ap.add_argument("-o", default="recurrent_scan__sliding_block_cached__swiglu_ffn__decode.s")
    ap.add_argument("--depth", type=int, default=24)
    ap.add_argument("--stamps", action="store_true")
    ap.add_argument("--opt", default="")
    a = ap.parse_args()
    opt = {}
    for kv in a.opt.split(","):
        if kv:
            k, v = kv.split("="); opt[k] = int(v)
    g = G(depth=a.depth, stamps=a.stamps, opt=opt)
    open(a.o, "w").write(g.build())
    print("wrote", a.o, len(g.L), "lines")
```

```python
import sys, struct

NAME = "recurrent_scan__sliding_block_cached__swiglu_ffn__decode_kernel"

WS_EPOCH = 0
QBUF = 0x10000
STBUF = 0x90000
OBUF = 0xA0000
GUBUF = 0x120000
SBUF = 0x200000
FBUF = 0x300000
DBG = 0x800000

R_K = 0
R_V = 65536
R_Q = 131072
MISC = 147456
XN = MISC
QF = MISC + 8192
PB = MISC + 12288
FLG = MISC + 14336
F_LAND, F_XN, F_QDONE, F_QF, F_MAX, F_P, F_GUDONE, F_RED = [FLG + 4*i for i in range(8)]
WMAX = FLG + 64
WSUM = FLG + 128
TAGW = FLG + 192
R_O = R_K
RED = R_K + 16384
R_GU = R_V + 32768
R_D = R_Q
LDS_BYTES = 163840

def f32(x):
    return "0x%08x" % struct.unpack("<I", struct.pack("<f", x))[0]

class G:
    def __init__(self, depth=24, stamps=False, spin_limit=1 << 20, opt=None):
        self.opt = opt or {}
        self.L = []
        self.depth = depth
        self.stamps = stamps
        self.uid = 0
        self.spin_limit = spin_limit
    def e(self, s):
        self.L.append("    " + s)
    def lab(self, s):
        self.L.append(s + ":")
    def newlab(self, p="L"):
        self.uid += 1
        return f"{p}_{self.uid}"
    def c(self, s):
        self.L.append("    ; " + s)
    def nop(self, n):
        while n > 0:
            k = min(n, 16)
            self.e(f"s_nop {k-1}")
            n -= k
    def stamp(self, k):
        if not self.stamps:
            return
        self.e("s_memrealtime s[90:91]")
        self.e("s_waitcnt lgkmcnt(0)")
        self.e("v_mov_b32 v120, s90")
        self.e(f"v_writelane_b32 v121, s90, {k}")
        self.e("s_memtime s[90:91]")
        self.e("s_waitcnt lgkmcnt(0)")
        self.e(f"v_writelane_b32 v121, s90, {32+k}")
    def stop(self, n):
        if self.opt.get("stop") == n:
            self.stamp_flush()
            self.e("s_endpgm")
    def stamp_flush(self):
        if not self.stamps:
            return
        self.e("s_mov_b64 exec, -1")
        self.e("global_store_dword v122, v121, s[26:27]")
        self.e("s_waitcnt vmcnt(0)")

    def wait_lds_ge(self, flag, val, vaddr="v3", vtmp="v4", stmp="s60", sleep=1):
        l0 = self.newlab("WL"); l1 = self.newlab("WD")
        self.e("s_mov_b32 s61, 0")
        self.lab(l0)
        self.e(f"ds_read_b32 {vtmp}, {vaddr} offset:{flag - FLG}")
        self.e("s_waitcnt lgkmcnt(0)")
        self.e(f"v_readfirstlane_b32 {stmp}, {vtmp}")
        self.e("s_add_u32 s61, s61, 1")
        self.e(f"s_cmp_ge_i32 {stmp}, {val}")
        self.e(f"s_cbranch_scc1 {l1}")
        if sleep:
            self.e(f"s_sleep {sleep}")
        self.e(f"s_cmp_lt_u32 s61, {self.spin_limit}")
        self.e(f"s_cbranch_scc1 {l0}")
        self.lab(l1)
    def lds_inc(self, flag, vaddr="v3", vone="v5"):
        self.e("s_mov_b64 exec, 1")
        self.e(f"ds_add_u32 {vaddr}, {vone} offset:{flag - FLG}")
        self.e("s_mov_b64 exec, -1")

    def allreduce(self, regs, op, tmp):
        for sh in (8, 4, 2, 1):
            self.nop(2 if len(regs) < 3 else 1)
            for r in regs:
                self.e(f"{op}_dpp {r}, {r}, {r} row_ror:{sh} row_mask:0xf bank_mask:0xf")
        self.xg_reduce(regs, op, tmp)
    def xg_reduce(self, regs, op, tmp):
        for sw in ("v_permlane16_swap_b32", "v_permlane32_swap_b32"):
            for r, t in zip(regs, tmp):
                self.e(f"v_mov_b32 {t}, {r}")
            self.nop(2)
            for r, t in zip(regs, tmp):
                self.e(f"{sw} {r}, {t}")
            self.nop(1)
            for r, t in zip(regs, tmp):
                self.e(f"{op} {r}, {r}, {t}")

    def tagcheck(self, tagregs, acc, t2, stag="s34", t3="v119", sm="s[64:65]"):
        first = True
        i = 0
        while i < len(tagregs):
            if first:
                self.e(f"v_xor_b32 {acc}, {stag}, {tagregs[i]}"); i += 1; first = False
            elif i + 1 < len(tagregs):
                self.e(f"v_xor_b32 {t2}, {stag}, {tagregs[i]}")
                self.e(f"v_xor_b32 {t3}, {stag}, {tagregs[i+1]}")
                self.e(f"v_or3_b32 {acc}, {acc}, {t2}, {t3}")
                i += 2
            else:
                self.e(f"v_xor_b32 {t2}, {stag}, {tagregs[i]}")
                self.e(f"v_or_b32 {acc}, {acc}, {t2}")
                i += 1
        self.e(f"v_cmp_ne_u32 {sm}, 0, {acc}")
        self.e(f"s_cmp_eq_u64 {sm}, 0")

    def poll(self, loads, tagregs, acc, t2, sleep=2, pre=None, skip_first=False):
        l0 = self.newlab("PL"); l1 = self.newlab("PD"); lc = self.newlab("PC")
        self.e("s_mov_b32 s61, 0")
        if pre:
            for p in pre: self.e(p)
        if skip_first:
            self.e(f"s_branch {lc}")
        else:
            self.e("s_mov_b64 s[64:65], -1")
        self.lab(l0)
        self.e("s_mov_b64 exec, s[64:65]")
        for s in loads:
            self.e(s)
        self.e("s_mov_b64 exec, -1")
        self.lab(lc)
        self.e("s_waitcnt vmcnt(0)")
        self.tagcheck(tagregs, acc, t2)
        self.e(f"s_cbranch_scc1 {l1}")
        self.e("s_add_u32 s61, s61, 1")
        if sleep:
            self.e(f"s_sleep {sleep}")
        self.e(f"s_cmp_lt_u32 s61, {self.spin_limit >> 3}")
        self.e(f"s_cbranch_scc1 {l0}")
        self.lab(l1)

    def mfma(self, d, a, b, c=None):
        cc = f"v[{d}:{d+3}]" if c is None else c
        self.e(f"v_mfma_f32_16x16x32_bf16 v[{d}:{d+3}], v[{a}:{a+3}], v[{b}:{b+3}], {cc}")

    def bf16r(self, dst, src, tmp=None):
        self.e(f"v_cvt_pk_bf16_f32 {dst}, {src}, {src}")
        self.e(f"v_lshlrev_b32 {dst}, 16, {dst}")

    def silu(self, dst, x, t):
        self.e(f"v_mul_f32 {t}, {f32(-1.4426950408889634)}, {x}")
        self.e(f"v_exp_f32 {t}, {t}")
        self.nop(1)
        self.e(f"v_add_f32 {t}, 1.0, {t}")
        self.e(f"v_rcp_f32 {t}, {t}")
        self.nop(1)
        self.e(f"v_mul_f32 {dst}, {x}, {t}")

    def prologue(self):
        e = self.e
        e("s_cmp_ge_u32 s2, 256")
        e("s_cbranch_scc1 L_end")
        e("s_load_dwordx16 s[4:19], s[0:1], 0")
        e("s_load_dwordx8 s[20:27], s[0:1], 64")
        e("v_lshrrev_b32 v1, 6, v0")
        e("v_and_b32 v0, 63, v0")
        e("s_and_b32 s28, s2, 7")
        e("v_readfirstlane_b32 s32, v1")
        e("s_lshr_b32 s29, s2, 3")
        e("s_lshr_b32 s30, s29, 2")
        e("s_and_b32 s31, s29, 3")
        e("s_mov_b32 s33, 3")
        e("s_cmp_lt_u32 s29, 28"); e("s_cselect_b32 s33, 2, s33")
        e("s_cmp_lt_u32 s29, 14"); e("s_cselect_b32 s33, 1, s33")
        e("s_cmp_lt_u32 s29, 7"); e("s_cselect_b32 s33, 0, s33")
        e("s_cmp_lt_u32 s33, 2")
        e("s_cselect_b32 s35, 48, 16")
        e("s_cselect_b32 s38, 48, 0x60")
        e("s_add_u32 s36, s35, 64")
        e("s_cmp_eq_u32 s33, 2")
        e("s_cselect_b32 s36, 0x60, s36")
        e("s_add_u32 s37, s36, 0x50")
        if self.opt.get("stag", 1):
            e("s_mul_i32 s39, s2, 0x9e3779b1"); e("s_lshr_b32 s39, s39, 26")
        else:
            e("s_mov_b32 s39, 0")
        e(f"v_mov_b32 v3, {FLG}")
        e("v_mov_b32 v5, 1")
        e("s_mov_b32 s58, 0x00ff00ff"); e("s_mov_b32 s59, 0x00ff00ff")
        if self.stamps:
            e("v_mov_b32 v121, 0")
            e("s_lshl_b32 s92, s2, 3"); e("s_add_u32 s92, s92, s32"); e("s_lshl_b32 s92, s92, 8"); e(f"s_add_u32 s92, s92, {DBG}")
            e("v_lshlrev_b32 v122, 2, v0"); e("v_add_u32 v122, s92, v122")
        e("s_cmp_eq_u32 s32, 4"); e("s_cbranch_scc1 L_loader")
        e("s_cmp_eq_u32 s32, 5"); e("s_cbranch_scc1 L_fwave")

    def seg(self, base, nrec, soff_code, step, lds, count, voffs, first=False, xor=False):
        e = self.e
        D = self.depth
        e(f"s_mov_b32 s40, s{base}"); e(f"s_and_b32 s41, s{base+1}, 0xffff"); e(f"s_mov_b32 s42, {nrec}"); e("s_mov_b32 s43, 0x20000")
        for s in soff_code: e(s)
        if xor:
            e("s_lshl_b32 s45, s39, 10")
            e("s_mov_b32 s49, 0")
        else:
            e(f"s_mov_b32 s45, {lds}")
        e(f"s_mov_b32 s46, {count//4}")
        l0 = self.newlab("SEG")
        self.lab(l0)
        for u in range(4):
            if xor:
                e("s_xor_b32 s48, s49, s45")
                e("s_add_u32 s54, s44, s48")
            if not first:
                e(f"s_waitcnt vmcnt({D-1})")
                e("v_mov_b32 v20, s47")
                e(f"ds_write_b32 v3, v20 offset:{F_LAND-FLG}")
            if xor:
                e(f"s_add_u32 m0, s48, {lds}")
                e("s_add_u32 s47, s47, 1")
                e(f"buffer_load_dwordx4 {voffs[u]}, s[40:43], s54 offen nt lds")
                e("s_add_u32 s49, s49, 1024")
            else:
                e("s_mov_b32 m0, s45")
                e("s_add_u32 s47, s47, 1")
                e(f"buffer_load_dwordx4 {voffs[u]}, s[40:43], s44 offen nt lds")
                e("s_add_u32 s45, s45, 1024")
                e(f"s_add_u32 s44, s44, {step}")
        e("s_sub_u32 s46, s46, 1")
        e("s_cmp_lg_u32 s46, 0")
        e(f"s_cbranch_scc1 {l0}")

    def loader(self):
        e = self.e
        D = self.depth
        assert D >= 17
        stop = self.opt.get("stop")
        self.lab("L_loader")
        e("s_setprio 3")
        e("v_mov_b32 v20, 0")
        e("v_lshlrev_b32 v21, 2, v0"); e(f"v_add_u32 v21, {FLG}, v21")
        e("ds_write_b32 v21, v20")
        e("v_lshrrev_b32 v6, 4, v0")
        e("v_lshrrev_b32 v7, 3, v0")
        e("v_and_b32 v8, 1, v0"); e("v_lshlrev_b32 v8, 4, v8")
        e("v_bfe_u32 v9, v0, 1, 2"); e("v_xor_b32 v9, v9, v6"); e("v_lshl_or_b32 v9, v9, 5, v8")
        e("v_lshl_add_u32 v10, v7, 13, v9")
        e(f"s_mov_b32 s47, {-(D-1)}")
        e("s_waitcnt lgkmcnt(0)")
        self.stamp(0)
        self.seg(10, 4 << 20, ["s_lshr_b32 s44, s29, 3", "s_lshl_b32 s44, s44, 20", "s_lshl_b32 s48, s28, 10", "s_add_u32 s44, s44, s48",
                               "s_and_b32 s48, s29, 7", "s_lshl_b32 s48, s48, 7", "s_add_u32 s44, s44, s48"],
                 65536, R_Q, 16, ["v10"]*4, first=True)
        e("s_barrier")
        self.stamp(1)
        e("v_and_b32 v11, 15, v0"); e("v_xor_b32 v11, v11, v6"); e("v_lshlrev_b32 v11, 4, v11"); e("v_lshl_add_u32 v11, v6, 8, v11")
        e("s_and_b32 s48, s39, 3"); e("s_lshl_b32 s48, s48, 6"); e("v_xor_b32 v11, s48, v11")
        e("v_xor_b32 v12, 64, v11"); e("v_xor_b32 v13, 0x80, v11"); e("v_xor_b32 v14, 0xc0, v11")
        e("v_bfe_u32 v15, v0, 1, 3"); e("v_xor_b32 v15, v15, v6"); e("v_lshl_or_b32 v15, v15, 5, v8")
        e("v_lshl_add_u32 v16, v6, 8, v15")
        e("s_and_b32 s48, s39, 1"); e("s_lshl_b32 s48, s48, 7"); e("v_xor_b32 v16, s48, v16")
        e("v_xor_b32 v17, 0x80, v16")
        e("v_lshl_add_u32 v18, v6, 10, v15"); e("v_xor_b32 v19, 0x80, v18")
        e("v_lshl_add_u32 v22, v7, 10, v9")
        e("s_movk_i32 s48, 3584"); e("v_mul_lo_u32 v23, v7, s48"); e("v_add_u32 v23, v23, v9")
        e("s_lshl_b32 s50, s30, 3"); e("s_add_u32 s50, s50, s28"); e("s_lshl_b32 s50, s50, 20")
        e("s_lshl_b32 s48, s31, 16"); e("s_add_u32 s50, s50, s48"); e("s_add_u32 s50, s50, 786432")
        e("s_cmp_lt_u32 s33, 2"); e("s_cbranch_scc0 L_noGU")
        e("s_mul_i32 s51, s28, 7"); e("s_add_u32 s51, s51, s29"); e("s_mul_i32 s48, s33, 7"); e("s_sub_u32 s51, s51, s48")
        e("s_cmp_eq_u32 s33, 0")
        e("s_cselect_b32 s52, s16, s18"); e("s_cselect_b32 s53, s17, s19")
        self.seg(52, 512*3584, ["s_and_b32 s44, s51, 1", f"s_mul_i32 s44, s44, {256*3584}", "s_lshr_b32 s48, s51, 1", "s_lshl_b32 s48, s48, 7", "s_add_u32 s44, s44, s48"],
                 8*3584, R_GU, 32, ["v23"]*4)
        self.lab("L_noGU")
        self.seg(6, 64 << 20, ["s_mov_b32 s44, s50"], 1024, R_K, 64, ["v11", "v12", "v13", "v14"], xor=True)
        self.stamp(2)
        e("s_cmp_eq_u32 s33, 2"); e("s_cbranch_scc0 L_noD")
        if not stop: self.wait_lds_ge(F_QDONE, 2)
        e("s_mul_i32 s51, s28, 14"); e("s_add_u32 s51, s51, s29"); e("s_sub_u32 s51, s51, 14")
        self.seg(20, 1792*1024, ["s_lshr_b32 s44, s51, 2", "s_lshl_b32 s44, s44, 16", "s_and_b32 s48, s51, 3", "s_lshl_b32 s48, s48, 8", "s_add_u32 s44, s44, s48"],
                 4096, R_D, 16, ["v18", "v19", "v18", "v19"])
        self.lab("L_noD")
        e("s_cmp_lt_u32 s33, 2"); e("s_cbranch_scc0 L_noGUw")
        if not stop: self.wait_lds_ge(F_GUDONE, 1)
        self.lab("L_noGUw")
        self.seg(8, 64 << 20, ["s_mov_b32 s44, s50"], 1024, R_V, 64, ["v16", "v17", "v16", "v17"], xor=True)
        self.stamp(3)
        if not stop: self.wait_lds_ge(F_P, 4)
        self.seg(12, 4 << 20, ["s_lshl_b32 s44, s28, 2", "s_lshr_b32 s48, s29, 3", "s_add_u32 s44, s44, s48", "s_lshl_b32 s44, s44, 17",
                               "s_and_b32 s48, s29, 7", "s_lshl_b32 s48, s48, 7", "s_add_u32 s44, s44, s48"],
                 8192, R_O, 16, ["v22"]*4)
        self.stamp(4)
        ks = [k for k in range(D-1, -1, -1) if (k % 8 == 0)]
        for k in ks:
            e(f"s_waitcnt vmcnt({k})")
            e(f"s_sub_u32 s48, s37, {k}")
            e("v_mov_b32 v20, s48")
            e(f"ds_write_b32 v3, v20 offset:{F_LAND-FLG}")
        self.stamp(5)
        self.stamp_flush()
        e("s_endpgm")

    def cwave(self):
        e = self.e
        e("s_lshl_b32 s48, s32, 11")
        e("v_lshlrev_b32 v6, 4, v0"); e("v_add_u32 v6, s48, v6")
        e("v_and_b32 v1, 15, v0")
        e("v_lshrrev_b32 v2, 4, v0")
        e("s_waitcnt lgkmcnt(0)")
        e("global_load_dwordx4 v[8:11], v6, s[4:5]")
        e("global_load_dwordx4 v[12:15], v6, s[4:5] offset:1024")
        e("s_load_dword s34, s[26:27], 0")
        self.stamp(0)
        e("s_barrier")
        e("v_lshrrev_b32 v6, 2, v0"); e("v_lshlrev_b32 v6, 9, v6")
        e("v_and_b32 v7, 1, v0"); e("v_lshl_add_u32 v6, v7, 8, v6")
        e("v_bfe_u32 v7, v0, 1, 1"); e("v_lshl_add_u32 v6, v7, 3, v6")
        e("s_lshl_b32 s48, s32, 5"); e(f"s_add_u32 s48, s48, {XN}"); e("v_add_u32 v6, s48, v6")
        e("v_lshrrev_b32 v48, 2, v0")
        e("v_and_b32 v49, 3, v0"); e("v_lshlrev_b32 v49, 3, v49")
        e("v_bfe_u32 v50, v0, 3, 2"); e("v_lshl_or_b32 v50, v50, 5, v49"); e("v_lshl_add_u32 v50, v48, 7, v50")
        e("v_and_b32 v51, 7, v48"); e("v_lshl_or_b32 v51, v51, 5, v49"); e("v_lshl_add_u32 v51, v48, 8, v51")
        e("v_and_b32 v112, 7, v0")
        e("v_bfe_u32 v113, v0, 3, 1")
        e("v_and_b32 v114, 3, v0")
        e("v_lshlrev_b32 v52, 4, v112"); e("v_lshl_add_u32 v52, v2, 7, v52")
        e("s_lshr_b32 s49, s29, 3")
        e("s_lshl_b32 s48, s49, 11"); e(f"s_add_u32 s48, s48, {XN}"); e("v_add_u32 v52, s48, v52")
        e("s_lshl_b32 s48, s32, 6"); e("s_and_b32 s48, s48, 0x60"); e("v_xor_b32 v53, s48, v50"); e(f"v_add_u32 v53, {R_Q}, v53"); e("v_xor_b32 v115, 32, v53")
        e("s_lshl_b32 s48, s28, 5"); e("s_add_u32 s48, s48, s49"); e("s_lshl_b32 s48, s48, 11")
        e("s_and_b32 s50, s29, 7"); e("s_lshl_b32 s50, s50, 8"); e("s_add_u32 s48, s48, s50")
        e("s_lshl_b32 s50, s32, 7"); e("s_add_u32 s48, s48, s50"); e(f"s_add_u32 s48, s48, {QBUF}")
        e("v_lshlrev_b32 v54, 13, v112"); e("v_lshl_add_u32 v54, v113, 6, v54"); e("v_lshl_add_u32 v54, v2, 4, v54"); e("v_add_u32 v54, s48, v54")
        e("s_lshl_b32 s48, s28, 3"); e("s_add_u32 s48, s48, s30"); e("s_lshl_b32 s48, s48, 13")
        e("s_add_u32 s48, s48, s50"); e(f"s_add_u32 s48, s48, {QBUF}")
        e("v_lshrrev_b32 v55, 2, v1"); e("v_lshlrev_b32 v55, 11, v55")
        e("v_lshl_add_u32 v55, v114, 9, v55"); e("v_lshl_add_u32 v55, v2, 5, v55"); e("v_add_u32 v55, s48, v55")
        e("s_waitcnt vmcnt(0)")
        self.stamp(1)
        self.stop(1)
        for rb, src in ((16, 8), (24, 12)):
            for i in range(4):
                e(f"v_lshlrev_b32 v{rb+2*i}, 16, v{src+i}")
                e(f"v_and_b32 v{rb+2*i+1}, 0xffff0000, v{src+i}")
        for rb, d in ((16, 32), (24, 33)):
            e(f"v_add_f32 v{d}, v{rb}, v{rb+1}")
            e(f"v_add_f32 v34, v{rb+2}, v{rb+3}")
            e(f"v_add_f32 v35, v{rb+4}, v{rb+5}")
            e(f"v_add_f32 v36, v{rb+6}, v{rb+7}")
            e(f"v_add_f32 v{d}, v{d}, v34"); e("v_add_f32 v35, v35, v36"); e(f"v_add_f32 v{d}, v{d}, v35")
        self.allreduce(["v32", "v33"], "v_add_f32", ["v34", "v35"])
        e(f"v_mul_f32 v32, {f32(1/512)}, v32"); e(f"v_mul_f32 v33, {f32(1/512)}, v33")
        for rb, m, d in ((16, 32, 36), (24, 33, 37)):
            e(f"v_sub_f32 v38, v{rb}, v{m}"); e(f"v_mul_f32 v{d}, v38, v38")
            for i in range(1, 8):
                e(f"v_sub_f32 v38, v{rb+i}, v{m}"); e(f"v_fmac_f32 v{d}, v38, v38")
        self.allreduce(["v36", "v37"], "v_add_f32", ["v34", "v35"])
        e(f"v_mul_f32 v36, {f32(1/512)}, v36"); e(f"v_mul_f32 v37, {f32(1/512)}, v37")
        for m, v in ((32, 36), (33, 37)):
            e(f"v_cvt_pk_bf16_f32 v38, v{m}, v{v}")
            e(f"v_lshlrev_b32 v{m}, 16, v38")
            e(f"v_and_b32 v{v}, 0xffff0000, v38")
            e(f"v_add_f32 v{v}, {f32(1e-5)}, v{v}")
            self.bf16r(f"v{v}", f"v{v}")
            e(f"v_sqrt_f32 v{v}, v{v}")
            self.nop(1)
            self.bf16r(f"v{v}", f"v{v}")
            e(f"v_rcp_f32 v{v}, v{v}")
            self.nop(1)
        for rb, m, v, out in ((16, 32, 36, 40), (24, 33, 37, 44)):
            for i in range(4):
                e(f"v_sub_f32 v38, v{rb+2*i}, v{m}"); e(f"v_sub_f32 v39, v{rb+2*i+1}, v{m}")
                e("v_cvt_pk_bf16_f32 v38, v38, v39")
                e("v_and_b32 v39, 0xffff0000, v38"); e("v_lshlrev_b32 v38, 16, v38")
                e(f"v_mul_f32 v38, v38, v{v}"); e(f"v_mul_f32 v39, v39, v{v}")
                e(f"v_cvt_pk_bf16_f32 v{out+i}, v38, v39")
        e("ds_write_b64 v6, v[40:41]"); e("ds_write_b64 v6, v[42:43] offset:128")
        e("ds_write_b64 v6, v[44:45] offset:16"); e("ds_write_b64 v6, v[46:47] offset:144")
        e("s_waitcnt lgkmcnt(0)")
        e("s_add_u32 s34, s34, 1")
        e("v_mov_b32 v101, s34"); e("v_mov_b32 v103, s34")
        e(f"ds_write_b32 v3, v101 offset:{TAGW-FLG}")
        e("s_waitcnt lgkmcnt(0)")
        self.lds_inc(F_XN)
        self.stamp(2)
        e("s_cmp_lt_u32 s32, 2"); e("s_cbranch_scc0 L_noq")
        self.wait_lds_ge(F_XN, 4, sleep=0)
        for j in range(4):
            e(f"ds_read_b128 v[{64+4*j}:{67+4*j}], v52 offset:{j*512}")
        self.wait_lds_ge(F_LAND, 16, sleep=0)
        self.stamp(3)
        for j in range(4):
            e(f"ds_read_b64_tr_b16 v[{80+4*j}:{81+4*j}], v53 offset:{(32*j)*128}")
            e(f"ds_read_b64_tr_b16 v[{82+4*j}:{83+4*j}], v53 offset:{(32*j+16)*128}")
        for j in range(3):
            e(f"ds_read_b64_tr_b16 v[{16+4*j}:{17+4*j}], v115 offset:{(32*j)*128}")
            e(f"ds_read_b64_tr_b16 v[{18+4*j}:{19+4*j}], v115 offset:{(32*j+16)*128}")
        for j in range(4):
            e(f"s_waitcnt lgkmcnt({12-2*j})")
            self.mfma(96, 80+4*j, 64+4*j, "0" if j == 0 else None)
            if j == 0:
                e(f"ds_read_b64_tr_b16 v[28:29], v115 offset:{(96)*128}")
                e(f"ds_read_b64_tr_b16 v[30:31], v115 offset:{(112)*128}")
        for j in range(4):
            e(f"s_waitcnt lgkmcnt({6-2*j})")
            self.mfma(104, 16+4*j, 64+4*j, "0" if j == 0 else None)
        self.lds_inc(F_QDONE)
        self.nop(6)
        e("v_cvt_pk_bf16_f32 v96, v96, v97"); e("v_cvt_pk_bf16_f32 v98, v98, v99")
        e("v_cvt_pk_bf16_f32 v104, v104, v105"); e("v_cvt_pk_bf16_f32 v106, v106, v107")
        e("v_cndmask_b32 v100, v104, v96, s[58:59]"); e("v_cndmask_b32 v102, v106, v98, s[58:59]")
        e("global_store_dwordx4 v54, v[100:103], s[26:27] sc1")
        self.lab("L_noq")
        self.stamp(4)
        self.stop(2)
        e("v_xor_b32 v58, v2, v1"); e("v_lshlrev_b32 v58, 4, v58"); e("v_lshl_add_u32 v58, v1, 8, v58")
        e("s_lshl_b32 s48, s32, 14"); e(f"s_add_u32 s48, s48, {R_K}"); e("v_add_u32 v58, s48, v58")
        e("v_xor_b32 v59, 64, v58"); e("v_xor_b32 v60, 0x80, v58"); e("v_xor_b32 v61, 0xc0, v58")
        e("v_lshlrev_b32 v56, 4, v0"); e(f"v_add_u32 v56, {QF}, v56")
        e("s_lshl_b32 s48, s32, 10"); e("v_add_u32 v57, s48, v56")
        e(f"s_add_u32 s48, s35, {self.opt.get('qtrig', 48)}")
        self.wait_lds_ge(F_LAND, "s48")
        self.poll(["global_load_dwordx4 v[64:67], v55, s[26:27] sc1", "global_load_dwordx4 v[68:71], v55, s[26:27] offset:16 sc1"],
                  ["v65", "v67", "v69", "v71"], "v72", "v73", sleep=self.opt.get("qsleep", 8))
        e("v_mov_b32 v65, v66"); e("v_mov_b32 v66, v68"); e("v_mov_b32 v67, v70")
        e("ds_write_b128 v57, v[64:67]")
        e("s_waitcnt lgkmcnt(0)")
        self.lds_inc(F_QF)
        self.stamp(5)
        self.stop(3)
        self.wait_lds_ge(F_QF, 4, sleep=0)
        for j in range(4):
            e(f"ds_read_b128 v[{64+4*j}:{67+4*j}], v56 offset:{j*1024}")
        e("s_lshr_b32 s48, s39, 4"); e("s_xor_b32 s48, s48, s32"); e("s_lshl_b32 s48, s48, 4"); e("s_add_u32 s48, s48, s35"); e("s_add_u32 s48, s48, 16")
        self.wait_lds_ge(F_LAND, "s48")
        self.stamp(6)
        kaddr = ["v58", "v59", "v60", "v61"]
        def kread(T):
            for j in range(4):
                e(f"ds_read_b128 v[{16+16*(T%2)+4*j}:{19+16*(T%2)+4*j}], {kaddr[j]} offset:{T*4096}")
        kread(0)
        for T in range(4):
            if T < 3: kread(T+1)
            for j in range(4):
                e(f"s_waitcnt lgkmcnt({(7 if T < 3 else 3)-j})")
                self.mfma(96+4*T, 16+16*(T%2)+4*j, 64+4*j, "0" if j == 0 else None)
        self.nop(8)
        S = [f"v{96+i}" for i in range(16)]
        for sh in (4, 8):
            for r in S:
                e(f"v_add_f32_dpp {r}, {r}, {r} row_ror:{sh} row_mask:0xf bank_mask:0xf")
        c1 = 128 ** -0.5 * 1.4426950408889634
        for r in S:
            e(f"v_mul_f32 {r}, {f32(c1)}, {r}")
        e("v_max3_f32 v16, v96, v97, v98")
        for i in range(3, 15, 2):
            e(f"v_max3_f32 v16, v16, v{96+i}, v{97+i}")
        e("v_max_f32 v16, v16, v111")
        self.xg_reduce(["v16"], "v_max_f32", ["v17"])
        e("v_lshlrev_b32 v18, 2, v114"); e(f"v_add_u32 v19, {FLG}, v18")
        e("s_lshl_b32 s48, s32, 4"); e("v_add_u32 v18, s48, v19")
        e(f"ds_write_b32 v18, v16 offset:{WMAX-FLG}")
        e("s_waitcnt lgkmcnt(0)")
        self.lds_inc(F_MAX)
        self.wait_lds_ge(F_MAX, 4, sleep=0)
        for w in range(4):
            e(f"ds_read_b32 v{20+w}, v19 offset:{WMAX-FLG+16*w}")
        e("s_waitcnt lgkmcnt(0)")
        e("v_max3_f32 v62, v20, v21, v22"); e("v_max_f32 v62, v62, v23")
        for r in S:
            e(f"v_sub_f32 {r}, {r}, v62")
        for r in S:
            e(f"v_exp_f32 {r}, {r}")
        self.nop(1)
        e("v_add_f32 v16, v96, v97")
        for i in range(2, 16):
            e(f"v_add_f32 v16, v16, v{96+i}")
        self.xg_reduce(["v16"], "v_add_f32", ["v17"])
        e(f"ds_write_b32 v18, v16 offset:{WSUM-FLG}")
        for h in range(2):
            for i in range(4):
                e(f"v_cvt_pk_bf16_f32 v{24+4*h+i}, v{96+8*h+2*i}, v{97+8*h+2*i}")
        e("v_lshl_add_u32 v63, v2, 2, v114"); e("v_lshlrev_b32 v63, 4, v63"); e(f"v_add_u32 v63, {PB}, v63")
        e("s_lshl_b32 s48, s32, 9"); e("v_add_u32 v21, s48, v63")
        e("ds_write_b128 v21, v[24:27]"); e("ds_write_b128 v21, v[28:31] offset:256")
        e("s_waitcnt lgkmcnt(0)")
        e("s_mov_b64 exec, 1")
        e(f"ds_add_rtn_u32 v22, v3, v5 offset:{F_P-FLG}")
        e("s_waitcnt lgkmcnt(0)")
        e("s_mov_b64 exec, -1")
        e("v_readfirstlane_b32 s48, v22")
        self.stamp(7)
        e("s_lshl_b32 s51, s28, 3"); e("s_add_u32 s51, s51, s30"); e("s_lshl_b32 s51, s51, 9"); e(f"s_add_u32 s51, s51, {STBUF}")
        e("s_cmp_eq_u32 s48, 3"); e("s_cbranch_scc0 L_nostat")
        for w in range(4):
            e(f"ds_read_b32 v{20+w}, v19 offset:{WSUM-FLG+16*w}")
        e("s_waitcnt lgkmcnt(0)")
        e("v_add_f32 v20, v20, v21"); e("v_add_f32 v22, v22, v23"); e("v_add_f32 v26, v20, v22")
        e("v_mov_b32 v24, v62"); e("v_mov_b32 v25, s34"); e("v_mov_b32 v27, s34")
        e("s_lshl_b32 s48, s31, 7"); e("s_add_u32 s48, s48, s51")
        e("v_lshlrev_b32 v20, 4, v0"); e("v_add_u32 v20, s48, v20")
        e("s_mov_b64 exec, 0xff")
        e("global_store_dwordx4 v20, v[24:27], s[26:27] sc1")
        e("s_mov_b64 exec, -1")
        self.lab("L_nostat")
        e("v_lshlrev_b32 v57, 4, v114"); e("v_lshl_add_u32 v57, v2, 7, v57"); e("v_add_u32 v57, s51, v57")
        e("s_lshr_b32 s52, s39, 3")
        e("s_lshl_b32 s48, s32, 6"); e("s_lshl_b32 s50, s52, 13"); e("s_or_b32 s48, s48, s50"); e(f"s_or_b32 s48, s48, {R_V}")
        e("v_xor_b32 v58, s48, v51")
        e("s_lshl_b32 s48, s52, 8"); e("v_xor_b32 v63, s48, v63")
        e("s_lshl_b32 s48, s28, 7"); e("s_lshl_b32 s50, s31, 3"); e("s_add_u32 s48, s48, s50"); e("s_add_u32 s48, s48, s30"); e("s_lshl_b32 s48, s48, 9")
        e("s_lshl_b32 s50, s32, 7"); e("s_add_u32 s48, s48, s50"); e(f"s_add_u32 s48, s48, {OBUF}")
        e("v_lshlrev_b32 v60, 14, v114"); e("v_bfe_u32 v61, v0, 2, 1"); e("v_lshl_add_u32 v60, v61, 6, v60"); e("v_lshl_add_u32 v60, v2, 4, v60"); e("v_add_u32 v60, s48, v60")
        e("s_lshl_b32 s48, s28, 2"); e("s_add_u32 s48, s48, s49"); e("s_lshl_b32 s48, s48, 14")
        e("s_add_u32 s48, s48, s50"); e(f"s_add_u32 s48, s48, {OBUF}")
        e("v_lshlrev_b32 v61, 9, v1"); e("v_lshl_add_u32 v61, v2, 4, v61"); e("v_add_u32 v61, s48, v61")
        e("v_add_u32 v56, 0x2000, v61")
        e("v_lshl_add_u32 v116, v2, 3, v112"); e("v_lshlrev_b32 v116, 4, v116"); e(f"v_add_u32 v116, {RED}, v116")
        e("s_lshl_b32 s48, s32, 11"); e("v_add_u32 v117, s48, v116")
        e("s_lshl_b32 s48, s32, 9"); e("v_add_u32 v118, s48, v116")
        e("s_and_b32 s48, s29, 7"); e("s_lshl_b32 s48, s48, 2"); e("s_add_u32 s48, s48, s32"); e("s_lshl_b32 s48, s48, 5")
        e("s_lshl_b32 s50, s28, 2"); e("s_add_u32 s48, s48, s50"); e("s_add_u32 s48, s48, s49"); e("s_lshl_b32 s48, s48, 7"); e(f"s_add_u32 s48, s48, {SBUF}")
        e("v_lshlrev_b32 v55, 17, v112"); e("v_lshl_add_u32 v55, v2, 5, v55"); e("v_lshl_add_u32 v55, v113, 4, v55"); e("v_add_u32 v55, s48, v55")
        e("s_lshl_b32 s48, s32, 12"); e(f"s_add_u32 s48, s48, {R_O}"); e("v_add_u32 v53, s48, v50")
        e("s_mov_b32 s56, 0x0f0f0f0f"); e("s_mov_b32 s57, 0x0f0f0f0f")
        self.wait_lds_ge(F_P, 4, sleep=0)
        for p in range(8):
            if p: e(f"v_xor_b32 v52, {p<<8}, v63")
            e(f"ds_read_b128 v[{64+4*p}:{67+4*p}], {'v52' if p else 'v63'}")
        spf = self.opt.get("statp", 5)
        for p in range(8):
            rb = 16 + 8*(p % 2)
            if p:
                e(f"v_xor_b32 v52, {p<<13}, v58")
            a0 = "v52" if p else "v58"
            e(f"v_xor_b32 v59, 32, {a0}")
            e(f"s_add_u32 s48, s36, {8*(p+1)}")
            self.wait_lds_ge(F_LAND, "s48", sleep=(0 if p >= 6 else 1))
            e(f"ds_read_b64_tr_b16 v[{rb}:{rb+1}], {a0}")
            e(f"ds_read_b64_tr_b16 v[{rb+2}:{rb+3}], {a0} offset:4096")
            e(f"ds_read_b64_tr_b16 v[{rb+4}:{rb+5}], v59")
            e(f"ds_read_b64_tr_b16 v[{rb+6}:{rb+7}], v59 offset:4096")
            if p == spf:
                e("global_load_dwordx4 v[40:43], v57, s[26:27] sc1")
            if p == 7:
                pass
            e("s_waitcnt lgkmcnt(2)")
            self.mfma(96, rb, 64+4*p, "0" if p == 0 else None)
            e("s_waitcnt lgkmcnt(0)")
            self.mfma(100, rb+4, 64+4*p, "0" if p == 0 else None)
            if p == 6:
                self.poll(["global_load_dwordx4 v[40:43], v57, s[26:27] sc1"], ["v41", "v43"], "v44", "v45", sleep=4, skip_first=True)
                e("v_mov_b32 v44, v40")
                self.xg_reduce(["v44"], "v_max_f32", ["v45"])
                e("v_sub_f32 v40, v40, v44"); e("v_exp_f32 v40, v40"); e("v_sub_f32 v46, v62, v44"); e("v_exp_f32 v46, v46")
                e("v_mul_f32 v42, v42, v40")
                self.xg_reduce(["v42"], "v_add_f32", ["v45"])
                e("v_rcp_f32 v42, v42")
                self.nop(1)
                e("v_mul_f32 v46, v46, v42")
                e("v_mov_b32 v33, s34"); e("v_mov_b32 v35, s34")
        self.stamp(8)
        self.nop(7)
        for i in range(8):
            e(f"v_mul_f32 v{96+i}, v{96+i}, v46")
        e("v_cvt_pk_bf16_f32 v96, v96, v97"); e("v_cvt_pk_bf16_f32 v98, v98, v99")
        e("v_cvt_pk_bf16_f32 v100, v100, v101"); e("v_cvt_pk_bf16_f32 v102, v102, v103")
        e("v_cndmask_b32 v32, v100, v96, s[56:57]"); e("v_cndmask_b32 v34, v102, v98, s[56:57]")
        e("s_mov_b64 exec, s[58:59]")
        e("global_store_dwordx4 v60, v[32:35], s[26:27] sc1")
        e("s_mov_b64 exec, -1")
        self.stamp(9)
        self.wait_lds_ge(F_LAND, "s37")
        for ct in range(4):
            if ct: e(f"v_xor_b32 v52, {ct<<5}, v53")
            a = "v53" if ct == 0 else "v52"
            e(f"ds_read_b64_tr_b16 v[{64+4*ct}:{65+4*ct}], {a}")
            e(f"ds_read_b64_tr_b16 v[{66+4*ct}:{67+4*ct}], {a} offset:2048")
        if self.opt.get("odelay", 0):
            e(f"s_sleep {self.opt['odelay']}")
        self.stamp(10)
        self.poll(["global_load_dwordx4 v[24:27], v61, s[26:27] sc1", "global_load_dwordx4 v[28:31], v61, s[26:27] offset:64 sc1",
                   "global_load_dwordx4 v[32:35], v56, s[26:27] sc1", "global_load_dwordx4 v[36:39], v56, s[26:27] offset:64 sc1"],
                  ["v25", "v27", "v29", "v31", "v33", "v35", "v37", "v39"], "v44", "v45", sleep=self.opt.get("osleep", 2))
        self.stamp(11)
        e("v_mov_b32 v25, v26"); e("v_mov_b32 v26, v28"); e("v_mov_b32 v27, v30")
        e("v_mov_b32 v33, v34"); e("v_mov_b32 v34, v36"); e("v_mov_b32 v35, v38")
        e("s_waitcnt lgkmcnt(0)")
        self.nop(1)
        for ct in range(4):
            self.mfma(96+4*ct, 64+4*ct, 24, "0")
        for ct in range(4):
            self.mfma(96+4*ct, 64+4*ct, 32)
        e("v_mov_b32 v17, s34"); e("v_mov_b32 v19, s34")
        self.nop(4)
        for ct in range(4):
            if ct == 3: self.nop(3)
            for r in S[4*ct:4*ct+4]:
                e(f"v_add_f32_dpp {r}, {r}, {r} row_ror:8 row_mask:0xf bank_mask:0xf")
            e("s_mov_b64 exec, s[58:59]")
            e(f"ds_write_b128 v117, v[{96+4*ct}:{99+4*ct}] offset:{ct*512}")
            e("s_mov_b64 exec, -1")
        e("s_waitcnt lgkmcnt(0)")
        self.lds_inc(F_RED)
        self.wait_lds_ge(F_RED, 4, sleep=0)
        for j in range(4):
            e(f"ds_read_b128 v[{64+4*j}:{67+4*j}], v118 offset:{j*2048}")
        e("s_waitcnt lgkmcnt(2)")
        for i in range(4):
            e(f"v_add_f32 v{64+i}, v{64+i}, v{68+i}")
        e("s_waitcnt lgkmcnt(0)")
        for i in range(4):
            e(f"v_add_f32 v{72+i}, v{72+i}, v{76+i}")
        for i in range(4):
            e(f"v_add_f32 v{64+i}, v{64+i}, v{72+i}")
        e("v_cndmask_b32 v16, v66, v64, s[58:59]"); e("v_cndmask_b32 v18, v67, v65, s[58:59]")
        e("global_store_dwordx4 v55, v[16:19], s[26:27] sc1")
        self.stamp(12)
        self.stamp_flush()
        e("s_endpgm")

    def fwave(self):
        e = self.e
        self.lab("L_fwave")
        if self.opt.get("dbg"):
            e("s_memrealtime s[80:81]"); e("s_memtime s[82:83]")
        e("v_and_b32 v1, 15, v0"); e("v_lshrrev_b32 v2, 4, v0")
        e("v_lshlrev_b32 v10, 4, v0")
        if self.opt.get("cpf", 1):
            e("s_cmp_eq_u32 s33, 3"); e("s_cbranch_scc0 L_nocpf")
            e("s_getpc_b64 s[66:67]")
            self.lab("L_pcref")
            e(f"s_sub_u32 s66, s66, L_pcref-{NAME}"); e("s_subb_u32 s67, s67, 0")
            e("v_mov_b32 v11, v10")
            e(f"s_mov_b32 s48, (L_end-{NAME}+3)/1024")
            self.lab("L_cpf")
            e("global_load_dwordx4 v[12:15], v11, s[66:67]")
            e("v_add_u32 v11, 0x400, v11")
            e("s_sub_u32 s48, s48, 1"); e("s_cmp_lg_u32 s48, 0"); e("s_cbranch_scc1 L_cpf")
            self.lab("L_nocpf")
        self.stamp(0)
        e("s_barrier")
        if self.opt.get("stop"):
            e("s_waitcnt lgkmcnt(0)")
            self.stamp_flush(); e("s_endpgm")
        e("v_lshrrev_b32 v48, 2, v0")
        e("v_and_b32 v49, 3, v0"); e("v_lshlrev_b32 v49, 3, v49")
        e("v_bfe_u32 v50, v0, 3, 2"); e("v_lshl_or_b32 v50, v50, 5, v49"); e("v_lshl_add_u32 v50, v48, 7, v50")
        e("v_and_b32 v51, 7, v48"); e("v_lshl_or_b32 v51, v51, 5, v49"); e("v_lshl_add_u32 v51, v48, 8, v51")
        e("v_and_b32 v112, 7, v0"); e("v_bfe_u32 v113, v0, 3, 1")
        e("s_lshl_b32 s52, s28, 2"); e("s_add_u32 s52, s52, s31")
        e("s_lshl_b32 s53, s30, 10"); e("s_lshl_b32 s48, s52, 5"); e("s_add_u32 s53, s53, s48")
        e("v_lshlrev_b32 v6, 2, v112"); e("v_add_u32 v6, s53, v6")
        e("s_waitcnt lgkmcnt(0)")
        e("global_load_dword v7, v6, s[4:5]")
        e("s_lshl_b32 s48, s30, 5"); e("s_add_u32 s48, s48, s52"); e("s_lshl_b32 s48, s48, 12")
        e("v_add_u32 v10, s48, v10")
        e(f"v_add_u32 v11, {FBUF}, v10"); e(f"v_add_u32 v10, {SBUF}, v10")
        self.wait_lds_ge(F_XN, 4)
        e(f"ds_read_b32 v4, v3 offset:{TAGW-FLG}")
        e("s_waitcnt lgkmcnt(0)")
        e("v_readfirstlane_b32 s34, v4")
        e("s_cmp_eq_u32 s33, 3"); e("s_cbranch_scc1 L_final")
        e("s_cmp_eq_u32 s33, 2"); e("s_cbranch_scc1 L_dunit")
        e("s_mul_i32 s51, s28, 7"); e("s_add_u32 s51, s51, s29"); e("s_mul_i32 s48, s33, 7"); e("s_sub_u32 s51, s51, s48")
        e("v_lshlrev_b32 v52, 4, v112"); e("v_lshl_add_u32 v52, v2, 7, v52")
        e("s_and_b32 s48, s51, 1"); e("s_lshl_b32 s48, s48, 12"); e(f"s_add_u32 s48, s48, {XN}"); e("v_add_u32 v52, s48, v52")
        e(f"v_add_u32 v53, {R_GU}, v50")
        e("s_mul_i32 s48, s33, 56"); e("s_add_u32 s48, s48, s51"); e("s_lshl_b32 s48, s48, 11"); e(f"s_add_u32 s48, s48, {GUBUF}")
        e("v_lshlrev_b32 v54, 8, v112"); e("v_lshl_add_u32 v54, v113, 6, v54"); e("v_lshl_add_u32 v54, v2, 4, v54"); e("v_add_u32 v54, s48, v54")
        for j in range(8):
            e(f"ds_read_b128 v[{64+4*j}:{67+4*j}], v52 offset:{j*512}")
        self.wait_lds_ge(F_LAND, "s38")
        self.stamp(1)
        for ct in range(4):
            if ct: e(f"v_xor_b32 v55, {ct<<5}, v53")
            a = "v53" if ct == 0 else "v55"
            for jh in range(2):
                for j in range(4*jh, 4*jh+4):
                    rb = 16 + 4*j
                    e(f"ds_read_b64_tr_b16 v[{rb}:{rb+1}], {a} offset:{32*j*128}")
                    e(f"ds_read_b64_tr_b16 v[{rb+2}:{rb+3}], {a} offset:{(32*j+16)*128}")
                for j in range(4*jh, 4*jh+4):
                    e(f"s_waitcnt lgkmcnt({6-2*(j%4)})")
                    self.mfma(96+4*ct, 16+4*j, 64+4*j, "0" if j == 0 else None)
        self.lds_inc(F_GUDONE)
        self.nop(6)
        for pr in range(2):
            a = 96 + 8*pr
            rb = 16 + 4*pr
            e(f"v_cvt_pk_bf16_f32 v{a}, v{a}, v{a+1}"); e(f"v_cvt_pk_bf16_f32 v{a+2}, v{a+2}, v{a+3}")
            e(f"v_cvt_pk_bf16_f32 v{a+4}, v{a+4}, v{a+5}"); e(f"v_cvt_pk_bf16_f32 v{a+6}, v{a+6}, v{a+7}")
            e(f"v_cndmask_b32 v{rb}, v{a+4}, v{a}, s[58:59]"); e(f"v_mov_b32 v{rb+1}, s34")
            e(f"v_cndmask_b32 v{rb+2}, v{a+6}, v{a+2}, s[58:59]"); e(f"v_mov_b32 v{rb+3}, s34")
            e(f"global_store_dwordx4 v54, v[{rb}:{rb+3}], s[26:27] offset:{pr*128} sc1")
        self.stamp(2)
        e("s_branch L_final")
        self.lab("L_dunit")
        e("s_mul_i32 s51, s28, 14"); e("s_add_u32 s51, s51, s29"); e("s_sub_u32 s51, s51, 14")
        e("s_lshr_b32 s50, s51, 2")
        e("s_lshl_b32 s48, s50, 12"); e(f"s_add_u32 s48, s48, {GUBUF}")
        e("v_lshlrev_b32 v52, 8, v112"); e("v_lshl_add_u32 v52, v113, 7, v52")
        e("v_lshl_add_u32 v52, v2, 4, v52"); e("v_add_u32 v52, s48, v52")
        e(f"v_add_u32 v53, {56*2048}, v52")
        loads = []
        tags = []
        for m, a in ((0, "v52"), (1, "v53")):
            for kh in range(2):
                for un in range(2):
                    rb = 16 + 16*m + 8*kh + 4*un
                    loads.append(f"global_load_dwordx4 v[{rb}:{rb+3}], {a}, s[26:27] offset:{kh*2048 + un*64} sc1")
                    tags += [f"v{rb+1}", f"v{rb+3}"]
        self.wait_lds_ge(F_LAND, "s38")
        self.poll(loads, tags, "v54", "v55", sleep=self.opt.get("dsleep", 8))
        self.stamp(1)
        for un in range(2):
            for dd in range(2):
                g0 = 16 + 4*un + 2*dd; g1 = g0 + 8; u0 = g0 + 16; u1 = g0 + 24
                for hi in range(2):
                    ex = (lambda d, s: f"v_and_b32 {d}, 0xffff0000, {s}") if hi else (lambda d, s: f"v_lshlrev_b32 {d}, 16, {s}")
                    e(ex("v56", f"v{g0}")); e(ex("v57", f"v{g1}")); e("v_add_f32 v56, v56, v57")
                    e(ex("v58", f"v{u0}")); e(ex("v57", f"v{u1}")); e("v_add_f32 v58, v58, v57")
                    e("v_cvt_pk_bf16_f32 v57, v56, v58")
                    e("v_lshlrev_b32 v56, 16, v57"); e("v_and_b32 v58, 0xffff0000, v57")
                    self.silu("v56", "v56", "v57")
                    self.bf16r("v56", "v56")
                    e(f"v_mul_f32 v{60+hi}, v56, v58")
                e(f"v_cvt_pk_bf16_f32 v{64+2*un+dd}, v60, v61")
        e(f"v_add_u32 v53, {R_D}, v51")
        e("s_and_b32 s48, s51, 3"); e("s_lshl_b32 s48, s48, 8"); e("s_add_u32 s48, s48, s50"); e("s_lshl_b32 s48, s48, 7"); e(f"s_add_u32 s48, s48, {FBUF}")
        e("v_lshlrev_b32 v54, 17, v112"); e("v_lshl_add_u32 v54, v2, 5, v54"); e("v_lshl_add_u32 v54, v113, 4, v54"); e("v_add_u32 v54, s48, v54")
        for half in range(2):
            for c2 in range(2):
                for c4 in range(2*c2, 2*c2+2):
                    ct = 4*half + c4
                    e(f"v_xor_b32 v55, {ct<<5}, v53")
                    rb = 16 + 8*c4
                    for j in range(2):
                        e(f"ds_read_b64_tr_b16 v[{rb+4*j}:{rb+4*j+1}], v55 offset:{32*j*256}")
                        e(f"ds_read_b64_tr_b16 v[{rb+4*j+2}:{rb+4*j+3}], v55 offset:{(32*j+16)*256}")
                for c4 in range(2*c2, 2*c2+2):
                    rb = 16 + 8*c4
                    e(f"s_waitcnt lgkmcnt({6-4*(c4%2)})")
                    self.mfma(72+8*c4, rb, 64, "0")
                    e(f"s_waitcnt lgkmcnt({4-4*(c4%2)})")
                    self.mfma(76+8*c4, rb+4, 64, "0")
            self.nop(8)
            for c4 in range(4):
                ct = 4*half + c4
                a = 72 + 8*c4
                rb = 104 + 4*c4
                e(f"v_add_f32_dpp v56, v{a+4}, v{a} row_ror:8 row_mask:0xf bank_mask:0xf")
                e(f"v_add_f32_dpp v57, v{a+5}, v{a+1} row_ror:8 row_mask:0xf bank_mask:0xf")
                e(f"v_add_f32_dpp v58, v{a+2}, v{a+6} row_ror:8 row_mask:0xf bank_mask:0xf")
                e(f"v_add_f32_dpp v59, v{a+3}, v{a+7} row_ror:8 row_mask:0xf bank_mask:0xf")
                e(f"v_cndmask_b32 v{rb}, v58, v56, s[58:59]"); e(f"v_mov_b32 v{rb+1}, s34")
                e(f"v_cndmask_b32 v{rb+2}, v59, v57, s[58:59]"); e(f"v_mov_b32 v{rb+3}, s34")
                e(f"v_add_u32 v55, {ct*4096}, v54")
                e(f"global_store_dwordx4 v55, v[{rb}:{rb+3}], s[26:27] sc1")
            self.nop(2)
        self.stamp(2)
        self.lab("L_final")
        self.wait_lds_ge(F_LAND, "s37")
        loads = [f"global_load_dwordx4 v[{16+4*t}:{19+4*t}], v11, s[26:27] offset:{t*1024} sc1" for t in range(3)]
        loads += ["s_mov_b32 exec_hi, 0", "global_load_dwordx4 v[28:31], v11, s[26:27] offset:3072 sc1"]
        pre = ["v_mov_b32 v28, 0", "v_mov_b32 v29, s34", "v_mov_b32 v30, 0", "v_mov_b32 v31, s34"]
        self.poll(loads, [f"v{17+2*i}" for i in range(8)], "v12", "v13", sleep=4, pre=pre)
        self.stamp(3)
        e("v_add_f32 v32, v16, v20"); e("v_add_f32 v33, v18, v22"); e("v_add_f32 v34, v24, v28"); e("v_add_f32 v35, v26, v30")
        e("v_add_f32 v32, v32, v34"); e("v_add_f32 v33, v33, v35")
        self.nop(2)
        e("v_add_f32_dpp v32, v32, v32 row_ror:8 row_mask:0xf bank_mask:0xf"); e("v_add_f32_dpp v33, v33, v33 row_ror:8 row_mask:0xf bank_mask:0xf")
        self.xg_reduce(["v32", "v33"], "v_add_f32", ["v34", "v35"])
        e("v_cvt_pk_bf16_f32 v34, v32, v33"); e("v_lshlrev_b32 v32, 16, v34"); e("v_and_b32 v33, 0xffff0000, v34")
        self.silu("v32", "v32", "v34"); self.silu("v33", "v33", "v34")
        e("v_cvt_pk_bf16_f32 v34, v32, v33"); e("v_lshlrev_b32 v32, 16, v34"); e("v_and_b32 v33, 0xffff0000, v34")
        e("v_lshlrev_b32 v8, 16, v7"); e("v_and_b32 v9, 0xffff0000, v7")
        loads = [f"global_load_dwordx4 v[{16+4*t}:{19+4*t}], v10, s[26:27] offset:{t*1024} sc1" for t in range(4)]
        self.wait_lds_ge(F_RED, 4)
        if self.opt.get("sdelay", 0):
            e(f"s_sleep {self.opt['sdelay']}")
        self.poll(loads, [f"v{17+2*i}" for i in range(8)], "v12", "v13", sleep=self.opt.get("ssleep", 2))
        self.stamp(4)
        e("v_add_f32 v36, v16, v20"); e("v_add_f32 v37, v18, v22"); e("v_add_f32 v34, v24, v28"); e("v_add_f32 v35, v26, v30")
        e("v_add_f32 v36, v36, v34"); e("v_add_f32 v37, v37, v35")
        self.nop(2)
        e("v_add_f32_dpp v36, v36, v36 row_ror:8 row_mask:0xf bank_mask:0xf"); e("v_add_f32_dpp v37, v37, v37 row_ror:8 row_mask:0xf bank_mask:0xf")
        self.xg_reduce(["v36", "v37"], "v_add_f32", ["v34", "v35"])
        e("v_cvt_pk_bf16_f32 v34, v36, v37"); e("v_lshlrev_b32 v36, 16, v34"); e("v_and_b32 v37, 0xffff0000, v34")
        e("v_mul_f32 v36, v36, v32"); e("v_mul_f32 v37, v37, v33")
        e("v_cvt_pk_bf16_f32 v34, v36, v37"); e("v_lshlrev_b32 v36, 16, v34"); e("v_and_b32 v37, 0xffff0000, v34")
        e("v_add_f32 v36, v36, v8"); e("v_add_f32 v37, v37, v9")
        e("v_cvt_pk_bf16_f32 v34, v36, v37")
        e("s_mov_b64 exec, 0xff")
        e("global_store_dword v6, v34, s[22:23]")
        e("s_cmp_lg_u32 s2, 0"); e("s_cbranch_scc1 L_noep")
        e("s_mov_b64 exec, 1")
        e("v_mov_b32 v35, s34"); e("v_mov_b32 v36, 0")
        e("global_store_dword v36, v35, s[26:27] sc1")
        if self.opt.get("dbg"):
            e("s_memrealtime s[84:85]"); e("s_memtime s[86:87]"); e("s_waitcnt lgkmcnt(0)")
            e("s_sub_u32 s84, s84, s80"); e("s_sub_u32 s86, s86, s82")
            e("v_mov_b32 v40, s84"); e("v_mov_b32 v41, s86")
            e("global_store_dwordx2 v36, v[40:41], s[24:25]")
        self.lab("L_noep")
        e("s_mov_b64 exec, -1")
        self.stamp(5)
        self.stamp_flush()

    def build(self):
        hdr = open("recurrent_scan__sliding_block_cached__swiglu_ffn__decode.s.ref").read().split("\n")
        out = []
        for line in hdr:
            if line.startswith("; @launch"):
                out.append(f"; @launch grid=(256,1,1) block=(384,1,1) lds={LDS_BYTES}")
            elif line.startswith(";"):
                out.append(line)
            else:
                break
        out += ['.amdgcn_target "amdgcn-amd-amdhsa--gfx950"', ".text", f".globl {NAME}", ".p2align 8", f".type {NAME},@function", f"{NAME}:"]
        self.prologue()
        self.cwave()
        self.loader()
        self.fwave()
        self.lab("L_end")
        self.e("s_endpgm")
        out += self.L
        out += ['.section .rodata,"a"', ".p2align 6", f".amdhsa_kernel {NAME}",
                "  .amdhsa_next_free_vgpr 128", "  .amdhsa_next_free_sgpr 102", "  .amdhsa_accum_offset 128",
                "  .amdhsa_group_segment_fixed_size 0", "  .amdhsa_kernarg_size 96", "  .amdhsa_user_sgpr_count 2",
                "  .amdhsa_user_sgpr_kernarg_segment_ptr 1", "  .amdhsa_system_sgpr_workgroup_id_x 1", ".end_amdhsa_kernel", ""]
        return "\n".join(out)

if __name__ == "__main__":
    import argparse
    ap = argparse.ArgumentParser()
    ap.add_argument("-o", default="recurrent_scan__sliding_block_cached__swiglu_ffn__decode.s")
    ap.add_argument("--depth", type=int, default=24)
    ap.add_argument("--stamps", action="store_true")
    ap.add_argument("--opt", default="")
    a = ap.parse_args()
    opt = {}
    for kv in a.opt.split(","):
        if kv:
            k, v = kv.split("="); opt[k] = int(v)
    g = G(depth=a.depth, stamps=a.stamps, opt=opt)
    open(a.o, "w").write(g.build())
    print("wrote", a.o, len(g.L), "lines")
```

```python
import sys, struct

NAME = "recurrent_scan__sliding_block_cached__swiglu_ffn__decode_kernel"

WS_EPOCH = 0
QBUF = 0x10000
STBUF = 0x90000
OBUF = 0xA0000
GUBUF = 0x120000
SBUF = 0x200000
FBUF = 0x300000
DBG = 0x800000

R_K = 0
R_V = 65536
R_Q = 131072
MISC = 147456
XN = MISC
QF = MISC + 8192
PB = MISC + 12288
FLG = MISC + 14336
F_LAND, F_XN, F_QDONE, F_QF, F_MAX, F_P, F_GUDONE, F_RED, F_SCL, F_MISM = [FLG + 4*i for i in range(10)]
WMAX = FLG + 64
WSUM = FLG + 128
TAGW = FLG + 192
SCL = FLG + 208
QST = FLG + 256
R_O = R_K
RED = R_K + 16384
R_GU = R_V + 32768
R_D = R_Q
LDS_BYTES = 163840
FPARK = [104, 106, 108, 110, 114, 116, 124, 126]

def f32(x):
    return "0x%08x" % struct.unpack("<I", struct.pack("<f", x))[0]

class G:
    def __init__(self, depth=24, stamps=False, spin_limit=1 << 20, opt=None):
        self.opt = opt or {}
        self.L = []
        self.depth = depth
        self.stamps = stamps
        self.uid = 0
        self.spin_limit = spin_limit
    def e(self, s):
        self.L.append("    " + s)
    def lab(self, s):
        self.L.append(s + ":")
    def newlab(self, p="L"):
        self.uid += 1
        return f"{p}_{self.uid}"
    def c(self, s):
        self.L.append("    ; " + s)
    def nop(self, n):
        while n > 0:
            k = min(n, 16)
            self.e(f"s_nop {k-1}")
            n -= k
    def stamp(self, k):
        if not self.stamps:
            return
        if self.opt.get("lite") and (self.role, k) not in (("F", 0), ("F", 5), ("C", 9), ("C", 11), ("C", 12), ("L", 5), ("L", 3), ("L", 2), ("C", 5), ("C", 7)):
            return
        self.e("s_memrealtime s[90:91]")
        self.e("s_waitcnt lgkmcnt(0)")
        self.e("v_mov_b32 v120, s90")
        self.e(f"v_writelane_b32 v121, s90, {k}")
        if not self.opt.get("lite"):
            self.e("s_memtime s[90:91]")
            self.e("s_waitcnt lgkmcnt(0)")
            self.e(f"v_writelane_b32 v121, s90, {32+k}")
    def stop(self, n):
        if self.opt.get("stop") == n:
            self.stamp_flush()
            self.e("s_endpgm")
    def stamp_flush(self):
        if not self.stamps:
            return
        self.e("s_mov_b64 exec, -1")
        self.e("global_store_dword v122, v121, s[26:27]")
        self.e("s_waitcnt vmcnt(0)")

    def wait_lds_ge(self, flag, val, vaddr="v3", vtmp="v4", stmp="s60", sleep=1, onfail=None):
        l0 = self.newlab("WL"); l1 = self.newlab("WD")
        self.e("s_mov_b32 s61, 0")
        self.lab(l0)
        self.e(f"ds_read_b32 {vtmp}, {vaddr} offset:{flag - FLG}")
        self.e("s_waitcnt lgkmcnt(0)")
        self.e(f"v_readfirstlane_b32 {stmp}, {vtmp}")
        self.e("s_add_u32 s61, s61, 1")
        self.e(f"s_cmp_ge_i32 {stmp}, {val}")
        self.e(f"s_cbranch_scc1 {l1}")
        if onfail: onfail()
        if sleep:
            self.e(f"s_sleep {sleep}")
        self.e(f"s_cmp_lt_u32 s61, {self.spin_limit}")
        self.e(f"s_cbranch_scc1 {l0}")
        self.lab(l1)
    def lds_inc(self, flag, vaddr="v3", vone="v5"):
        self.e("s_mov_b64 exec, 1")
        self.e(f"ds_add_u32 {vaddr}, {vone} offset:{flag - FLG}")
        self.e("s_mov_b64 exec, -1")

    def allreduce(self, regs, op, tmp):
        for sh in (8, 4, 2, 1):
            self.nop(2 if len(regs) < 3 else 1)
            for r in regs:
                self.e(f"{op}_dpp {r}, {r}, {r} row_ror:{sh} row_mask:0xf bank_mask:0xf")
        self.xg_reduce(regs, op, tmp)
    def xg_reduce(self, regs, op, tmp):
        for sw in ("v_permlane16_swap_b32", "v_permlane32_swap_b32"):
            for r, t in zip(regs, tmp):
                self.e(f"v_mov_b32 {t}, {r}")
            self.nop(2)
            for r, t in zip(regs, tmp):
                self.e(f"{sw} {r}, {t}")
            self.nop(1)
            for r, t in zip(regs, tmp):
                self.e(f"{op} {r}, {r}, {t}")

    def tagcheck(self, tagregs, acc, t2, stag="s34", t3="v119", sm="s[64:65]"):
        first = True
        i = 0
        while i < len(tagregs):
            if first:
                self.e(f"v_xor_b32 {acc}, {stag}, {tagregs[i]}"); i += 1; first = False
            elif i + 1 < len(tagregs):
                self.e(f"v_xor_b32 {t2}, {stag}, {tagregs[i]}")
                self.e(f"v_xor_b32 {t3}, {stag}, {tagregs[i+1]}")
                self.e(f"v_or3_b32 {acc}, {acc}, {t2}, {t3}")
                i += 2
            else:
                self.e(f"v_xor_b32 {t2}, {stag}, {tagregs[i]}")
                self.e(f"v_or_b32 {acc}, {acc}, {t2}")
                i += 1
        self.e(f"v_cmp_ne_u32 {sm}, 0, {acc}")
        self.e(f"s_cmp_eq_u64 {sm}, 0")

    def repub(self, stores, cond="vland", sflag="s70", niter=3):
        e = self.e
        ls = self.newlab("RP")
        e(f"s_cmp_lg_u32 {sflag}, 0"); e(f"s_cbranch_scc1 {ls}")
        if cond == "vland":
            e(f"ds_read_b32 v4, v3 offset:{F_LAND-FLG}"); e("s_waitcnt lgkmcnt(0)"); e("v_readfirstlane_b32 s60, v4")
            e("s_add_u32 s71, s36, 64"); e("s_cmp_ge_i32 s60, s71"); e(f"s_cbranch_scc0 {ls}")
        elif cond == "iter":
            e(f"s_cmp_ge_u32 s61, {niter}"); e(f"s_cbranch_scc0 {ls}")
        e(f"s_mov_b32 {sflag}, 1")
        for st in stores: e(st)
        self.lab(ls)

    def poll(self, loads, tagregs, acc, t2, sleep=2, pre=None, skip_first=False, onfail=None, check=None):
        l0 = self.newlab("PL"); l1 = self.newlab("PD"); lc = self.newlab("PC")
        self.e("s_mov_b32 s61, 0")
        if pre:
            for p in pre: self.e(p)
        if skip_first:
            self.e(f"s_branch {lc}")
        else:
            self.e("s_mov_b64 s[64:65], -1")
        self.lab(l0)
        self.e("s_mov_b64 exec, s[64:65]")
        for s in loads:
            self.e(s)
        self.e("s_mov_b64 exec, -1")
        self.lab(lc)
        self.e("s_waitcnt vmcnt(0)")
        if check: check()
        else: self.tagcheck(tagregs, acc, t2)
        self.e(f"s_cbranch_scc1 {l1}")
        self.e("s_add_u32 s61, s61, 1")
        if onfail: onfail()
        if sleep:
            self.e(f"s_sleep {sleep}")
        self.e(f"s_cmp_lt_u32 s61, {self.spin_limit >> 3}")
        self.e(f"s_cbranch_scc1 {l0}")
        self.lab(l1)

    def mfma(self, d, a, b, c=None):
        cc = f"v[{d}:{d+3}]" if c is None else c
        self.e(f"v_mfma_f32_16x16x32_bf16 v[{d}:{d+3}], v[{a}:{a+3}], v[{b}:{b+3}], {cc}")

    def bf16r(self, dst, src, tmp=None):
        self.e(f"v_cvt_pk_bf16_f32 {dst}, {src}, {src}")
        self.e(f"v_lshlrev_b32 {dst}, 16, {dst}")

    def silu(self, dst, x, t):
        self.e(f"v_mul_f32 {t}, {f32(-1.4426950408889634)}, {x}")
        self.e(f"v_exp_f32 {t}, {t}")
        self.nop(1)
        self.e(f"v_add_f32 {t}, 1.0, {t}")
        self.e(f"v_rcp_f32 {t}, {t}")
        self.nop(1)
        self.e(f"v_mul_f32 {dst}, {x}, {t}")

    def prologue(self):
        e = self.e
        e("s_cmp_ge_u32 s2, 256")
        e("s_cbranch_scc1 L_end")
        e("s_load_dwordx16 s[4:19], s[0:1], 0")
        e("s_load_dwordx8 s[20:27], s[0:1], 64")
        e("v_lshrrev_b32 v1, 6, v0")
        e("v_and_b32 v0, 63, v0")
        e("s_and_b32 s28, s2, 7")
        e("v_readfirstlane_b32 s32, v1")
        e("s_lshr_b32 s29, s2, 3")
        e("s_lshr_b32 s30, s29, 2")
        e("s_and_b32 s31, s29, 3")
        e("s_bfe_u32 s33, s29, 0x10001")
        e("s_cmp_ge_u32 s29, 16"); e("s_cselect_b32 s33, 2, s33")
        e("s_cmp_eq_u32 s28, 7"); e("s_cselect_b32 s33, 3, s33")
        e("s_bfe_u32 s68, s29, 0x20002"); e("s_lshl_b32 s69, s28, 2"); e("s_add_u32 s68, s68, s69"); e("s_and_b32 s69, s29, 3")
        e("s_mov_b32 s70, 0")
        e("s_getreg_b32 s74, hwreg(HW_REG_XCC_ID)"); e("s_and_b32 s74, s74, 15"); e("s_lshl_b32 s74, s74, 28")
        e("s_cmp_lt_u32 s33, 2")
        e("s_cselect_b32 s35, 48, 16")
        e("s_cselect_b32 s38, 48, 0x60")
        e("s_add_u32 s36, s35, 64")
        e("s_cmp_eq_u32 s33, 2")
        if self.opt.get("dlate", 1):
            e("s_cselect_b32 s38, 0xb0, s38")
            e("s_add_u32 s37, s36, 0x50")
            e("s_cmp_eq_u32 s33, 2")
            e("s_cselect_b32 s55, 0xb0, s37")
        else:
            e("s_cselect_b32 s36, 0x60, s36")
            e("s_add_u32 s37, s36, 0x50")
            e("s_mov_b32 s55, s37")
        if self.opt.get("stag", 1):
            e("s_mul_i32 s39, s2, 0x9e3779b1"); e("s_lshr_b32 s39, s39, 26")
        else:
            e("s_mov_b32 s39, 0")
        e(f"v_mov_b32 v3, {FLG}")
        e("v_mov_b32 v5, 1")
        e("s_mov_b32 s58, 0x00ff00ff"); e("s_mov_b32 s59, 0x00ff00ff")
        if self.stamps:
            e("v_mov_b32 v121, 0")
            e("s_lshl_b32 s92, s2, 3"); e("s_add_u32 s92, s92, s32"); e("s_lshl_b32 s92, s92, 8"); e(f"s_add_u32 s92, s92, {DBG}")
            e("v_lshlrev_b32 v122, 2, v0"); e("v_add_u32 v122, s92, v122")
        e("s_cmp_eq_u32 s32, 4"); e("s_cbranch_scc1 L_loader")
        e("s_cmp_eq_u32 s32, 5"); e("s_cbranch_scc1 L_fwave")
        e("s_cmp_eq_u32 s32, 6"); e("s_cbranch_scc1 L_swave")

    def setdepth(self, Dold, Dnew):
        if Dnew != Dold:
            self.e(f"s_add_u32 s47, s47, {Dold - Dnew}")
    def seg(self, base, nrec, soff_code, step, lds, count, voffs, first=False, xor=False, D=None, t0=0):
        e = self.e
        D = D or self.depth
        e(f"s_mov_b32 s40, s{base}"); e(f"s_and_b32 s41, s{base+1}, 0xffff"); e(f"s_mov_b32 s42, {nrec}"); e("s_mov_b32 s43, 0x20000")
        for s in soff_code: e(s)
        if xor:
            e("s_lshl_b32 s45, s39, 10")
            e(f"s_mov_b32 s49, {t0*1024}")
        else:
            e(f"s_mov_b32 s45, {lds}")
        e(f"s_mov_b32 s46, {count//4}")
        l0 = self.newlab("SEG")
        self.lab(l0)
        for u in range(4):
            if xor:
                e("s_xor_b32 s48, s49, s45")
                e("s_add_u32 s54, s44, s48")
            if not first:
                e(f"s_waitcnt vmcnt({D-1})")
                e("v_mov_b32 v20, s47")
                e(f"ds_write_b32 v3, v20 offset:{F_LAND-FLG}")
            if xor:
                e(f"s_add_u32 m0, s48, {lds}")
                e("s_add_u32 s47, s47, 1")
                e(f"buffer_load_dwordx4 {voffs[u]}, s[40:43], s54 offen nt lds")
                e("s_add_u32 s49, s49, 1024")
            else:
                e("s_mov_b32 m0, s45")
                e("s_add_u32 s47, s47, 1")
                e(f"buffer_load_dwordx4 {voffs[u]}, s[40:43], s44 offen nt lds")
                e("s_add_u32 s45, s45, 1024")
                e(f"s_add_u32 s44, s44, {step}")
        e("s_sub_u32 s46, s46, 1")
        e("s_cmp_lg_u32 s46, 0")
        e(f"s_cbranch_scc1 {l0}")

    def loader(self):
        self.role = "L"
        e = self.e
        D = self.depth
        assert D >= 17
        stop = self.opt.get("stop")
        self.lab("L_loader")
        e("s_setprio 3")
        e("v_mov_b32 v20, 0")
        e("v_lshlrev_b32 v21, 2, v0"); e(f"v_add_u32 v21, {FLG}, v21")
        e("ds_write_b32 v21, v20")
        e("v_lshrrev_b32 v6, 4, v0")
        e("v_lshrrev_b32 v7, 3, v0")
        e("v_and_b32 v8, 1, v0"); e("v_lshlrev_b32 v8, 4, v8")
        e("v_bfe_u32 v9, v0, 1, 2"); e("v_xor_b32 v9, v9, v6"); e("v_lshl_or_b32 v9, v9, 5, v8")
        e("v_lshl_add_u32 v10, v7, 13, v9")
        e(f"s_mov_b32 s47, {-(D-1)}")
        e("s_waitcnt lgkmcnt(0)")
        self.stamp(0)
        self.seg(10, 4 << 20, ["s_lshr_b32 s44, s29, 3", "s_lshl_b32 s44, s44, 20", "s_lshl_b32 s48, s28, 10", "s_add_u32 s44, s44, s48",
                               "s_and_b32 s48, s29, 7", "s_lshl_b32 s48, s48, 7", "s_add_u32 s44, s44, s48"],
                 65536, R_Q, 16, ["v10"]*4, first=True)
        e("s_barrier")
        self.stamp(1)
        e("v_and_b32 v11, 15, v0"); e("v_xor_b32 v11, v11, v6"); e("v_lshlrev_b32 v11, 4, v11"); e("v_lshl_add_u32 v11, v6, 8, v11")
        e("s_and_b32 s48, s39, 3"); e("s_lshl_b32 s48, s48, 6"); e("v_xor_b32 v11, s48, v11")
        e("v_xor_b32 v12, 64, v11"); e("v_xor_b32 v13, 0x80, v11"); e("v_xor_b32 v14, 0xc0, v11")
        e("v_bfe_u32 v15, v0, 1, 3"); e("v_xor_b32 v15, v15, v6"); e("v_lshl_or_b32 v15, v15, 5, v8")
        e("v_lshl_add_u32 v16, v6, 8, v15")
        e("s_and_b32 s48, s39, 1"); e("s_lshl_b32 s48, s48, 7"); e("v_xor_b32 v16, s48, v16")
        e("v_xor_b32 v17, 0x80, v16")
        e("v_lshl_add_u32 v18, v6, 10, v15"); e("v_xor_b32 v19, 0x80, v18")
        e("v_lshl_add_u32 v22, v7, 10, v9")
        e("s_movk_i32 s48, 3584"); e("v_mul_lo_u32 v23, v7, s48"); e("v_add_u32 v23, v23, v9")
        e("s_lshl_b32 s50, s30, 3"); e("s_add_u32 s50, s50, s28"); e("s_lshl_b32 s50, s50, 20")
        e("s_lshl_b32 s48, s31, 16"); e("s_add_u32 s50, s50, s48"); e("s_add_u32 s50, s50, 786432")
        DG = self.opt.get("dg", D); DE = self.opt.get("de", D); VS = self.opt.get("vsplit", 32)
        dlate = self.opt.get("dlate", 1)
        oseg = ["s_lshl_b32 s44, s28, 2", "s_lshr_b32 s48, s29, 3", "s_add_u32 s44, s44, s48", "s_lshl_b32 s44, s44, 17",
                "s_and_b32 s48, s29, 7", "s_lshl_b32 s48, s48, 7", "s_add_u32 s44, s44, s48"]
        dseg = ["s_lshl_b32 s44, s68, 16", "s_lshl_b32 s48, s69, 8", "s_add_u32 s44, s44, s48"]
        KV = ["v11", "v12", "v13", "v14"]; VV = ["v16", "v17", "v16", "v17"]
        e("s_cmp_lt_u32 s33, 2"); e("s_cbranch_scc0 L_noGU")
        e("s_cmp_eq_u32 s33, 0")
        e("s_cselect_b32 s52, s16, s18"); e("s_cselect_b32 s53, s17, s19")
        self.setdepth(D, DG)
        self.seg(52, 512*3584, ["s_and_b32 s44, s69, 1", f"s_mul_i32 s44, s44, {256*3584}", "s_lshl_b32 s48, s68, 7", "s_add_u32 s44, s44, s48"],
                 8*3584, R_GU, 32, ["v23"]*4, D=DG)
        self.seg(6, 64 << 20, ["s_mov_b32 s44, s50"], 1024, R_K, 64, KV, xor=True, D=DG)
        self.stamp(2)
        if not stop: self.wait_lds_ge(F_GUDONE, 1)
        self.seg(8, 64 << 20, ["s_mov_b32 s44, s50"], 1024, R_V, VS, VV, xor=True, D=DG)
        self.setdepth(DG, DE)
        e("s_branch L_vtail")
        self.lab("L_noGU")
        self.seg(6, 64 << 20, ["s_mov_b32 s44, s50"], 1024, R_K, 64, KV, xor=True)
        self.stamp(2)
        if not dlate:
            e("s_cmp_eq_u32 s33, 2"); e("s_cbranch_scc0 L_noD")
            if not stop: self.wait_lds_ge(F_QDONE, 2)
            self.seg(20, 1792*1024, dseg, 4096, R_D, 16, ["v18", "v19", "v18", "v19"])
            self.lab("L_noD")
        self.seg(8, 64 << 20, ["s_mov_b32 s44, s50"], 1024, R_V, VS, VV, xor=True)
        self.setdepth(D, DE)
        self.lab("L_vtail")
        self.seg(8, 64 << 20, ["s_mov_b32 s44, s50"], 1024, R_V, 64 - VS, VV, xor=True, D=DE, t0=VS)
        self.stamp(3)
        def qrepub(lazy=True):
            ls = self.newlab("QR")
            e("s_cmp_lg_u32 s70, 0"); e(f"s_cbranch_scc1 {ls}")
            if lazy:
                e("s_cmp_lt_u32 s61, 24"); e(f"s_cbranch_scc1 {ls}")
            else:
                e(f"ds_read_b32 v4, v3 offset:{F_MISM-FLG}"); e("s_waitcnt lgkmcnt(0)"); e("v_readfirstlane_b32 s76, v4")
                e("s_cmp_eq_u32 s76, 0"); e(f"s_cbranch_scc1 {ls}")
            e("s_mov_b32 s70, 1")
            e("s_mov_b32 s73, s61")
            self.wait_lds_ge(F_QDONE, 2)
            e("s_mov_b32 s61, s73")
            e(f"v_lshlrev_b32 v24, 3, v0"); e(f"v_add_u32 v24, {QST}, v24"); e("v_lshlrev_b32 v25, 2, v0"); e(f"v_add_u32 v25, {QST}, v25")
            e(f"ds_read_b32 v29, v3 offset:{TAGW-FLG}")
            e("ds_read_b64 v[26:27], v24"); e("ds_read_b32 v36, v25 offset:512")
            e("ds_read_b64 v[38:39], v24 offset:768"); e("ds_read_b32 v37, v25 offset:1280")
            e("s_waitcnt lgkmcnt(0)")
            e("v_mov_b32 v28, v26"); e("v_mov_b32 v30, v27"); e("v_xor_b32 v31, s74, v29")
            e("v_mov_b32 v32, v38"); e("v_mov_b32 v33, v29"); e("v_mov_b32 v34, v39"); e("v_xor_b32 v35, s74, v29")
            e("global_store_dwordx4 v36, v[28:31], s[26:27] sc1")
            e("global_store_dwordx4 v37, v[32:35], s[26:27] sc1")
            self.lab(ls)
        if not stop: self.wait_lds_ge(F_P, 4, onfail=qrepub)
        self.seg(12, 4 << 20, oseg, 8192, R_O, 16, ["v22"]*4, D=DE)
        if dlate:
            e("s_cmp_eq_u32 s33, 2"); e("s_cbranch_scc0 L_noD")
            if not stop: self.wait_lds_ge(F_QDONE, 2)
            self.seg(20, 1792*1024, dseg, 4096, R_D, 16, ["v18", "v19", "v18", "v19"], D=DE)
            self.lab("L_noD")
        self.stamp(4)
        ks = [k for k in range(DE-1, -1, -1) if (k % 8 == 0)]
        for k in ks:
            e(f"s_waitcnt vmcnt({k})")
            e(f"s_sub_u32 s48, s55, {k}")
            e("v_mov_b32 v20, s48")
            e(f"ds_write_b32 v3, v20 offset:{F_LAND-FLG}")
        self.stamp(5)
        if not stop: qrepub(lazy=False)
        self.stamp_flush()
        e("s_endpgm")

    def cwave(self):
        self.role = "C"
        e = self.e
        e("s_lshl_b32 s48, s32, 11")
        e("v_lshlrev_b32 v6, 4, v0"); e("v_add_u32 v6, s48, v6")
        e("v_and_b32 v1, 15, v0")
        e("v_lshrrev_b32 v2, 4, v0")
        e("s_waitcnt lgkmcnt(0)")
        xnt = " nt" if self.opt.get("xnt") else ""
        e("global_load_dwordx4 v[8:11], v6, s[4:5]" + xnt)
        e("global_load_dwordx4 v[12:15], v6, s[4:5] offset:1024" + xnt)
        e("s_load_dword s34, s[26:27], 0")
        self.stamp(0)
        e("s_barrier")
        e("v_lshrrev_b32 v6, 2, v0"); e("v_lshlrev_b32 v6, 9, v6")
        e("v_and_b32 v7, 1, v0"); e("v_lshl_add_u32 v6, v7, 8, v6")
        e("v_bfe_u32 v7, v0, 1, 1"); e("v_lshl_add_u32 v6, v7, 3, v6")
        e("s_lshl_b32 s48, s32, 5"); e(f"s_add_u32 s48, s48, {XN}"); e("v_add_u32 v6, s48, v6")
        e("v_lshrrev_b32 v48, 2, v0")
        e("v_and_b32 v49, 3, v0"); e("v_lshlrev_b32 v49, 3, v49")
        e("v_bfe_u32 v50, v0, 3, 2"); e("v_lshl_or_b32 v50, v50, 5, v49"); e("v_lshl_add_u32 v50, v48, 7, v50")
        e("v_and_b32 v51, 7, v48"); e("v_lshl_or_b32 v51, v51, 5, v49"); e("v_lshl_add_u32 v51, v48, 8, v51")
        e("v_and_b32 v112, 7, v0")
        e("v_bfe_u32 v113, v0, 3, 1")
        e("v_and_b32 v114, 3, v0")
        e("v_lshlrev_b32 v52, 4, v112"); e("v_lshl_add_u32 v52, v2, 7, v52")
        e("s_lshr_b32 s49, s29, 3")
        e("s_lshl_b32 s48, s49, 11"); e(f"s_add_u32 s48, s48, {XN}"); e("v_add_u32 v52, s48, v52")
        e("s_lshl_b32 s48, s32, 6"); e("s_and_b32 s48, s48, 0x60"); e("v_xor_b32 v53, s48, v50"); e(f"v_add_u32 v53, {R_Q}, v53"); e("v_xor_b32 v115, 32, v53")
        e("s_lshl_b32 s48, s28, 5"); e("s_add_u32 s48, s48, s49"); e("s_lshl_b32 s48, s48, 11")
        e("s_and_b32 s50, s29, 7"); e("s_lshl_b32 s50, s50, 8"); e("s_add_u32 s48, s48, s50")
        e("s_lshl_b32 s50, s32, 7"); e("s_add_u32 s48, s48, s50"); e(f"s_add_u32 s48, s48, {QBUF}")
        e("v_lshlrev_b32 v54, 13, v112"); e("v_lshl_add_u32 v54, v113, 6, v54"); e("v_lshl_add_u32 v54, v2, 4, v54"); e("v_add_u32 v54, s48, v54")
        e("s_lshl_b32 s48, s28, 3"); e("s_add_u32 s48, s48, s30"); e("s_lshl_b32 s48, s48, 13")
        e("s_add_u32 s48, s48, s50"); e(f"s_add_u32 s48, s48, {QBUF}")
        e("v_lshrrev_b32 v55, 2, v1"); e("v_lshlrev_b32 v55, 11, v55")
        e("v_lshl_add_u32 v55, v114, 9, v55"); e("v_lshl_add_u32 v55, v2, 5, v55"); e("v_add_u32 v55, s48, v55")
        e("s_waitcnt vmcnt(0)")
        self.stamp(1)
        self.stop(1)
        for rb, src in ((16, 8), (24, 12)):
            for i in range(4):
                e(f"v_lshlrev_b32 v{rb+2*i}, 16, v{src+i}")
                e(f"v_and_b32 v{rb+2*i+1}, 0xffff0000, v{src+i}")
        for rb, d in ((16, 32), (24, 33)):
            e(f"v_add_f32 v{d}, v{rb}, v{rb+1}")
            e(f"v_add_f32 v34, v{rb+2}, v{rb+3}")
            e(f"v_add_f32 v35, v{rb+4}, v{rb+5}")
            e(f"v_add_f32 v36, v{rb+6}, v{rb+7}")
            e(f"v_add_f32 v{d}, v{d}, v34"); e("v_add_f32 v35, v35, v36"); e(f"v_add_f32 v{d}, v{d}, v35")
        self.allreduce(["v32", "v33"], "v_add_f32", ["v34", "v35"])
        e(f"v_mul_f32 v32, {f32(1/512)}, v32"); e(f"v_mul_f32 v33, {f32(1/512)}, v33")
        for rb, m, d in ((16, 32, 36), (24, 33, 37)):
            e(f"v_sub_f32 v38, v{rb}, v{m}"); e(f"v_mul_f32 v{d}, v38, v38")
            for i in range(1, 8):
                e(f"v_sub_f32 v38, v{rb+i}, v{m}"); e(f"v_fmac_f32 v{d}, v38, v38")
        self.allreduce(["v36", "v37"], "v_add_f32", ["v34", "v35"])
        e(f"v_mul_f32 v36, {f32(1/512)}, v36"); e(f"v_mul_f32 v37, {f32(1/512)}, v37")
        for m, v in ((32, 36), (33, 37)):
            e(f"v_cvt_pk_bf16_f32 v38, v{m}, v{v}")
            e(f"v_lshlrev_b32 v{m}, 16, v38")
            e(f"v_and_b32 v{v}, 0xffff0000, v38")
            e(f"v_add_f32 v{v}, {f32(1e-5)}, v{v}")
            self.bf16r(f"v{v}", f"v{v}")
            e(f"v_sqrt_f32 v{v}, v{v}")
            self.nop(1)
            self.bf16r(f"v{v}", f"v{v}")
            e(f"v_rcp_f32 v{v}, v{v}")
            self.nop(1)
        for rb, m, v, out in ((16, 32, 36, 40), (24, 33, 37, 44)):
            for i in range(4):
                e(f"v_sub_f32 v38, v{rb+2*i}, v{m}"); e(f"v_sub_f32 v39, v{rb+2*i+1}, v{m}")
                e("v_cvt_pk_bf16_f32 v38, v38, v39")
                e("v_and_b32 v39, 0xffff0000, v38"); e("v_lshlrev_b32 v38, 16, v38")
                e(f"v_mul_f32 v38, v38, v{v}"); e(f"v_mul_f32 v39, v39, v{v}")
                e(f"v_cvt_pk_bf16_f32 v{out+i}, v38, v39")
        e("ds_write_b64 v6, v[40:41]"); e("ds_write_b64 v6, v[42:43] offset:128")
        e("ds_write_b64 v6, v[44:45] offset:16"); e("ds_write_b64 v6, v[46:47] offset:144")
        e("s_waitcnt lgkmcnt(0)")
        e("s_add_u32 s34, s34, 1")
        e("s_xor_b32 s75, s34, s74")
        e("v_mov_b32 v125, s34"); e("v_mov_b32 v127, s75")
        e(f"ds_write_b32 v3, v125 offset:{TAGW-FLG}")
        e("s_waitcnt lgkmcnt(0)")
        self.lds_inc(F_XN)
        self.stamp(2)
        e("s_cmp_lt_u32 s32, 2"); e("s_cbranch_scc0 L_noq")
        self.wait_lds_ge(F_XN, 4, sleep=0)
        for j in range(4):
            e(f"ds_read_b128 v[{64+4*j}:{67+4*j}], v52 offset:{j*512}")
        self.wait_lds_ge(F_LAND, 16, sleep=0)
        self.stamp(3)
        for j in range(4):
            e(f"ds_read_b64_tr_b16 v[{80+4*j}:{81+4*j}], v53 offset:{(32*j)*128}")
            e(f"ds_read_b64_tr_b16 v[{82+4*j}:{83+4*j}], v53 offset:{(32*j+16)*128}")
        for j in range(3):
            e(f"ds_read_b64_tr_b16 v[{16+4*j}:{17+4*j}], v115 offset:{(32*j)*128}")
            e(f"ds_read_b64_tr_b16 v[{18+4*j}:{19+4*j}], v115 offset:{(32*j+16)*128}")
        for j in range(4):
            e(f"s_waitcnt lgkmcnt({12-2*j})")
            self.mfma(96, 80+4*j, 64+4*j, "0" if j == 0 else None)
            if j == 0:
                e(f"ds_read_b64_tr_b16 v[28:29], v115 offset:{(96)*128}")
                e(f"ds_read_b64_tr_b16 v[30:31], v115 offset:{(112)*128}")
        for j in range(4):
            e(f"s_waitcnt lgkmcnt({6-2*j})")
            self.mfma(104, 16+4*j, 64+4*j, "0" if j == 0 else None)
        e("s_mul_i32 s48, s32, 768"); e(f"s_add_u32 s48, s48, {QST}")
        e("v_lshlrev_b32 v16, 3, v0"); e("v_add_u32 v16, s48, v16"); e("v_lshlrev_b32 v17, 2, v0"); e("v_add_u32 v17, s48, v17")
        self.nop(3)
        e("v_cvt_pk_bf16_f32 v96, v96, v97"); e("v_cvt_pk_bf16_f32 v98, v98, v99")
        e("v_cvt_pk_bf16_f32 v104, v104, v105"); e("v_cvt_pk_bf16_f32 v106, v106, v107")
        e("v_cndmask_b32 v124, v104, v96, s[58:59]"); e("v_cndmask_b32 v126, v106, v98, s[58:59]")
        e("global_store_dwordx4 v54, v[124:127], s[26:27]")
        e("v_mov_b32 v18, v124"); e("v_mov_b32 v19, v126")
        e("ds_write_b64 v16, v[18:19]"); e("ds_write_b32 v17, v54 offset:512")
        e("s_waitcnt lgkmcnt(0)")
        self.lds_inc(F_QDONE)
        self.lab("L_noq")
        self.stamp(4)
        self.stop(2)
        e("v_xor_b32 v58, v2, v1"); e("v_lshlrev_b32 v58, 4, v58"); e("v_lshl_add_u32 v58, v1, 8, v58")
        e("s_lshl_b32 s48, s32, 14"); e(f"s_add_u32 s48, s48, {R_K}"); e("v_add_u32 v58, s48, v58")
        e("v_xor_b32 v59, 64, v58"); e("v_xor_b32 v60, 0x80, v58"); e("v_xor_b32 v61, 0xc0, v58")
        e("v_lshlrev_b32 v56, 4, v0"); e(f"v_add_u32 v56, {QF}, v56")
        e("s_lshl_b32 s48, s32, 10"); e("v_add_u32 v57, s48, v56")
        self.wait_lds_ge(F_LAND, self.opt.get('qtrig', 64))
        def qcheck():
            e("v_xor_b32 v72, s34, v65"); e("v_xor_b32 v73, s34, v69")
            e("v_xor_b32 v74, s75, v67"); e("v_xor_b32 v75, s75, v71")
            e("v_or_b32 v74, v74, v75"); e("v_and_b32 v75, 0x0fffffff, v74")
            e("v_or3_b32 v72, v72, v73, v75")
            e("v_cmp_ne_u32 s[64:65], 0, v72")
            e("s_cmp_eq_u64 s[64:65], 0")
        self.poll(["global_load_dwordx4 v[64:67], v55, s[26:27] sc1", "global_load_dwordx4 v[68:71], v55, s[26:27] offset:16 sc1"],
                  None, None, None, sleep=self.opt.get("qsleep", 8), check=qcheck)
        e("v_cmp_ne_u32 s[64:65], 0, v74")
        e("s_cmp_eq_u64 s[64:65], 0"); e("s_cbranch_scc1 L_samex")
        self.lds_inc(F_MISM)
        self.lab("L_samex")
        e("v_mov_b32 v65, v66"); e("v_mov_b32 v66, v68"); e("v_mov_b32 v67, v70")
        e("ds_write_b128 v57, v[64:67]")
        e("s_waitcnt lgkmcnt(0)")
        self.lds_inc(F_QF)
        self.stamp(5)
        self.stop(3)
        self.wait_lds_ge(F_QF, 4, sleep=0)
        e(f"ds_read_b32 v4, v3 offset:{F_MISM-FLG}"); e("s_waitcnt lgkmcnt(0)"); e("v_readfirstlane_b32 s76, v4")
        for j in range(4):
            e(f"ds_read_b128 v[{64+4*j}:{67+4*j}], v56 offset:{j*1024}")
        e("s_lshr_b32 s48, s39, 4"); e("s_xor_b32 s48, s48, s32"); e("s_lshl_b32 s48, s48, 4"); e("s_add_u32 s48, s48, s35"); e("s_add_u32 s48, s48, 16")
        self.wait_lds_ge(F_LAND, "s48")
        self.stamp(6)
        kaddr = ["v58", "v59", "v60", "v61"]
        def kread(T):
            for j in range(4):
                e(f"ds_read_b128 v[{16+16*(T%2)+4*j}:{19+16*(T%2)+4*j}], {kaddr[j]} offset:{T*4096}")
        kread(0)
        for T in range(4):
            if T < 3: kread(T+1)
            for j in range(4):
                e(f"s_waitcnt lgkmcnt({(7 if T < 3 else 3)-j})")
                self.mfma(96+4*T, 16+16*(T%2)+4*j, 64+4*j, "0" if j == 0 else None)
        self.nop(8)
        S = [f"v{96+i}" for i in range(16)]
        for sh in (4, 8):
            for r in S:
                e(f"v_add_f32_dpp {r}, {r}, {r} row_ror:{sh} row_mask:0xf bank_mask:0xf")
        c1 = 128 ** -0.5 * 1.4426950408889634
        for r in S:
            e(f"v_mul_f32 {r}, {f32(c1)}, {r}")
        e("v_max3_f32 v16, v96, v97, v98")
        for i in range(3, 15, 2):
            e(f"v_max3_f32 v16, v16, v{96+i}, v{97+i}")
        e("v_max_f32 v16, v16, v111")
        self.xg_reduce(["v16"], "v_max_f32", ["v17"])
        e("v_lshlrev_b32 v18, 2, v114"); e(f"v_add_u32 v19, {FLG}, v18"); e("v_mov_b32 v57, v19")
        e("s_lshl_b32 s48, s32, 4"); e("v_add_u32 v18, s48, v19")
        e(f"ds_write_b32 v18, v16 offset:{WMAX-FLG}")
        e("s_waitcnt lgkmcnt(0)")
        self.lds_inc(F_MAX)
        self.wait_lds_ge(F_MAX, 4, sleep=0)
        for w in range(4):
            e(f"ds_read_b32 v{20+w}, v19 offset:{WMAX-FLG+16*w}")
        e("s_waitcnt lgkmcnt(0)")
        e("v_max3_f32 v62, v20, v21, v22"); e("v_max_f32 v62, v62, v23")
        for r in S:
            e(f"v_sub_f32 {r}, {r}, v62")
        for r in S:
            e(f"v_exp_f32 {r}, {r}")
        self.nop(1)
        e("v_add_f32 v16, v96, v97")
        for i in range(2, 16):
            e(f"v_add_f32 v16, v16, v{96+i}")
        self.xg_reduce(["v16"], "v_add_f32", ["v17"])
        e(f"ds_write_b32 v18, v16 offset:{WSUM-FLG}")
        for h in range(2):
            for i in range(4):
                e(f"v_cvt_pk_bf16_f32 v{24+4*h+i}, v{96+8*h+2*i}, v{97+8*h+2*i}")
        e("v_lshl_add_u32 v63, v2, 2, v114"); e("v_lshlrev_b32 v63, 4, v63"); e(f"v_add_u32 v63, {PB}, v63")
        e("s_lshl_b32 s48, s32, 9"); e("v_add_u32 v21, s48, v63")
        e("ds_write_b128 v21, v[24:27]"); e("ds_write_b128 v21, v[28:31] offset:256")
        e("s_waitcnt lgkmcnt(0)")
        self.lds_inc(F_P)
        self.stamp(7)
        e("s_lshr_b32 s52, s39, 3")
        e("s_lshl_b32 s48, s32, 6"); e("s_lshl_b32 s50, s52, 13"); e("s_or_b32 s48, s48, s50"); e(f"s_or_b32 s48, s48, {R_V}")
        e("v_xor_b32 v58, s48, v51")
        e("s_lshl_b32 s48, s52, 8"); e("v_xor_b32 v63, s48, v63")
        e("s_lshl_b32 s48, s28, 7"); e("s_lshl_b32 s50, s31, 3"); e("s_add_u32 s48, s48, s50"); e("s_add_u32 s48, s48, s30"); e("s_lshl_b32 s48, s48, 9")
        e("s_lshl_b32 s50, s32, 7"); e("s_add_u32 s48, s48, s50"); e(f"s_add_u32 s48, s48, {OBUF}")
        e("v_lshlrev_b32 v60, 14, v114"); e("v_bfe_u32 v61, v0, 2, 1"); e("v_lshl_add_u32 v60, v61, 6, v60"); e("v_lshl_add_u32 v60, v2, 4, v60"); e("v_add_u32 v60, s48, v60")
        e("s_lshl_b32 s48, s28, 2"); e("s_add_u32 s48, s48, s49"); e("s_lshl_b32 s48, s48, 14")
        e("s_add_u32 s48, s48, s50"); e(f"s_add_u32 s48, s48, {OBUF}")
        e("v_lshlrev_b32 v61, 9, v1"); e("v_lshl_add_u32 v61, v2, 4, v61"); e("v_add_u32 v61, s48, v61")
        e("v_add_u32 v56, 0x2000, v61")
        e("v_lshl_add_u32 v116, v2, 3, v112"); e("v_lshlrev_b32 v116, 4, v116"); e(f"v_add_u32 v116, {RED}, v116")
        e("s_lshl_b32 s48, s32, 11"); e("v_add_u32 v117, s48, v116")
        e("s_lshl_b32 s48, s32, 9"); e("v_add_u32 v118, s48, v116")
        e("s_and_b32 s48, s29, 7"); e("s_lshl_b32 s48, s48, 2"); e("s_add_u32 s48, s48, s32"); e("s_lshl_b32 s48, s48, 5")
        e("s_lshl_b32 s50, s28, 2"); e("s_add_u32 s48, s48, s50"); e("s_add_u32 s48, s48, s49"); e("s_lshl_b32 s48, s48, 7"); e(f"s_add_u32 s48, s48, {SBUF}")
        e("v_lshlrev_b32 v55, 17, v112"); e("v_lshl_add_u32 v55, v2, 5, v55"); e("v_lshl_add_u32 v55, v113, 4, v55"); e("v_add_u32 v55, s48, v55")
        e("s_lshl_b32 s48, s32, 12"); e(f"s_add_u32 s48, s48, {R_O}"); e("v_add_u32 v53, s48, v50")
        e("s_mov_b32 s56, 0x0f0f0f0f"); e("s_mov_b32 s57, 0x0f0f0f0f")
        self.wait_lds_ge(F_P, 4, sleep=0)
        for p in range(8):
            if p: e(f"v_xor_b32 v52, {p<<8}, v63")
            e(f"ds_read_b128 v[{64+4*p}:{67+4*p}], {'v52' if p else 'v63'}")
        spf = self.opt.get("statp", 5)
        for p in range(8):
            rb = 16 + 8*(p % 2)
            if p:
                e(f"v_xor_b32 v52, {p<<13}, v58")
            a0 = "v52" if p else "v58"
            e(f"v_xor_b32 v59, 32, {a0}")
            e(f"s_add_u32 s48, s36, {8*(p+1)}")
            self.wait_lds_ge(F_LAND, "s48", sleep=(0 if p >= 6 else 1))
            e(f"ds_read_b64_tr_b16 v[{rb}:{rb+1}], {a0}")
            e(f"ds_read_b64_tr_b16 v[{rb+2}:{rb+3}], {a0} offset:4096")
            e(f"ds_read_b64_tr_b16 v[{rb+4}:{rb+5}], v59")
            e(f"ds_read_b64_tr_b16 v[{rb+6}:{rb+7}], v59 offset:4096")
            e("s_waitcnt lgkmcnt(2)")
            self.mfma(96, rb, 64+4*p, "0" if p == 0 else None)
            e("s_waitcnt lgkmcnt(0)")
            self.mfma(100, rb+4, 64+4*p, "0" if p == 0 else None)
            if p == 6:
                self.wait_lds_ge(F_SCL, 1)
                e(f"ds_read_b32 v46, v57 offset:{SCL-FLG}")
                e("v_mov_b32 v41, s34"); e("v_mov_b32 v43, s34")
        self.stamp(8)
        self.nop(7)
        for i in range(8):
            e(f"v_mul_f32 v{96+i}, v{96+i}, v46")
        e("v_cvt_pk_bf16_f32 v96, v96, v97"); e("v_cvt_pk_bf16_f32 v98, v98, v99")
        e("v_cvt_pk_bf16_f32 v100, v100, v101"); e("v_cvt_pk_bf16_f32 v102, v102, v103")
        e("v_cndmask_b32 v40, v100, v96, s[56:57]"); e("v_cndmask_b32 v42, v102, v98, s[56:57]")
        e("s_mov_b64 exec, s[58:59]")
        e("s_cmp_eq_u32 s76, 0"); e("s_cbranch_scc0 L_osc1")
        e("global_store_dwordx4 v60, v[40:43], s[26:27]")
        e("s_branch L_opub")
        self.lab("L_osc1")
        e("global_store_dwordx4 v60, v[40:43], s[26:27] sc1")
        self.lab("L_opub")
        e("s_mov_b64 exec, -1")
        self.stamp(9)
        self.wait_lds_ge(F_LAND, "s37")
        for ct in range(4):
            if ct: e(f"v_xor_b32 v52, {ct<<5}, v53")
            a = "v53" if ct == 0 else "v52"
            e(f"ds_read_b64_tr_b16 v[{64+4*ct}:{65+4*ct}], {a}")
            e(f"ds_read_b64_tr_b16 v[{66+4*ct}:{67+4*ct}], {a} offset:2048")
        if self.opt.get("odelay", 0):
            e(f"s_sleep {self.opt['odelay']}")
        self.stamp(10)
        self.poll(["global_load_dwordx4 v[24:27], v61, s[26:27] sc1", "global_load_dwordx4 v[28:31], v61, s[26:27] offset:64 sc1",
                   "global_load_dwordx4 v[32:35], v56, s[26:27] sc1", "global_load_dwordx4 v[36:39], v56, s[26:27] offset:64 sc1"],
                  ["v25", "v27", "v29", "v31", "v33", "v35", "v37", "v39"], "v44", "v45", sleep=self.opt.get("osleep", 2))
        self.stamp(11)
        e("v_mov_b32 v25, v26"); e("v_mov_b32 v26, v28"); e("v_mov_b32 v27, v30")
        e("v_mov_b32 v33, v34"); e("v_mov_b32 v34, v36"); e("v_mov_b32 v35, v38")
        e("s_waitcnt lgkmcnt(0)")
        self.nop(1)
        for ct in range(4):
            self.mfma(96+4*ct, 64+4*ct, 24, "0")
        for ct in range(4):
            self.mfma(96+4*ct, 64+4*ct, 32)
        e("v_mov_b32 v17, s34"); e("v_mov_b32 v19, s34")
        self.nop(4)
        for ct in range(4):
            if ct == 3: self.nop(3)
            for r in S[4*ct:4*ct+4]:
                e(f"v_add_f32_dpp {r}, {r}, {r} row_ror:8 row_mask:0xf bank_mask:0xf")
            e("s_mov_b64 exec, s[58:59]")
            e(f"ds_write_b128 v117, v[{96+4*ct}:{99+4*ct}] offset:{ct*512}")
            e("s_mov_b64 exec, -1")
        e("s_waitcnt lgkmcnt(0)")
        self.lds_inc(F_RED)
        self.wait_lds_ge(F_RED, 4, sleep=0)
        for j in range(4):
            e(f"ds_read_b128 v[{64+4*j}:{67+4*j}], v118 offset:{j*2048}")
        e("s_waitcnt lgkmcnt(2)")
        for i in range(4):
            e(f"v_add_f32 v{64+i}, v{64+i}, v{68+i}")
        e("s_waitcnt lgkmcnt(0)")
        for i in range(4):
            e(f"v_add_f32 v{72+i}, v{72+i}, v{76+i}")
        for i in range(4):
            e(f"v_add_f32 v{64+i}, v{64+i}, v{72+i}")
        e("v_cndmask_b32 v16, v66, v64, s[58:59]"); e("v_cndmask_b32 v18, v67, v65, s[58:59]")
        e("global_store_dwordx4 v55, v[16:19], s[26:27] sc1")
        self.stamp(12)

        self.stamp_flush()
        e("s_endpgm")

    def fwave(self):
        self.role = "F"
        e = self.e
        self.lab("L_fwave")
        if self.opt.get("dbg"):
            e("s_memrealtime s[80:81]"); e("s_memtime s[82:83]")
        if self.opt.get("lite"): self.stamp(0)
        e("v_and_b32 v1, 15, v0"); e("v_lshrrev_b32 v2, 4, v0")
        e("v_lshlrev_b32 v10, 4, v0")
        if self.opt.get("cpf", 1):
            e("s_cmp_eq_u32 s33, 3"); e("s_cbranch_scc0 L_nocpf")
            e("s_getpc_b64 s[66:67]")
            self.lab("L_pcref")
            e(f"s_sub_u32 s66, s66, L_pcref-{NAME}"); e("s_subb_u32 s67, s67, 0")
            e("v_mov_b32 v11, v10")
            e(f"s_mov_b32 s48, (L_end-{NAME}+3)/1024")
            self.lab("L_cpf")
            e("global_load_dwordx4 v[12:15], v11, s[66:67]")
            e("v_add_u32 v11, 0x400, v11")
            e("s_sub_u32 s48, s48, 1"); e("s_cmp_lg_u32 s48, 0"); e("s_cbranch_scc1 L_cpf")
            self.lab("L_nocpf")
        if not self.opt.get("lite"): self.stamp(0)
        e("s_barrier")
        if self.opt.get("stop"):
            e("s_waitcnt lgkmcnt(0)")
            self.stamp_flush(); e("s_endpgm")
        e("v_lshrrev_b32 v48, 2, v0")
        e("v_and_b32 v49, 3, v0"); e("v_lshlrev_b32 v49, 3, v49")
        e("v_bfe_u32 v50, v0, 3, 2"); e("v_lshl_or_b32 v50, v50, 5, v49"); e("v_lshl_add_u32 v50, v48, 7, v50")
        e("v_and_b32 v51, 7, v48"); e("v_lshl_or_b32 v51, v51, 5, v49"); e("v_lshl_add_u32 v51, v48, 8, v51")
        e("v_and_b32 v112, 7, v0"); e("v_bfe_u32 v113, v0, 3, 1")
        e("s_lshl_b32 s52, s28, 2"); e("s_add_u32 s52, s52, s31")
        e("s_lshl_b32 s53, s30, 10"); e("s_lshl_b32 s48, s52, 5"); e("s_add_u32 s53, s53, s48")
        e("v_lshlrev_b32 v6, 2, v112"); e("v_add_u32 v6, s53, v6")
        e("s_waitcnt lgkmcnt(0)")
        e("global_load_dword v7, v6, s[4:5]")
        e("s_lshl_b32 s48, s30, 5"); e("s_add_u32 s48, s48, s52"); e("s_lshl_b32 s48, s48, 12")
        e("v_add_u32 v10, s48, v10")
        e(f"v_add_u32 v11, {FBUF}, v10"); e(f"v_add_u32 v10, {SBUF}, v10")
        self.wait_lds_ge(F_XN, 4)
        e(f"ds_read_b32 v4, v3 offset:{TAGW-FLG}")
        e("s_waitcnt lgkmcnt(0)")
        e("v_readfirstlane_b32 s34, v4")
        e("s_cmp_eq_u32 s33, 3"); e("s_cbranch_scc1 L_final")
        e("s_cmp_eq_u32 s33, 2"); e("s_cbranch_scc1 L_dunit")
        e("s_lshl_b32 s51, s68, 1"); e("s_and_b32 s48, s69, 1"); e("s_add_u32 s51, s51, s48")
        e("v_lshlrev_b32 v52, 4, v112"); e("v_lshl_add_u32 v52, v2, 7, v52")
        e("s_and_b32 s48, s51, 1"); e("s_lshl_b32 s48, s48, 12"); e(f"s_add_u32 s48, s48, {XN}"); e("v_add_u32 v52, s48, v52")
        e(f"v_add_u32 v53, {R_GU}, v50")
        e("s_mul_i32 s48, s33, 56"); e("s_add_u32 s48, s48, s51"); e("s_lshl_b32 s48, s48, 11"); e(f"s_add_u32 s48, s48, {GUBUF}")
        e("v_lshlrev_b32 v54, 8, v112"); e("v_lshl_add_u32 v54, v113, 6, v54"); e("v_lshl_add_u32 v54, v2, 4, v54"); e("v_add_u32 v54, s48, v54")
        for j in range(8):
            e(f"ds_read_b128 v[{64+4*j}:{67+4*j}], v52 offset:{j*512}")
        self.wait_lds_ge(F_LAND, "s38")
        self.stamp(1)
        for ct in range(4):
            if ct: e(f"v_xor_b32 v55, {ct<<5}, v53")
            a = "v53" if ct == 0 else "v55"
            for jh in range(2):
                for j in range(4*jh, 4*jh+4):
                    rb = 16 + 4*j
                    e(f"ds_read_b64_tr_b16 v[{rb}:{rb+1}], {a} offset:{32*j*128}")
                    e(f"ds_read_b64_tr_b16 v[{rb+2}:{rb+3}], {a} offset:{(32*j+16)*128}")
                for j in range(4*jh, 4*jh+4):
                    e(f"s_waitcnt lgkmcnt({6-2*(j%4)})")
                    self.mfma(96+4*ct, 16+4*j, 64+4*j, "0" if j == 0 else None)
        self.lds_inc(F_GUDONE)
        self.nop(6)
        for pr in range(2):
            a = 96 + 8*pr
            rb = 16 + 4*pr
            e(f"v_cvt_pk_bf16_f32 v{a}, v{a}, v{a+1}"); e(f"v_cvt_pk_bf16_f32 v{a+2}, v{a+2}, v{a+3}")
            e(f"v_cvt_pk_bf16_f32 v{a+4}, v{a+4}, v{a+5}"); e(f"v_cvt_pk_bf16_f32 v{a+6}, v{a+6}, v{a+7}")
            e(f"v_cndmask_b32 v{rb}, v{a+4}, v{a}, s[58:59]"); e(f"v_mov_b32 v{rb+1}, s34")
            e(f"v_cndmask_b32 v{rb+2}, v{a+6}, v{a+2}, s[58:59]"); e(f"v_mov_b32 v{rb+3}, s34")
            e(f"global_store_dwordx4 v54, v[{rb}:{rb+3}], s[26:27] offset:{pr*128}")
        self.stamp(2)
        self.wait_lds_ge(F_QF, 4, sleep=4)
        e(f"ds_read_b32 v4, v3 offset:{F_MISM-FLG}"); e("s_waitcnt lgkmcnt(0)"); e("v_readfirstlane_b32 s76, v4")
        e("s_cmp_eq_u32 s76, 0"); e("s_cbranch_scc1 L_final")
        for pr in range(2):
            e(f"global_store_dwordx4 v54, v[{16+4*pr}:{19+4*pr}], s[26:27] offset:{pr*128} sc1")
        e("s_branch L_final")
        self.lab("L_dunit")
        e("s_mov_b32 s50, s68")
        e("s_lshl_b32 s48, s50, 12"); e(f"s_add_u32 s48, s48, {GUBUF}")
        e("v_lshlrev_b32 v52, 8, v112"); e("v_lshl_add_u32 v52, v113, 7, v52")
        e("v_lshl_add_u32 v52, v2, 4, v52"); e("v_add_u32 v52, s48, v52")
        e(f"v_add_u32 v53, {56*2048}, v52")
        loads = []
        tags = []
        for m, a in ((0, "v52"), (1, "v53")):
            for kh in range(2):
                for un in range(2):
                    rb = 16 + 16*m + 8*kh + 4*un
                    loads.append(f"global_load_dwordx4 v[{rb}:{rb+3}], {a}, s[26:27] offset:{kh*2048 + un*64} sc1")
                    tags += [f"v{rb+1}", f"v{rb+3}"]
        e(f"s_add_u32 s48, s36, {self.opt.get('dtrig', 0)}")
        self.wait_lds_ge(F_LAND, "s48")
        self.poll(loads, tags, "v54", "v55", sleep=self.opt.get("dsleep", 8))
        self.stamp(1)
        for un in range(2):
            for dd in range(2):
                g0 = 16 + 4*un + 2*dd; g1 = g0 + 8; u0 = g0 + 16; u1 = g0 + 24
                for hi in range(2):
                    ex = (lambda d, s: f"v_and_b32 {d}, 0xffff0000, {s}") if hi else (lambda d, s: f"v_lshlrev_b32 {d}, 16, {s}")
                    e(ex("v56", f"v{g0}")); e(ex("v57", f"v{g1}")); e("v_add_f32 v56, v56, v57")
                    e(ex("v58", f"v{u0}")); e(ex("v57", f"v{u1}")); e("v_add_f32 v58, v58, v57")
                    e("v_cvt_pk_bf16_f32 v57, v56, v58")
                    e("v_lshlrev_b32 v56, 16, v57"); e("v_and_b32 v58, 0xffff0000, v57")
                    self.silu("v56", "v56", "v57")
                    self.bf16r("v56", "v56")
                    e(f"v_mul_f32 v{60+hi}, v56, v58")
                e(f"v_cvt_pk_bf16_f32 v{64+2*un+dd}, v60, v61")
        e(f"v_add_u32 v53, {R_D}, v51")
        e("s_lshl_b32 s48, s69, 8"); e("s_add_u32 s48, s48, s50"); e("s_lshl_b32 s48, s48, 7"); e(f"s_add_u32 s48, s48, {FBUF}")
        e("v_lshlrev_b32 v54, 17, v112"); e("v_lshl_add_u32 v54, v2, 5, v54"); e("v_lshl_add_u32 v54, v113, 4, v54"); e("v_add_u32 v54, s48, v54")
        self.wait_lds_ge(F_LAND, "s38")
        for half in range(2):
            for c2 in range(2):
                for c4 in range(2*c2, 2*c2+2):
                    ct = 4*half + c4
                    e(f"v_xor_b32 v55, {ct<<5}, v53")
                    rb = 16 + 8*c4
                    for j in range(2):
                        e(f"ds_read_b64_tr_b16 v[{rb+4*j}:{rb+4*j+1}], v55 offset:{32*j*256}")
                        e(f"ds_read_b64_tr_b16 v[{rb+4*j+2}:{rb+4*j+3}], v55 offset:{(32*j+16)*256}")
                for c4 in range(2*c2, 2*c2+2):
                    rb = 16 + 8*c4
                    e(f"s_waitcnt lgkmcnt({6-4*(c4%2)})")
                    self.mfma(72+8*c4, rb, 64, "0")
                    e(f"s_waitcnt lgkmcnt({4-4*(c4%2)})")
                    self.mfma(76+8*c4, rb+4, 64, "0")
            self.nop(8)
            for c4 in range(4):
                ct = 4*half + c4
                a = 72 + 8*c4
                rb = (104 + 2*c4) if half == 0 else (114 + 2*c4)
                rb = FPARK[ct]
                e(f"v_add_f32_dpp v56, v{a+4}, v{a} row_ror:8 row_mask:0xf bank_mask:0xf")
                e(f"v_add_f32_dpp v57, v{a+5}, v{a+1} row_ror:8 row_mask:0xf bank_mask:0xf")
                e(f"v_add_f32_dpp v58, v{a+2}, v{a+6} row_ror:8 row_mask:0xf bank_mask:0xf")
                e(f"v_add_f32_dpp v59, v{a+3}, v{a+7} row_ror:8 row_mask:0xf bank_mask:0xf")
                e(f"v_cndmask_b32 v{rb}, v58, v56, s[58:59]")
                e(f"v_cndmask_b32 v{rb+1}, v59, v57, s[58:59]")
            self.nop(2)
        if self.opt.get("ftrig", 0):
            e(f"s_add_u32 s48, s36, {self.opt['ftrig']}")
            self.wait_lds_ge(F_LAND, "s48", sleep=4)
        for ct in range(8):
            rb = 16 + 4*ct
            e(f"v_mov_b32 v{rb}, v{FPARK[ct]}"); e(f"v_mov_b32 v{rb+1}, s34"); e(f"v_mov_b32 v{rb+2}, v{FPARK[ct]+1}"); e(f"v_mov_b32 v{rb+3}, s34")
            e(f"v_add_u32 v55, {ct*4096}, v54")
            e(f"global_store_dwordx4 v55, v[{rb}:{rb+3}], s[26:27] sc1")
        self.nop(2)
        self.stamp(2)
        self.lab("L_final")
        self.wait_lds_ge(F_LAND, "s37")
        loads = [f"global_load_dwordx4 v[{16+4*t}:{19+4*t}], v11, s[26:27] offset:{t*1024} sc1" for t in range(3)]
        loads += ["s_mov_b32 exec_hi, 0", "global_load_dwordx4 v[28:31], v11, s[26:27] offset:3072 sc1"]
        pre = ["v_mov_b32 v28, 0", "v_mov_b32 v29, s34", "v_mov_b32 v30, 0", "v_mov_b32 v31, s34"]
        self.poll(loads, [f"v{17+2*i}" for i in range(8)], "v12", "v13", sleep=4, pre=pre)
        self.stamp(3)
        e("v_add_f32 v32, v16, v20"); e("v_add_f32 v33, v18, v22"); e("v_add_f32 v34, v24, v28"); e("v_add_f32 v35, v26, v30")
        e("v_add_f32 v32, v32, v34"); e("v_add_f32 v33, v33, v35")
        self.nop(2)
        e("v_add_f32_dpp v32, v32, v32 row_ror:8 row_mask:0xf bank_mask:0xf"); e("v_add_f32_dpp v33, v33, v33 row_ror:8 row_mask:0xf bank_mask:0xf")
        self.xg_reduce(["v32", "v33"], "v_add_f32", ["v34", "v35"])
        e("v_cvt_pk_bf16_f32 v34, v32, v33"); e("v_lshlrev_b32 v32, 16, v34"); e("v_and_b32 v33, 0xffff0000, v34")
        self.silu("v32", "v32", "v34"); self.silu("v33", "v33", "v34")
        e("v_cvt_pk_bf16_f32 v34, v32, v33"); e("v_lshlrev_b32 v32, 16, v34"); e("v_and_b32 v33, 0xffff0000, v34")
        e("v_lshlrev_b32 v8, 16, v7"); e("v_and_b32 v9, 0xffff0000, v7")
        loads = [f"global_load_dwordx4 v[{16+4*t}:{19+4*t}], v10, s[26:27] offset:{t*1024} sc1" for t in range(4)]
        self.wait_lds_ge(F_RED, 4)
        if self.opt.get("sdelay", 0):
            e(f"s_sleep {self.opt['sdelay']}")
        self.poll(loads, [f"v{17+2*i}" for i in range(8)], "v12", "v13", sleep=self.opt.get("ssleep", 2))
        self.stamp(4)
        e("v_add_f32 v36, v16, v20"); e("v_add_f32 v37, v18, v22"); e("v_add_f32 v34, v24, v28"); e("v_add_f32 v35, v26, v30")
        e("v_add_f32 v36, v36, v34"); e("v_add_f32 v37, v37, v35")
        self.nop(2)
        e("v_add_f32_dpp v36, v36, v36 row_ror:8 row_mask:0xf bank_mask:0xf"); e("v_add_f32_dpp v37, v37, v37 row_ror:8 row_mask:0xf bank_mask:0xf")
        self.xg_reduce(["v36", "v37"], "v_add_f32", ["v34", "v35"])
        e("v_cvt_pk_bf16_f32 v34, v36, v37"); e("v_lshlrev_b32 v36, 16, v34"); e("v_and_b32 v37, 0xffff0000, v34")
        e("v_mul_f32 v36, v36, v32"); e("v_mul_f32 v37, v37, v33")
        e("v_cvt_pk_bf16_f32 v34, v36, v37"); e("v_lshlrev_b32 v36, 16, v34"); e("v_and_b32 v37, 0xffff0000, v34")
        e("v_add_f32 v36, v36, v8"); e("v_add_f32 v37, v37, v9")
        e("v_cvt_pk_bf16_f32 v34, v36, v37")
        e("s_mov_b64 exec, 0xff")
        e("global_store_dword v6, v34, s[22:23]")
        e("s_cmp_lg_u32 s2, 0"); e("s_cbranch_scc1 L_noep")
        e("s_mov_b64 exec, 1")
        e("v_mov_b32 v35, s34"); e("v_mov_b32 v36, 0")
        e("global_store_dword v36, v35, s[26:27] sc1")
        if self.opt.get("dbg"):
            e("s_memrealtime s[84:85]"); e("s_memtime s[86:87]"); e("s_waitcnt lgkmcnt(0)")
            e("s_sub_u32 s84, s84, s80"); e("s_sub_u32 s86, s86, s82")
            e("v_mov_b32 v40, s84"); e("v_mov_b32 v41, s86")
            e("global_store_dwordx2 v36, v[40:41], s[24:25]")
        self.lab("L_noep")
        e("s_mov_b64 exec, -1")
        self.stamp(5)
        self.stamp_flush()

    def swave(self):
        self.role = "S"
        e = self.e
        self.lab("L_swave")
        e("v_and_b32 v1, 15, v0"); e("v_lshrrev_b32 v2, 4, v0")
        e("s_barrier")
        if self.opt.get("stop"):
            e("s_endpgm")
        self.wait_lds_ge(F_XN, 4, sleep=4)
        e(f"ds_read_b32 v4, v3 offset:{TAGW-FLG}")
        e("s_waitcnt lgkmcnt(0)")
        e("v_readfirstlane_b32 s34, v4")
        e("v_and_b32 v114, 3, v0")
        e("v_lshlrev_b32 v56, 2, v114"); e(f"v_add_u32 v56, {FLG}, v56")
        e("s_lshl_b32 s51, s28, 3"); e("s_add_u32 s51, s51, s30"); e("s_lshl_b32 s51, s51, 9"); e(f"s_add_u32 s51, s51, {STBUF}")
        e("v_lshlrev_b32 v57, 4, v114"); e("v_lshl_add_u32 v57, v2, 7, v57"); e("v_add_u32 v57, s51, v57")
        e("s_lshl_b32 s48, s31, 7"); e("s_add_u32 s48, s48, s51")
        e("v_lshlrev_b32 v58, 4, v0"); e("v_add_u32 v58, s48, v58")
        self.wait_lds_ge(F_P, 4, sleep=2)
        for w in range(4):
            e(f"ds_read_b32 v{20+w}, v56 offset:{WMAX-FLG+16*w}")
            e(f"ds_read_b32 v{28+w}, v56 offset:{WSUM-FLG+16*w}")
        e(f"ds_read_b32 v32, v3 offset:{F_MISM-FLG}")
        e("s_waitcnt lgkmcnt(0)")
        e("v_max3_f32 v62, v20, v21, v22"); e("v_max_f32 v62, v62, v23")
        e("v_add_f32 v28, v28, v29"); e("v_add_f32 v30, v30, v31"); e("v_add_f32 v26, v28, v30")
        e("v_mov_b32 v24, v62"); e("v_mov_b32 v25, s34"); e("v_mov_b32 v27, s34")
        e("v_readfirstlane_b32 s76, v32")
        e("s_mov_b64 exec, 0xff")
        e("s_cmp_eq_u32 s76, 0"); e("s_cbranch_scc0 L_ssc1")
        e("global_store_dwordx4 v58, v[24:27], s[26:27]")
        e("s_branch L_spub")
        self.lab("L_ssc1")
        e("global_store_dwordx4 v58, v[24:27], s[26:27] sc1")
        self.lab("L_spub")
        e("s_mov_b64 exec, -1")
        e(f"s_sleep {self.opt.get('stdelay', 8)}")
        self.poll(["global_load_dwordx4 v[40:43], v57, s[26:27] sc1"], ["v41", "v43"], "v44", "v45", sleep=8)
        e("v_mov_b32 v44, v40")
        self.xg_reduce(["v44"], "v_max_f32", ["v45"])
        e("v_sub_f32 v40, v40, v44"); e("v_exp_f32 v40, v40"); e("v_sub_f32 v46, v62, v44"); e("v_exp_f32 v46, v46")
        e("v_mul_f32 v42, v42, v40")
        self.xg_reduce(["v42"], "v_add_f32", ["v45"])
        e("v_rcp_f32 v42, v42")
        self.nop(1)
        e("v_mul_f32 v46, v46, v42")
        e(f"ds_write_b32 v56, v46 offset:{SCL-FLG}")
        e("s_waitcnt lgkmcnt(0)")
        self.lds_inc(F_SCL)
        e("s_endpgm")

    def build(self):
        hdr = open("recurrent_scan__sliding_block_cached__swiglu_ffn__decode.s.ref").read().split("\n")
        out = []
        for line in hdr:
            if line.startswith("; @launch"):
                out.append(f"; @launch grid=(256,1,1) block=(448,1,1) lds={LDS_BYTES}")
            elif line.startswith(";"):
                out.append(line)
            else:
                break
        out += ['.amdgcn_target "amdgcn-amd-amdhsa--gfx950"', ".text", f".globl {NAME}", ".p2align 8", f".type {NAME},@function", f"{NAME}:"]
        self.prologue()
        self.cwave()
        self.loader()
        self.swave()
        self.fwave()
        self.lab("L_end")
        self.e("s_endpgm")
        out += self.L
        out += ['.section .rodata,"a"', ".p2align 6", f".amdhsa_kernel {NAME}",
                "  .amdhsa_next_free_vgpr 128", "  .amdhsa_next_free_sgpr 102", "  .amdhsa_accum_offset 128",
                "  .amdhsa_group_segment_fixed_size 0", "  .amdhsa_kernarg_size 96", "  .amdhsa_user_sgpr_count 2",
                "  .amdhsa_user_sgpr_kernarg_segment_ptr 1", "  .amdhsa_system_sgpr_workgroup_id_x 1", ".end_amdhsa_kernel", ""]
        return "\n".join(out)

if __name__ == "__main__":
    import argparse
    ap = argparse.ArgumentParser()
    ap.add_argument("-o", default="recurrent_scan__sliding_block_cached__swiglu_ffn__decode.s")
    ap.add_argument("--depth", type=int, default=24)
    ap.add_argument("--stamps", action="store_true")
    ap.add_argument("--opt", default="")
    a = ap.parse_args()
    opt = {}
    for kv in a.opt.split(","):
        if kv:
            k, v = kv.split("="); opt[k] = int(v)
    g = G(depth=a.depth, stamps=a.stamps, opt=opt)
    open(a.o, "w").write(g.build())
    print("wrote", a.o, len(g.L), "lines")
```

```python
import sys, struct

NAME = "recurrent_scan__sliding_block_cached__swiglu_ffn__decode_kernel"

WS_EPOCH = 0
QBUF = 0x10000
STBUF = 0x90000
OBUF = 0xA0000
GUBUF = 0x120000
SBUF = 0x200000
FBUF = 0x300000
DBG = 0x800000

R_K = 0
R_V = 65536
R_Q = 131072
MISC = 147456
XN = MISC
QF = MISC + 8192
PB = MISC + 12288
FLG = MISC + 14336
F_LAND, F_XN, F_QDONE, F_QF, F_MAX, F_P, F_GUDONE, F_RED, F_SCL, F_MISM = [FLG + 4*i for i in range(10)]
WMAX = FLG + 64
WSUM = FLG + 128
TAGW = FLG + 192
SCL = FLG + 208
QST = FLG + 256
R_O = R_K
RED = R_K + 16384
R_GU = R_V + 32768
R_D = R_Q
LDS_BYTES = 163840
FPARK = [104, 106, 108, 110, 114, 116, 124, 126]

def f32(x):
    return "0x%08x" % struct.unpack("<I", struct.pack("<f", x))[0]

class G:
    def __init__(self, depth=24, stamps=False, spin_limit=1 << 20, opt=None):
        self.opt = dict(sdelay=16, ssleep=4, cpf=0, dlate=0, osleep=0, dg=27, qtrig=48)
        self.opt.update(opt or {})
        self.L = []
        self.depth = depth
        self.stamps = stamps
        self.uid = 0
        self.spin_limit = spin_limit
    def e(self, s):
        self.L.append("    " + s)
    def lab(self, s):
        self.L.append(s + ":")
    def newlab(self, p="L"):
        self.uid += 1
        return f"{p}_{self.uid}"
    def c(self, s):
        self.L.append("    ; " + s)
    def nop(self, n):
        while n > 0:
            k = min(n, 16)
            self.e(f"s_nop {k-1}")
            n -= k
    def stamp(self, k):
        if not self.stamps:
            return
        if self.opt.get("lite") and (self.role, k) not in (("F", 0), ("F", 5), ("C", 9), ("C", 11), ("C", 12), ("L", 5), ("L", 3), ("L", 2), ("C", 5), ("C", 7)):
            return
        self.e("s_memrealtime s[90:91]")
        self.e("s_waitcnt lgkmcnt(0)")
        self.e("v_mov_b32 v120, s90")
        self.e(f"v_writelane_b32 v121, s90, {k}")
        if not self.opt.get("lite"):
            self.e("s_memtime s[90:91]")
            self.e("s_waitcnt lgkmcnt(0)")
            self.e(f"v_writelane_b32 v121, s90, {32+k}")
    def stop(self, n):
        if self.opt.get("stop") == n:
            self.stamp_flush()
            self.e("s_endpgm")
    def stamp_flush(self):
        if not self.stamps:
            return
        self.e("s_mov_b64 exec, -1")
        self.e("global_store_dword v122, v121, s[26:27]")
        self.e("s_waitcnt vmcnt(0)")

    def wait_lds_ge(self, flag, val, vaddr="v3", vtmp="v4", stmp="s60", sleep=1, onfail=None):
        l0 = self.newlab("WL"); l1 = self.newlab("WD")
        self.e("s_mov_b32 s61, 0")
        self.lab(l0)
        self.e(f"ds_read_b32 {vtmp}, {vaddr} offset:{flag - FLG}")
        self.e("s_waitcnt lgkmcnt(0)")
        self.e(f"v_readfirstlane_b32 {stmp}, {vtmp}")
        self.e("s_add_u32 s61, s61, 1")
        self.e(f"s_cmp_ge_i32 {stmp}, {val}")
        self.e(f"s_cbranch_scc1 {l1}")
        if onfail: onfail()
        if sleep:
            self.e(f"s_sleep {sleep}")
        self.e(f"s_cmp_lt_u32 s61, {self.spin_limit}")
        self.e(f"s_cbranch_scc1 {l0}")
        self.lab(l1)
    def lds_inc(self, flag, vaddr="v3", vone="v5"):
        self.e("s_mov_b64 exec, 1")
        self.e(f"ds_add_u32 {vaddr}, {vone} offset:{flag - FLG}")
        self.e("s_mov_b64 exec, -1")

    def allreduce(self, regs, op, tmp):
        for sh in (8, 4, 2, 1):
            self.nop(2 if len(regs) < 3 else 1)
            for r in regs:
                self.e(f"{op}_dpp {r}, {r}, {r} row_ror:{sh} row_mask:0xf bank_mask:0xf")
        self.xg_reduce(regs, op, tmp)
    def xg_reduce(self, regs, op, tmp):
        for sw in ("v_permlane16_swap_b32", "v_permlane32_swap_b32"):
            for r, t in zip(regs, tmp):
                self.e(f"v_mov_b32 {t}, {r}")
            self.nop(2)
            for r, t in zip(regs, tmp):
                self.e(f"{sw} {r}, {t}")
            self.nop(1)
            for r, t in zip(regs, tmp):
                self.e(f"{op} {r}, {r}, {t}")

    def tagcheck(self, tagregs, acc, t2, stag="s34", t3="v119", sm="s[64:65]"):
        first = True
        i = 0
        while i < len(tagregs):
            if first:
                self.e(f"v_xor_b32 {acc}, {stag}, {tagregs[i]}"); i += 1; first = False
            elif i + 1 < len(tagregs):
                self.e(f"v_xor_b32 {t2}, {stag}, {tagregs[i]}")
                self.e(f"v_xor_b32 {t3}, {stag}, {tagregs[i+1]}")
                self.e(f"v_or3_b32 {acc}, {acc}, {t2}, {t3}")
                i += 2
            else:
                self.e(f"v_xor_b32 {t2}, {stag}, {tagregs[i]}")
                self.e(f"v_or_b32 {acc}, {acc}, {t2}")
                i += 1
        self.e(f"v_cmp_ne_u32 {sm}, 0, {acc}")
        self.e(f"s_cmp_eq_u64 {sm}, 0")

    def repub(self, stores, cond="vland", sflag="s70", niter=3):
        e = self.e
        ls = self.newlab("RP")
        e(f"s_cmp_lg_u32 {sflag}, 0"); e(f"s_cbranch_scc1 {ls}")
        if cond == "vland":
            e(f"ds_read_b32 v4, v3 offset:{F_LAND-FLG}"); e("s_waitcnt lgkmcnt(0)"); e("v_readfirstlane_b32 s60, v4")
            e("s_add_u32 s71, s36, 64"); e("s_cmp_ge_i32 s60, s71"); e(f"s_cbranch_scc0 {ls}")
        elif cond == "iter":
            e(f"s_cmp_ge_u32 s61, {niter}"); e(f"s_cbranch_scc0 {ls}")
        e(f"s_mov_b32 {sflag}, 1")
        for st in stores: e(st)
        self.lab(ls)

    def poll(self, loads, tagregs, acc, t2, sleep=2, pre=None, skip_first=False, onfail=None, check=None, ntn=0):
        l0 = self.newlab("PL"); l1 = self.newlab("PD"); lc = self.newlab("PC")
        self.e("s_mov_b32 s61, 0")
        if pre:
            for p in pre: self.e(p)
        if skip_first:
            self.e(f"s_branch {lc}")
        else:
            self.e("s_mov_b64 s[64:65], -1")
        self.lab(l0)
        self.e("s_mov_b64 exec, s[64:65]")
        if ntn:
            l2 = self.newlab("PS")
            self.e(f"s_cmp_ge_u32 s61, {ntn}"); self.e(f"s_cbranch_scc1 {l2}")
            for s in loads:
                self.e(s.replace(" sc1", " nt"))
            self.e("s_mov_b64 exec, -1")
            self.e(f"s_branch {lc}")
            self.lab(l2)
        for s in loads:
            self.e(s)
        self.e("s_mov_b64 exec, -1")
        self.lab(lc)
        self.e("s_waitcnt vmcnt(0)")
        if check: check()
        else: self.tagcheck(tagregs, acc, t2)
        self.e(f"s_cbranch_scc1 {l1}")
        self.e("s_add_u32 s61, s61, 1")
        if onfail: onfail()
        if sleep:
            self.e(f"s_sleep {sleep}")
        self.e(f"s_cmp_lt_u32 s61, {self.spin_limit >> 3}")
        self.e(f"s_cbranch_scc1 {l0}")
        self.lab(l1)

    def mfma(self, d, a, b, c=None):
        cc = f"v[{d}:{d+3}]" if c is None else c
        self.e(f"v_mfma_f32_16x16x32_bf16 v[{d}:{d+3}], v[{a}:{a+3}], v[{b}:{b+3}], {cc}")

    def bf16r(self, dst, src, tmp=None):
        self.e(f"v_cvt_pk_bf16_f32 {dst}, {src}, {src}")
        self.e(f"v_lshlrev_b32 {dst}, 16, {dst}")

    def silu(self, dst, x, t):
        self.e(f"v_mul_f32 {t}, {f32(-1.4426950408889634)}, {x}")
        self.e(f"v_exp_f32 {t}, {t}")
        self.nop(1)
        self.e(f"v_add_f32 {t}, 1.0, {t}")
        self.e(f"v_rcp_f32 {t}, {t}")
        self.nop(1)
        self.e(f"v_mul_f32 {dst}, {x}, {t}")

    def prologue(self):
        e = self.e
        e("s_cmp_ge_u32 s2, 256")
        e("s_cbranch_scc1 L_end")
        e("s_load_dwordx16 s[4:19], s[0:1], 0")
        e("s_load_dwordx8 s[20:27], s[0:1], 64")
        e("v_lshrrev_b32 v1, 6, v0")
        e("v_and_b32 v0, 63, v0")
        e("s_and_b32 s28, s2, 7")
        e("v_readfirstlane_b32 s32, v1")
        e("s_lshr_b32 s29, s2, 3")
        e("s_lshr_b32 s30, s29, 2")
        e("s_and_b32 s31, s29, 3")
        e("s_bfe_u32 s33, s29, 0x10001")
        e("s_cmp_ge_u32 s29, 16"); e("s_cselect_b32 s33, 2, s33")
        e("s_cmp_eq_u32 s28, 7"); e("s_cselect_b32 s33, 3, s33")
        e("s_bfe_u32 s68, s29, 0x20002"); e("s_lshl_b32 s69, s28, 2"); e("s_add_u32 s68, s68, s69"); e("s_and_b32 s69, s29, 3")
        e("s_mov_b32 s70, 0")
        e("s_getreg_b32 s74, hwreg(HW_REG_XCC_ID)"); e("s_and_b32 s74, s74, 15"); e("s_lshl_b32 s74, s74, 28")
        e("s_cmp_lt_u32 s33, 2")
        e("s_cselect_b32 s35, 48, 16")
        e("s_cselect_b32 s38, 48, 0x60")
        e("s_add_u32 s36, s35, 64")
        e("s_cmp_eq_u32 s33, 2")
        if self.opt.get("dlate", 1):
            e("s_cselect_b32 s38, 0xb0, s38")
            e("s_add_u32 s37, s36, 0x50")
            e("s_cmp_eq_u32 s33, 2")
            e("s_cselect_b32 s55, 0xb0, s37")
        else:
            e("s_cselect_b32 s36, 0x60, s36")
            e("s_add_u32 s37, s36, 0x50")
            e("s_mov_b32 s55, s37")
        if self.opt.get("stag", 1):
            e("s_mul_i32 s39, s2, 0x9e3779b1"); e("s_lshr_b32 s39, s39, 26")
        else:
            e("s_mov_b32 s39, 0")
        e(f"v_mov_b32 v3, {FLG}")
        e("v_mov_b32 v5, 1")
        e("s_mov_b32 s58, 0x00ff00ff"); e("s_mov_b32 s59, 0x00ff00ff")
        if self.stamps:
            e("v_mov_b32 v121, 0")
            e("s_lshl_b32 s92, s2, 3"); e("s_add_u32 s92, s92, s32"); e("s_lshl_b32 s92, s92, 8"); e(f"s_add_u32 s92, s92, {DBG}")
            e("v_lshlrev_b32 v122, 2, v0"); e("v_add_u32 v122, s92, v122")
        e("s_cmp_eq_u32 s32, 4"); e("s_cbranch_scc1 L_loader")
        e("s_cmp_eq_u32 s32, 5"); e("s_cbranch_scc1 L_fwave")
        e("s_cmp_eq_u32 s32, 6"); e("s_cbranch_scc1 L_swave")

    def setdepth(self, Dold, Dnew):
        if Dnew != Dold:
            self.e(f"s_add_u32 s47, s47, {Dold - Dnew}")
    def seg(self, base, nrec, soff_code, step, lds, count, voffs, first=False, xor=False, D=None, t0=0):
        e = self.e
        D = D or self.depth
        assert count % 4 == 0
        if count == 0:
            return
        e(f"s_mov_b32 s40, s{base}"); e(f"s_and_b32 s41, s{base+1}, 0xffff"); e(f"s_mov_b32 s42, {nrec}"); e("s_mov_b32 s43, 0x20000")
        for s in soff_code: e(s)
        if xor:
            e("s_lshl_b32 s45, s39, 10")
            e(f"s_mov_b32 s49, {t0*1024}")
        else:
            e(f"s_mov_b32 s45, {lds}")
        e(f"s_mov_b32 s46, {count//4}")
        l0 = self.newlab("SEG")
        self.lab(l0)
        for u in range(4):
            if xor:
                e("s_xor_b32 s48, s49, s45")
                e("s_add_u32 s54, s44, s48")
            if not first:
                e(f"s_waitcnt vmcnt({D-1})")
                e("v_mov_b32 v20, s47")
                e(f"ds_write_b32 v3, v20 offset:{F_LAND-FLG}")
            if xor:
                e(f"s_add_u32 m0, s48, {lds}")
                e("s_add_u32 s47, s47, 1")
                e(f"buffer_load_dwordx4 {voffs[u]}, s[40:43], s54 offen nt lds")
                e("s_add_u32 s49, s49, 1024")
            else:
                e("s_mov_b32 m0, s45")
                e("s_add_u32 s47, s47, 1")
                e(f"buffer_load_dwordx4 {voffs[u]}, s[40:43], s44 offen nt lds")
                e("s_add_u32 s45, s45, 1024")
                e(f"s_add_u32 s44, s44, {step}")
        e("s_sub_u32 s46, s46, 1")
        e("s_cmp_lg_u32 s46, 0")
        e(f"s_cbranch_scc1 {l0}")

    def loader(self):
        self.role = "L"
        e = self.e
        D = self.depth
        assert D >= 17
        stop = self.opt.get("stop")
        self.lab("L_loader")
        e("s_setprio 3")
        e("v_mov_b32 v20, 0")
        e("v_lshlrev_b32 v21, 2, v0"); e(f"v_add_u32 v21, {FLG}, v21")
        e("ds_write_b32 v21, v20")
        e("v_lshrrev_b32 v6, 4, v0")
        e("v_lshrrev_b32 v7, 3, v0")
        e("v_and_b32 v8, 1, v0"); e("v_lshlrev_b32 v8, 4, v8")
        e("v_bfe_u32 v9, v0, 1, 2"); e("v_xor_b32 v9, v9, v6"); e("v_lshl_or_b32 v9, v9, 5, v8")
        e("v_lshl_add_u32 v10, v7, 13, v9")
        e(f"s_mov_b32 s47, {-(D-1)}")
        e("s_waitcnt lgkmcnt(0)")
        self.stamp(0)
        self.seg(10, 4 << 20, ["s_lshr_b32 s44, s29, 3", "s_lshl_b32 s44, s44, 20", "s_lshl_b32 s48, s28, 10", "s_add_u32 s44, s44, s48",
                               "s_and_b32 s48, s29, 7", "s_lshl_b32 s48, s48, 7", "s_add_u32 s44, s44, s48"],
                 65536, R_Q, 16, ["v10"]*4, first=True)
        e("s_barrier")
        self.stamp(1)
        e("v_and_b32 v11, 15, v0"); e("v_xor_b32 v11, v11, v6"); e("v_lshlrev_b32 v11, 4, v11"); e("v_lshl_add_u32 v11, v6, 8, v11")
        e("s_and_b32 s48, s39, 3"); e("s_lshl_b32 s48, s48, 6"); e("v_xor_b32 v11, s48, v11")
        e("v_xor_b32 v12, 64, v11"); e("v_xor_b32 v13, 0x80, v11"); e("v_xor_b32 v14, 0xc0, v11")
        e("v_bfe_u32 v15, v0, 1, 3"); e("v_xor_b32 v15, v15, v6"); e("v_lshl_or_b32 v15, v15, 5, v8")
        e("v_lshl_add_u32 v16, v6, 8, v15")
        e("s_and_b32 s48, s39, 1"); e("s_lshl_b32 s48, s48, 7"); e("v_xor_b32 v16, s48, v16")
        e("v_xor_b32 v17, 0x80, v16")
        e("v_lshl_add_u32 v18, v6, 10, v15"); e("v_xor_b32 v19, 0x80, v18")
        e("v_lshl_add_u32 v22, v7, 10, v9")
        e("s_movk_i32 s48, 3584"); e("v_mul_lo_u32 v23, v7, s48"); e("v_add_u32 v23, v23, v9")
        e("s_lshl_b32 s50, s30, 3"); e("s_add_u32 s50, s50, s28"); e("s_lshl_b32 s50, s50, 20")
        e("s_lshl_b32 s48, s31, 16"); e("s_add_u32 s50, s50, s48"); e("s_add_u32 s50, s50, 786432")
        DG = self.opt.get("dg", D); DE = self.opt.get("de", D); VS = self.opt.get("vsplit", 32)
        dlate = self.opt.get("dlate", 1)
        oseg = ["s_lshl_b32 s44, s28, 2", "s_lshr_b32 s48, s29, 3", "s_add_u32 s44, s44, s48", "s_lshl_b32 s44, s44, 17",
                "s_and_b32 s48, s29, 7", "s_lshl_b32 s48, s48, 7", "s_add_u32 s44, s44, s48"]
        dseg = ["s_lshl_b32 s44, s68, 16", "s_lshl_b32 s48, s69, 8", "s_add_u32 s44, s44, s48"]
        KV = ["v11", "v12", "v13", "v14"]; VV = ["v16", "v17", "v16", "v17"]
        e("s_cmp_lt_u32 s33, 2"); e("s_cbranch_scc0 L_noGU")
        e("s_cmp_eq_u32 s33, 0")
        e("s_cselect_b32 s52, s16, s18"); e("s_cselect_b32 s53, s17, s19")
        self.setdepth(D, DG)
        self.seg(52, 512*3584, ["s_and_b32 s44, s69, 1", f"s_mul_i32 s44, s44, {256*3584}", "s_lshl_b32 s48, s68, 7", "s_add_u32 s44, s44, s48"],
                 8*3584, R_GU, 32, ["v23"]*4, D=DG)
        self.seg(6, 64 << 20, ["s_mov_b32 s44, s50"], 1024, R_K, 64, KV, xor=True, D=DG)
        self.stamp(2)
        if not stop: self.wait_lds_ge(F_GUDONE, 1)
        self.seg(8, 64 << 20, ["s_mov_b32 s44, s50"], 1024, R_V, VS, VV, xor=True, D=DG)
        self.setdepth(DG, DE)
        e("s_branch L_vtail")
        self.lab("L_noGU")
        self.seg(6, 64 << 20, ["s_mov_b32 s44, s50"], 1024, R_K, 64, KV, xor=True)
        self.stamp(2)
        if not dlate:
            e("s_cmp_eq_u32 s33, 2"); e("s_cbranch_scc0 L_noD")
            if not stop: self.wait_lds_ge(F_QDONE, 2)
            self.seg(20, 1792*1024, dseg, 4096, R_D, 16, ["v18", "v19", "v18", "v19"])
            self.lab("L_noD")
        self.seg(8, 64 << 20, ["s_mov_b32 s44, s50"], 1024, R_V, VS, VV, xor=True)
        self.setdepth(D, DE)
        self.lab("L_vtail")
        self.seg(8, 64 << 20, ["s_mov_b32 s44, s50"], 1024, R_V, 64 - VS, VV, xor=True, D=DE, t0=VS)
        self.stamp(3)
        def qrepub(lazy=True):
            ls = self.newlab("QR")
            e("s_cmp_lg_u32 s70, 0"); e(f"s_cbranch_scc1 {ls}")
            if lazy:
                e("s_cmp_lt_u32 s61, 24"); e(f"s_cbranch_scc1 {ls}")
            else:
                e(f"ds_read_b32 v4, v3 offset:{F_MISM-FLG}"); e("s_waitcnt lgkmcnt(0)"); e("v_readfirstlane_b32 s76, v4")
                e("s_cmp_eq_u32 s76, 0"); e(f"s_cbranch_scc1 {ls}")
            e("s_mov_b32 s70, 1")
            e("s_mov_b32 s73, s61")
            self.wait_lds_ge(F_QDONE, 2)
            e("s_mov_b32 s61, s73")
            e(f"v_lshlrev_b32 v24, 3, v0"); e(f"v_add_u32 v24, {QST}, v24"); e("v_lshlrev_b32 v25, 2, v0"); e(f"v_add_u32 v25, {QST}, v25")
            e(f"ds_read_b32 v29, v3 offset:{TAGW-FLG}")
            e("ds_read_b64 v[26:27], v24"); e("ds_read_b32 v36, v25 offset:512")
            e("ds_read_b64 v[38:39], v24 offset:768"); e("ds_read_b32 v37, v25 offset:1280")
            e("s_waitcnt lgkmcnt(0)")
            e("v_mov_b32 v28, v26"); e("v_mov_b32 v30, v27"); e("v_xor_b32 v31, s74, v29")
            e("v_mov_b32 v32, v38"); e("v_mov_b32 v33, v29"); e("v_mov_b32 v34, v39"); e("v_xor_b32 v35, s74, v29")
            e("global_store_dwordx4 v36, v[28:31], s[26:27] sc1")
            e("global_store_dwordx4 v37, v[32:35], s[26:27] sc1")
            self.lab(ls)
        if not stop: self.wait_lds_ge(F_P, 4, onfail=qrepub)
        self.seg(12, 4 << 20, oseg, 8192, R_O, 16, ["v22"]*4, D=DE)
        if dlate:
            e("s_cmp_eq_u32 s33, 2"); e("s_cbranch_scc0 L_noD")
            if not stop: self.wait_lds_ge(F_QDONE, 2)
            self.seg(20, 1792*1024, dseg, 4096, R_D, 16, ["v18", "v19", "v18", "v19"], D=DE)
            self.lab("L_noD")
        self.stamp(4)
        ks = [k for k in range(DE-1, -1, -1) if (k % 8 == 0)]
        for k in ks:
            e(f"s_waitcnt vmcnt({k})")
            e(f"s_sub_u32 s48, s55, {k}")
            e("v_mov_b32 v20, s48")
            e(f"ds_write_b32 v3, v20 offset:{F_LAND-FLG}")
        self.stamp(5)
        if not stop: qrepub(lazy=False)
        self.stamp_flush()
        e("s_endpgm")

    def cwave(self):
        self.role = "C"
        e = self.e
        e("s_lshl_b32 s48, s32, 11")
        e("v_lshlrev_b32 v6, 4, v0"); e("v_add_u32 v6, s48, v6")
        e("v_and_b32 v1, 15, v0")
        e("v_lshrrev_b32 v2, 4, v0")
        e("s_waitcnt lgkmcnt(0)")
        xnt = " nt" if self.opt.get("xnt") else ""
        e("global_load_dwordx4 v[8:11], v6, s[4:5]" + xnt)
        e("global_load_dwordx4 v[12:15], v6, s[4:5] offset:1024" + xnt)
        e("s_load_dword s34, s[26:27], 0")
        self.stamp(0)
        e("s_barrier")
        e("v_lshrrev_b32 v6, 2, v0"); e("v_lshlrev_b32 v6, 9, v6")
        e("v_and_b32 v7, 1, v0"); e("v_lshl_add_u32 v6, v7, 8, v6")
        e("v_bfe_u32 v7, v0, 1, 1"); e("v_lshl_add_u32 v6, v7, 3, v6")
        e("s_lshl_b32 s48, s32, 5"); e(f"s_add_u32 s48, s48, {XN}"); e("v_add_u32 v6, s48, v6")
        e("v_lshrrev_b32 v48, 2, v0")
        e("v_and_b32 v49, 3, v0"); e("v_lshlrev_b32 v49, 3, v49")
        e("v_bfe_u32 v50, v0, 3, 2"); e("v_lshl_or_b32 v50, v50, 5, v49"); e("v_lshl_add_u32 v50, v48, 7, v50")
        e("v_and_b32 v51, 7, v48"); e("v_lshl_or_b32 v51, v51, 5, v49"); e("v_lshl_add_u32 v51, v48, 8, v51")
        e("v_and_b32 v112, 7, v0")
        e("v_bfe_u32 v113, v0, 3, 1")
        e("v_and_b32 v114, 3, v0")
        e("v_lshlrev_b32 v52, 4, v112"); e("v_lshl_add_u32 v52, v2, 7, v52")
        e("s_lshr_b32 s49, s29, 3")
        e("s_lshl_b32 s48, s49, 11"); e(f"s_add_u32 s48, s48, {XN}"); e("v_add_u32 v52, s48, v52")
        e("s_lshl_b32 s48, s32, 6"); e("s_and_b32 s48, s48, 0x60"); e("v_xor_b32 v53, s48, v50"); e(f"v_add_u32 v53, {R_Q}, v53"); e("v_xor_b32 v115, 32, v53")
        e("s_lshl_b32 s48, s28, 5"); e("s_add_u32 s48, s48, s49"); e("s_lshl_b32 s48, s48, 11")
        e("s_and_b32 s50, s29, 7"); e("s_lshl_b32 s50, s50, 8"); e("s_add_u32 s48, s48, s50")
        e("s_lshl_b32 s50, s32, 7"); e("s_add_u32 s48, s48, s50"); e(f"s_add_u32 s48, s48, {QBUF}")
        e("v_lshlrev_b32 v54, 13, v112"); e("v_lshl_add_u32 v54, v113, 6, v54"); e("v_lshl_add_u32 v54, v2, 4, v54"); e("v_add_u32 v54, s48, v54")
        e("s_lshl_b32 s48, s28, 3"); e("s_add_u32 s48, s48, s30"); e("s_lshl_b32 s48, s48, 13")
        e("s_add_u32 s48, s48, s50"); e(f"s_add_u32 s48, s48, {QBUF}")
        e("v_lshrrev_b32 v55, 2, v1"); e("v_lshlrev_b32 v55, 11, v55")
        e("v_lshl_add_u32 v55, v114, 9, v55"); e("v_lshl_add_u32 v55, v2, 5, v55"); e("v_add_u32 v55, s48, v55")
        e("s_waitcnt vmcnt(0)")
        self.stamp(1)
        self.stop(1)
        for rb, src in ((16, 8), (24, 12)):
            for i in range(4):
                e(f"v_lshlrev_b32 v{rb+2*i}, 16, v{src+i}")
                e(f"v_and_b32 v{rb+2*i+1}, 0xffff0000, v{src+i}")
        for rb, d in ((16, 32), (24, 33)):
            e(f"v_add_f32 v{d}, v{rb}, v{rb+1}")
            e(f"v_add_f32 v34, v{rb+2}, v{rb+3}")
            e(f"v_add_f32 v35, v{rb+4}, v{rb+5}")
            e(f"v_add_f32 v36, v{rb+6}, v{rb+7}")
            e(f"v_add_f32 v{d}, v{d}, v34"); e("v_add_f32 v35, v35, v36"); e(f"v_add_f32 v{d}, v{d}, v35")
        self.allreduce(["v32", "v33"], "v_add_f32", ["v34", "v35"])
        e(f"v_mul_f32 v32, {f32(1/512)}, v32"); e(f"v_mul_f32 v33, {f32(1/512)}, v33")
        for rb, m, d in ((16, 32, 36), (24, 33, 37)):
            e(f"v_sub_f32 v38, v{rb}, v{m}"); e(f"v_mul_f32 v{d}, v38, v38")
            for i in range(1, 8):
                e(f"v_sub_f32 v38, v{rb+i}, v{m}"); e(f"v_fmac_f32 v{d}, v38, v38")
        self.allreduce(["v36", "v37"], "v_add_f32", ["v34", "v35"])
        e(f"v_mul_f32 v36, {f32(1/512)}, v36"); e(f"v_mul_f32 v37, {f32(1/512)}, v37")
        for m, v in ((32, 36), (33, 37)):
            e(f"v_cvt_pk_bf16_f32 v38, v{m}, v{v}")
            e(f"v_lshlrev_b32 v{m}, 16, v38")
            e(f"v_and_b32 v{v}, 0xffff0000, v38")
            e(f"v_add_f32 v{v}, {f32(1e-5)}, v{v}")
            self.bf16r(f"v{v}", f"v{v}")
            e(f"v_sqrt_f32 v{v}, v{v}")
            self.nop(1)
            self.bf16r(f"v{v}", f"v{v}")
            e(f"v_rcp_f32 v{v}, v{v}")
            self.nop(1)
        for rb, m, v, out in ((16, 32, 36, 40), (24, 33, 37, 44)):
            for i in range(4):
                e(f"v_sub_f32 v38, v{rb+2*i}, v{m}"); e(f"v_sub_f32 v39, v{rb+2*i+1}, v{m}")
                e("v_cvt_pk_bf16_f32 v38, v38, v39")
                e("v_and_b32 v39, 0xffff0000, v38"); e("v_lshlrev_b32 v38, 16, v38")
                e(f"v_mul_f32 v38, v38, v{v}"); e(f"v_mul_f32 v39, v39, v{v}")
                e(f"v_cvt_pk_bf16_f32 v{out+i}, v38, v39")
        e("ds_write_b64 v6, v[40:41]"); e("ds_write_b64 v6, v[42:43] offset:128")
        e("ds_write_b64 v6, v[44:45] offset:16"); e("ds_write_b64 v6, v[46:47] offset:144")
        e("s_waitcnt lgkmcnt(0)")
        e("s_add_u32 s34, s34, 1")
        e("s_xor_b32 s75, s34, s74")
        e("v_mov_b32 v125, s34"); e("v_mov_b32 v127, s75")
        e(f"ds_write_b32 v3, v125 offset:{TAGW-FLG}")
        e("s_waitcnt lgkmcnt(0)")
        self.lds_inc(F_XN)
        self.stamp(2)
        e("s_cmp_lt_u32 s32, 2"); e("s_cbranch_scc0 L_noq")
        self.wait_lds_ge(F_XN, 4, sleep=0)
        for j in range(4):
            e(f"ds_read_b128 v[{64+4*j}:{67+4*j}], v52 offset:{j*512}")
        self.wait_lds_ge(F_LAND, 16, sleep=0)
        self.stamp(3)
        for j in range(4):
            e(f"ds_read_b64_tr_b16 v[{80+4*j}:{81+4*j}], v53 offset:{(32*j)*128}")
            e(f"ds_read_b64_tr_b16 v[{82+4*j}:{83+4*j}], v53 offset:{(32*j+16)*128}")
        for j in range(3):
            e(f"ds_read_b64_tr_b16 v[{16+4*j}:{17+4*j}], v115 offset:{(32*j)*128}")
            e(f"ds_read_b64_tr_b16 v[{18+4*j}:{19+4*j}], v115 offset:{(32*j+16)*128}")
        for j in range(4):
            e(f"s_waitcnt lgkmcnt({12-2*j})")
            self.mfma(96, 80+4*j, 64+4*j, "0" if j == 0 else None)
            if j == 0:
                e(f"ds_read_b64_tr_b16 v[28:29], v115 offset:{(96)*128}")
                e(f"ds_read_b64_tr_b16 v[30:31], v115 offset:{(112)*128}")
        for j in range(4):
            e(f"s_waitcnt lgkmcnt({6-2*j})")
            self.mfma(104, 16+4*j, 64+4*j, "0" if j == 0 else None)
        e("s_mul_i32 s48, s32, 768"); e(f"s_add_u32 s48, s48, {QST}")
        e("v_lshlrev_b32 v16, 3, v0"); e("v_add_u32 v16, s48, v16"); e("v_lshlrev_b32 v17, 2, v0"); e("v_add_u32 v17, s48, v17")
        self.nop(3)
        e("v_cvt_pk_bf16_f32 v96, v96, v97"); e("v_cvt_pk_bf16_f32 v98, v98, v99")
        e("v_cvt_pk_bf16_f32 v104, v104, v105"); e("v_cvt_pk_bf16_f32 v106, v106, v107")
        e("v_cndmask_b32 v124, v104, v96, s[58:59]"); e("v_cndmask_b32 v126, v106, v98, s[58:59]")
        e("global_store_dwordx4 v54, v[124:127], s[26:27]")
        e("v_mov_b32 v18, v124"); e("v_mov_b32 v19, v126")
        e("ds_write_b64 v16, v[18:19]"); e("ds_write_b32 v17, v54 offset:512")
        e("s_waitcnt lgkmcnt(0)")
        self.lds_inc(F_QDONE)
        self.lab("L_noq")
        self.stamp(4)
        self.stop(2)
        e("v_xor_b32 v58, v2, v1"); e("v_lshlrev_b32 v58, 4, v58"); e("v_lshl_add_u32 v58, v1, 8, v58")
        e("s_lshl_b32 s48, s32, 14"); e(f"s_add_u32 s48, s48, {R_K}"); e("v_add_u32 v58, s48, v58")
        e("v_xor_b32 v59, 64, v58"); e("v_xor_b32 v60, 0x80, v58"); e("v_xor_b32 v61, 0xc0, v58")
        e("v_lshlrev_b32 v56, 4, v0"); e(f"v_add_u32 v56, {QF}, v56")
        e("s_lshl_b32 s48, s32, 10"); e("v_add_u32 v57, s48, v56")
        self.wait_lds_ge(F_LAND, self.opt.get('qtrig', 64))
        def qcheck():
            e("v_xor_b32 v72, s34, v65"); e("v_xor_b32 v73, s34, v69")
            e("v_xor_b32 v74, s75, v67"); e("v_xor_b32 v75, s75, v71")
            e("v_or_b32 v74, v74, v75"); e("v_and_b32 v75, 0x0fffffff, v74")
            e("v_or3_b32 v72, v72, v73, v75")
            e("v_cmp_ne_u32 s[64:65], 0, v72")
            e("s_cmp_eq_u64 s[64:65], 0")
        qp = {0: "sc1", 1: "nt", 2: "sc0 sc1", 3: "sc1 nt"}[self.opt.get("qpol", 0)]
        self.poll([f"global_load_dwordx4 v[64:67], v55, s[26:27] {qp}", f"global_load_dwordx4 v[68:71], v55, s[26:27] offset:16 {qp}"],
                  None, None, None, sleep=self.opt.get("qsleep", 8), check=qcheck, ntn=self.opt.get("ntq", 16))
        e("v_cmp_ne_u32 s[64:65], 0, v74")
        e("s_cmp_eq_u64 s[64:65], 0"); e("s_cbranch_scc1 L_samex")
        self.lds_inc(F_MISM)
        self.lab("L_samex")
        e("v_mov_b32 v65, v66"); e("v_mov_b32 v66, v68"); e("v_mov_b32 v67, v70")
        e("ds_write_b128 v57, v[64:67]")
        e("s_waitcnt lgkmcnt(0)")
        self.lds_inc(F_QF)
        self.stamp(5)
        self.stop(3)
        self.wait_lds_ge(F_QF, 4, sleep=0)
        e(f"ds_read_b32 v4, v3 offset:{F_MISM-FLG}"); e("s_waitcnt lgkmcnt(0)"); e("v_readfirstlane_b32 s76, v4")
        for j in range(4):
            e(f"ds_read_b128 v[{64+4*j}:{67+4*j}], v56 offset:{j*1024}")
        e("s_lshr_b32 s48, s39, 4"); e("s_xor_b32 s48, s48, s32"); e("s_lshl_b32 s48, s48, 4"); e("s_add_u32 s48, s48, s35"); e("s_add_u32 s48, s48, 16")
        self.wait_lds_ge(F_LAND, "s48")
        self.stamp(6)
        kaddr = ["v58", "v59", "v60", "v61"]
        def kread(T):
            for j in range(4):
                e(f"ds_read_b128 v[{16+16*(T%2)+4*j}:{19+16*(T%2)+4*j}], {kaddr[j]} offset:{T*4096}")
        kread(0)
        for T in range(4):
            if T < 3: kread(T+1)
            for j in range(4):
                e(f"s_waitcnt lgkmcnt({(7 if T < 3 else 3)-j})")
                self.mfma(96+4*T, 16+16*(T%2)+4*j, 64+4*j, "0" if j == 0 else None)
        self.nop(8)
        S = [f"v{96+i}" for i in range(16)]
        for sh in (4, 8):
            for r in S:
                e(f"v_add_f32_dpp {r}, {r}, {r} row_ror:{sh} row_mask:0xf bank_mask:0xf")
        c1 = 128 ** -0.5 * 1.4426950408889634
        for r in S:
            e(f"v_mul_f32 {r}, {f32(c1)}, {r}")
        e("v_max3_f32 v16, v96, v97, v98")
        for i in range(3, 15, 2):
            e(f"v_max3_f32 v16, v16, v{96+i}, v{97+i}")
        e("v_max_f32 v16, v16, v111")
        self.xg_reduce(["v16"], "v_max_f32", ["v17"])
        e("v_lshlrev_b32 v18, 2, v114"); e(f"v_add_u32 v19, {FLG}, v18"); e("v_mov_b32 v57, v19")
        e("s_lshl_b32 s48, s32, 4"); e("v_add_u32 v18, s48, v19")
        e(f"ds_write_b32 v18, v16 offset:{WMAX-FLG}")
        e("s_waitcnt lgkmcnt(0)")
        self.lds_inc(F_MAX)
        self.wait_lds_ge(F_MAX, 4, sleep=0)
        for w in range(4):
            e(f"ds_read_b32 v{20+w}, v19 offset:{WMAX-FLG+16*w}")
        e("s_waitcnt lgkmcnt(0)")
        e("v_max3_f32 v62, v20, v21, v22"); e("v_max_f32 v62, v62, v23")
        for r in S:
            e(f"v_sub_f32 {r}, {r}, v62")
        for r in S:
            e(f"v_exp_f32 {r}, {r}")
        self.nop(1)
        e("v_add_f32 v16, v96, v97")
        for i in range(2, 16):
            e(f"v_add_f32 v16, v16, v{96+i}")
        self.xg_reduce(["v16"], "v_add_f32", ["v17"])
        e(f"ds_write_b32 v18, v16 offset:{WSUM-FLG}")
        for h in range(2):
            for i in range(4):
                e(f"v_cvt_pk_bf16_f32 v{24+4*h+i}, v{96+8*h+2*i}, v{97+8*h+2*i}")
        e("v_lshl_add_u32 v63, v2, 2, v114"); e("v_lshlrev_b32 v63, 4, v63"); e(f"v_add_u32 v63, {PB}, v63")
        e("s_lshl_b32 s48, s32, 9"); e("v_add_u32 v21, s48, v63")
        e("ds_write_b128 v21, v[24:27]"); e("ds_write_b128 v21, v[28:31] offset:256")
        e("s_waitcnt lgkmcnt(0)")
        self.lds_inc(F_P)
        self.stamp(7)
        e("s_lshr_b32 s52, s39, 3")
        e("s_lshl_b32 s48, s32, 6"); e("s_lshl_b32 s50, s52, 13"); e("s_or_b32 s48, s48, s50"); e(f"s_or_b32 s48, s48, {R_V}")
        e("v_xor_b32 v58, s48, v51")
        e("s_lshl_b32 s48, s52, 8"); e("v_xor_b32 v63, s48, v63")
        e("s_lshl_b32 s48, s28, 7"); e("s_lshl_b32 s50, s31, 3"); e("s_add_u32 s48, s48, s50"); e("s_add_u32 s48, s48, s30"); e("s_lshl_b32 s48, s48, 9")
        e("s_lshl_b32 s50, s32, 7"); e("s_add_u32 s48, s48, s50"); e(f"s_add_u32 s48, s48, {OBUF}")
        e("v_lshlrev_b32 v60, 14, v114"); e("v_bfe_u32 v61, v0, 2, 1"); e("v_lshl_add_u32 v60, v61, 6, v60"); e("v_lshl_add_u32 v60, v2, 4, v60"); e("v_add_u32 v60, s48, v60")
        e("s_lshl_b32 s48, s28, 2"); e("s_add_u32 s48, s48, s49"); e("s_lshl_b32 s48, s48, 14")
        e("s_add_u32 s48, s48, s50"); e(f"s_add_u32 s48, s48, {OBUF}")
        e("v_lshlrev_b32 v61, 9, v1"); e("v_lshl_add_u32 v61, v2, 4, v61"); e("v_add_u32 v61, s48, v61")
        e("v_add_u32 v56, 0x2000, v61")
        e("v_lshl_add_u32 v116, v2, 3, v112"); e("v_lshlrev_b32 v116, 4, v116"); e(f"v_add_u32 v116, {RED}, v116")
        e("s_lshl_b32 s48, s32, 11"); e("v_add_u32 v117, s48, v116")
        e("s_lshl_b32 s48, s32, 9"); e("v_add_u32 v118, s48, v116")
        e("s_and_b32 s48, s29, 7"); e("s_lshl_b32 s48, s48, 2"); e("s_add_u32 s48, s48, s32"); e("s_lshl_b32 s48, s48, 5")
        e("s_lshl_b32 s50, s28, 2"); e("s_add_u32 s48, s48, s50"); e("s_add_u32 s48, s48, s49"); e("s_lshl_b32 s48, s48, 7"); e(f"s_add_u32 s48, s48, {SBUF}")
        e("v_lshlrev_b32 v55, 17, v112"); e("v_lshl_add_u32 v55, v2, 5, v55"); e("v_lshl_add_u32 v55, v113, 4, v55"); e("v_add_u32 v55, s48, v55")
        e("s_lshl_b32 s48, s32, 12"); e(f"s_add_u32 s48, s48, {R_O}"); e("v_add_u32 v53, s48, v50")
        e("s_mov_b32 s56, 0x0f0f0f0f"); e("s_mov_b32 s57, 0x0f0f0f0f")
        self.wait_lds_ge(F_P, 4, sleep=0)
        for p in range(8):
            if p: e(f"v_xor_b32 v52, {p<<8}, v63")
            e(f"ds_read_b128 v[{64+4*p}:{67+4*p}], {'v52' if p else 'v63'}")
        spf = self.opt.get("statp", 5)
        for p in range(8):
            rb = 16 + 8*(p % 2)
            if p:
                e(f"v_xor_b32 v52, {p<<13}, v58")
            a0 = "v52" if p else "v58"
            e(f"v_xor_b32 v59, 32, {a0}")
            e(f"s_add_u32 s48, s36, {8*(p+1)}")
            self.wait_lds_ge(F_LAND, "s48", sleep=(0 if p >= 6 else 1))
            e(f"ds_read_b64_tr_b16 v[{rb}:{rb+1}], {a0}")
            e(f"ds_read_b64_tr_b16 v[{rb+2}:{rb+3}], {a0} offset:4096")
            e(f"ds_read_b64_tr_b16 v[{rb+4}:{rb+5}], v59")
            e(f"ds_read_b64_tr_b16 v[{rb+6}:{rb+7}], v59 offset:4096")
            e("s_waitcnt lgkmcnt(2)")
            self.mfma(96, rb, 64+4*p, "0" if p == 0 else None)
            e("s_waitcnt lgkmcnt(0)")
            self.mfma(100, rb+4, 64+4*p, "0" if p == 0 else None)
            if p == 6:
                self.wait_lds_ge(F_SCL, 1)
                e(f"ds_read_b32 v46, v57 offset:{SCL-FLG}")
                e("v_mov_b32 v41, s34"); e("v_mov_b32 v43, s34")
        self.stamp(8)
        self.nop(7)
        for i in range(8):
            e(f"v_mul_f32 v{96+i}, v{96+i}, v46")
        e("v_cvt_pk_bf16_f32 v96, v96, v97"); e("v_cvt_pk_bf16_f32 v98, v98, v99")
        e("v_cvt_pk_bf16_f32 v100, v100, v101"); e("v_cvt_pk_bf16_f32 v102, v102, v103")
        e("v_cndmask_b32 v40, v100, v96, s[56:57]"); e("v_cndmask_b32 v42, v102, v98, s[56:57]")
        e("s_mov_b64 exec, s[58:59]")
        e("s_cmp_eq_u32 s76, 0"); e("s_cbranch_scc0 L_osc1")
        e("global_store_dwordx4 v60, v[40:43], s[26:27]")
        e("s_branch L_opub")
        self.lab("L_osc1")
        e("global_store_dwordx4 v60, v[40:43], s[26:27] sc1")
        self.lab("L_opub")
        e("s_mov_b64 exec, -1")
        self.stamp(9)
        oloads = ["global_load_dwordx4 v[24:27], v61, s[26:27] sc1", "global_load_dwordx4 v[28:31], v61, s[26:27] offset:64 sc1",
                  "global_load_dwordx4 v[32:35], v56, s[26:27] sc1", "global_load_dwordx4 v[36:39], v56, s[26:27] offset:64 sc1"]
        early = self.opt.get("oearly", 1)
        if early:
            if self.opt.get("odelay", 0):
                e(f"s_sleep {self.opt['odelay']}")
            for l in oloads: e(l.replace(" sc1", " nt"))
        self.wait_lds_ge(F_LAND, "s37", sleep=0 if early else 1)
        for ct in range(4):
            if ct: e(f"v_xor_b32 v52, {ct<<5}, v53")
            a = "v53" if ct == 0 else "v52"
            e(f"ds_read_b64_tr_b16 v[{64+4*ct}:{65+4*ct}], {a}")
            e(f"ds_read_b64_tr_b16 v[{66+4*ct}:{67+4*ct}], {a} offset:2048")
        self.stamp(10)
        self.poll(oloads, ["v25", "v27", "v29", "v31", "v33", "v35", "v37", "v39"], "v44", "v45", sleep=self.opt.get("osleep", 2), ntn=self.opt.get("nto", 32), skip_first=bool(early))
        self.stamp(11)
        e("v_mov_b32 v25, v26"); e("v_mov_b32 v26, v28"); e("v_mov_b32 v27, v30")
        e("v_mov_b32 v33, v34"); e("v_mov_b32 v34, v36"); e("v_mov_b32 v35, v38")
        e("s_waitcnt lgkmcnt(0)")
        self.nop(1)
        for ct in range(4):
            self.mfma(96+4*ct, 64+4*ct, 24, "0")
        for ct in range(4):
            self.mfma(96+4*ct, 64+4*ct, 32)
        e("v_mov_b32 v17, s34"); e("v_mov_b32 v19, s34")
        self.nop(4)
        for ct in range(4):
            if ct == 3: self.nop(3)
            for r in S[4*ct:4*ct+4]:
                e(f"v_add_f32_dpp {r}, {r}, {r} row_ror:8 row_mask:0xf bank_mask:0xf")
            e("s_mov_b64 exec, s[58:59]")
            e(f"ds_write_b128 v117, v[{96+4*ct}:{99+4*ct}] offset:{ct*512}")
            e("s_mov_b64 exec, -1")
        e("s_waitcnt lgkmcnt(0)")
        self.lds_inc(F_RED)
        self.wait_lds_ge(F_RED, 4, sleep=0)
        for j in range(4):
            e(f"ds_read_b128 v[{64+4*j}:{67+4*j}], v118 offset:{j*2048}")
        e("s_waitcnt lgkmcnt(2)")
        for i in range(4):
            e(f"v_add_f32 v{64+i}, v{64+i}, v{68+i}")
        e("s_waitcnt lgkmcnt(0)")
        for i in range(4):
            e(f"v_add_f32 v{72+i}, v{72+i}, v{76+i}")
        for i in range(4):
            e(f"v_add_f32 v{64+i}, v{64+i}, v{72+i}")
        e("v_cndmask_b32 v16, v66, v64, s[58:59]"); e("v_cndmask_b32 v18, v67, v65, s[58:59]")
        e("global_store_dwordx4 v55, v[16:19], s[26:27] sc1")
        self.stamp(12)

        self.stamp_flush()
        e("s_endpgm")

    def fwave(self):
        self.role = "F"
        e = self.e
        self.lab("L_fwave")
        if self.opt.get("dbg"):
            e("s_memrealtime s[80:81]"); e("s_memtime s[82:83]")
        if self.opt.get("lite"): self.stamp(0)
        e("v_and_b32 v1, 15, v0"); e("v_lshrrev_b32 v2, 4, v0")
        e("v_lshlrev_b32 v10, 4, v0")
        if self.opt.get("cpf", 1):
            e("s_cmp_eq_u32 s33, 3"); e("s_cbranch_scc0 L_nocpf")
            e("s_getpc_b64 s[66:67]")
            self.lab("L_pcref")
            e(f"s_sub_u32 s66, s66, L_pcref-{NAME}"); e("s_subb_u32 s67, s67, 0")
            e("v_mov_b32 v11, v10")
            e(f"s_mov_b32 s48, (L_end-{NAME}+3)/1024")
            self.lab("L_cpf")
            e("global_load_dwordx4 v[12:15], v11, s[66:67]")
            e("v_add_u32 v11, 0x400, v11")
            e("s_sub_u32 s48, s48, 1"); e("s_cmp_lg_u32 s48, 0"); e("s_cbranch_scc1 L_cpf")
            self.lab("L_nocpf")
        if not self.opt.get("lite"): self.stamp(0)
        e("s_barrier")
        if self.opt.get("stop"):
            e("s_waitcnt lgkmcnt(0)")
            self.stamp_flush(); e("s_endpgm")
        e("v_lshrrev_b32 v48, 2, v0")
        e("v_and_b32 v49, 3, v0"); e("v_lshlrev_b32 v49, 3, v49")
        e("v_bfe_u32 v50, v0, 3, 2"); e("v_lshl_or_b32 v50, v50, 5, v49"); e("v_lshl_add_u32 v50, v48, 7, v50")
        e("v_and_b32 v51, 7, v48"); e("v_lshl_or_b32 v51, v51, 5, v49"); e("v_lshl_add_u32 v51, v48, 8, v51")
        e("v_and_b32 v112, 7, v0"); e("v_bfe_u32 v113, v0, 3, 1")
        e("s_lshl_b32 s52, s28, 2"); e("s_add_u32 s52, s52, s31")
        e("s_lshl_b32 s53, s30, 10"); e("s_lshl_b32 s48, s52, 5"); e("s_add_u32 s53, s53, s48")
        e("v_lshlrev_b32 v6, 2, v112"); e("v_add_u32 v6, s53, v6")
        e("s_waitcnt lgkmcnt(0)")
        e("global_load_dword v7, v6, s[4:5]")
        e("s_lshl_b32 s48, s30, 5"); e("s_add_u32 s48, s48, s52"); e("s_lshl_b32 s48, s48, 12")
        e("v_add_u32 v10, s48, v10")
        e(f"v_add_u32 v11, {FBUF}, v10"); e(f"v_add_u32 v10, {SBUF}, v10")
        self.wait_lds_ge(F_XN, 4)
        e(f"ds_read_b32 v4, v3 offset:{TAGW-FLG}")
        e("s_waitcnt lgkmcnt(0)")
        e("v_readfirstlane_b32 s34, v4")
        e("s_cmp_eq_u32 s33, 3"); e("s_cbranch_scc1 L_final")
        e("s_cmp_eq_u32 s33, 2"); e("s_cbranch_scc1 L_dunit")
        e("s_lshl_b32 s51, s68, 1"); e("s_and_b32 s48, s69, 1"); e("s_add_u32 s51, s51, s48")
        e("v_lshlrev_b32 v52, 4, v112"); e("v_lshl_add_u32 v52, v2, 7, v52")
        e("s_and_b32 s48, s51, 1"); e("s_lshl_b32 s48, s48, 12"); e(f"s_add_u32 s48, s48, {XN}"); e("v_add_u32 v52, s48, v52")
        e(f"v_add_u32 v53, {R_GU}, v50")
        e("s_mul_i32 s48, s33, 56"); e("s_add_u32 s48, s48, s51"); e("s_lshl_b32 s48, s48, 11"); e(f"s_add_u32 s48, s48, {GUBUF}")
        e("v_lshlrev_b32 v54, 8, v112"); e("v_lshl_add_u32 v54, v113, 6, v54"); e("v_lshl_add_u32 v54, v2, 4, v54"); e("v_add_u32 v54, s48, v54")
        for j in range(8):
            e(f"ds_read_b128 v[{64+4*j}:{67+4*j}], v52 offset:{j*512}")
        self.wait_lds_ge(F_LAND, "s38")
        self.stamp(1)
        for ct in range(4):
            if ct: e(f"v_xor_b32 v55, {ct<<5}, v53")
            a = "v53" if ct == 0 else "v55"
            for jh in range(2):
                for j in range(4*jh, 4*jh+4):
                    rb = 16 + 4*j
                    e(f"ds_read_b64_tr_b16 v[{rb}:{rb+1}], {a} offset:{32*j*128}")
                    e(f"ds_read_b64_tr_b16 v[{rb+2}:{rb+3}], {a} offset:{(32*j+16)*128}")
                for j in range(4*jh, 4*jh+4):
                    e(f"s_waitcnt lgkmcnt({6-2*(j%4)})")
                    self.mfma(96+4*ct, 16+4*j, 64+4*j, "0" if j == 0 else None)
        self.lds_inc(F_GUDONE)
        self.nop(6)
        for pr in range(2):
            a = 96 + 8*pr
            rb = 16 + 4*pr
            e(f"v_cvt_pk_bf16_f32 v{a}, v{a}, v{a+1}"); e(f"v_cvt_pk_bf16_f32 v{a+2}, v{a+2}, v{a+3}")
            e(f"v_cvt_pk_bf16_f32 v{a+4}, v{a+4}, v{a+5}"); e(f"v_cvt_pk_bf16_f32 v{a+6}, v{a+6}, v{a+7}")
            e(f"v_cndmask_b32 v{rb}, v{a+4}, v{a}, s[58:59]"); e(f"v_mov_b32 v{rb+1}, s34")
            e(f"v_cndmask_b32 v{rb+2}, v{a+6}, v{a+2}, s[58:59]"); e(f"v_mov_b32 v{rb+3}, s34")
            e(f"global_store_dwordx4 v54, v[{rb}:{rb+3}], s[26:27] offset:{pr*128}")
        self.stamp(2)
        self.wait_lds_ge(F_QF, 4, sleep=4)
        e(f"ds_read_b32 v4, v3 offset:{F_MISM-FLG}"); e("s_waitcnt lgkmcnt(0)"); e("v_readfirstlane_b32 s76, v4")
        e("s_cmp_eq_u32 s76, 0"); e("s_cbranch_scc1 L_final")
        for pr in range(2):
            e(f"global_store_dwordx4 v54, v[{16+4*pr}:{19+4*pr}], s[26:27] offset:{pr*128} sc1")
        e("s_branch L_final")
        self.lab("L_dunit")
        e("s_mov_b32 s50, s68")
        e("s_lshl_b32 s48, s50, 12"); e(f"s_add_u32 s48, s48, {GUBUF}")
        e("v_lshlrev_b32 v52, 8, v112"); e("v_lshl_add_u32 v52, v113, 7, v52")
        e("v_lshl_add_u32 v52, v2, 4, v52"); e("v_add_u32 v52, s48, v52")
        e(f"v_add_u32 v53, {56*2048}, v52")
        loads = []
        tags = []
        for m, a in ((0, "v52"), (1, "v53")):
            for kh in range(2):
                for un in range(2):
                    rb = 16 + 16*m + 8*kh + 4*un
                    loads.append(f"global_load_dwordx4 v[{rb}:{rb+3}], {a}, s[26:27] offset:{kh*2048 + un*64} sc1")
                    tags += [f"v{rb+1}", f"v{rb+3}"]
        e(f"s_add_u32 s48, s36, {self.opt.get('dtrig', 0)}")
        self.wait_lds_ge(F_LAND, "s48")
        self.poll(loads, tags, "v54", "v55", sleep=self.opt.get("dsleep", 8), ntn=self.opt.get("ntd", 16))
        self.stamp(1)
        for un in range(2):
            for dd in range(2):
                g0 = 16 + 4*un + 2*dd; g1 = g0 + 8; u0 = g0 + 16; u1 = g0 + 24
                for hi in range(2):
                    ex = (lambda d, s: f"v_and_b32 {d}, 0xffff0000, {s}") if hi else (lambda d, s: f"v_lshlrev_b32 {d}, 16, {s}")
                    e(ex("v56", f"v{g0}")); e(ex("v57", f"v{g1}")); e("v_add_f32 v56, v56, v57")
                    e(ex("v58", f"v{u0}")); e(ex("v57", f"v{u1}")); e("v_add_f32 v58, v58, v57")
                    e("v_cvt_pk_bf16_f32 v57, v56, v58")
                    e("v_lshlrev_b32 v56, 16, v57"); e("v_and_b32 v58, 0xffff0000, v57")
                    self.silu("v56", "v56", "v57")
                    self.bf16r("v56", "v56")
                    e(f"v_mul_f32 v{60+hi}, v56, v58")
                e(f"v_cvt_pk_bf16_f32 v{64+2*un+dd}, v60, v61")
        e(f"v_add_u32 v53, {R_D}, v51")
        e("s_lshl_b32 s48, s69, 8"); e("s_add_u32 s48, s48, s50"); e("s_lshl_b32 s48, s48, 7"); e(f"s_add_u32 s48, s48, {FBUF}")
        e("v_lshlrev_b32 v54, 17, v112"); e("v_lshl_add_u32 v54, v2, 5, v54"); e("v_lshl_add_u32 v54, v113, 4, v54"); e("v_add_u32 v54, s48, v54")
        self.wait_lds_ge(F_LAND, "s38")
        for half in range(2):
            for c2 in range(2):
                for c4 in range(2*c2, 2*c2+2):
                    ct = 4*half + c4
                    e(f"v_xor_b32 v55, {ct<<5}, v53")
                    rb = 16 + 8*c4
                    for j in range(2):
                        e(f"ds_read_b64_tr_b16 v[{rb+4*j}:{rb+4*j+1}], v55 offset:{32*j*256}")
                        e(f"ds_read_b64_tr_b16 v[{rb+4*j+2}:{rb+4*j+3}], v55 offset:{(32*j+16)*256}")
                for c4 in range(2*c2, 2*c2+2):
                    rb = 16 + 8*c4
                    e(f"s_waitcnt lgkmcnt({6-4*(c4%2)})")
                    self.mfma(72+8*c4, rb, 64, "0")
                    e(f"s_waitcnt lgkmcnt({4-4*(c4%2)})")
                    self.mfma(76+8*c4, rb+4, 64, "0")
            self.nop(8)
            for c4 in range(4):
                ct = 4*half + c4
                a = 72 + 8*c4
                rb = (104 + 2*c4) if half == 0 else (114 + 2*c4)
                rb = FPARK[ct]
                e(f"v_add_f32_dpp v56, v{a+4}, v{a} row_ror:8 row_mask:0xf bank_mask:0xf")
                e(f"v_add_f32_dpp v57, v{a+5}, v{a+1} row_ror:8 row_mask:0xf bank_mask:0xf")
                e(f"v_add_f32_dpp v58, v{a+2}, v{a+6} row_ror:8 row_mask:0xf bank_mask:0xf")
                e(f"v_add_f32_dpp v59, v{a+3}, v{a+7} row_ror:8 row_mask:0xf bank_mask:0xf")
                e(f"v_cndmask_b32 v{rb}, v58, v56, s[58:59]")
                e(f"v_cndmask_b32 v{rb+1}, v59, v57, s[58:59]")
            self.nop(2)
        if self.opt.get("ftrig", 0):
            e(f"s_add_u32 s48, s36, {self.opt['ftrig']}")
            self.wait_lds_ge(F_LAND, "s48", sleep=4)
        for ct in range(8):
            rb = 16 + 4*ct
            e(f"v_mov_b32 v{rb}, v{FPARK[ct]}"); e(f"v_mov_b32 v{rb+1}, s34"); e(f"v_mov_b32 v{rb+2}, v{FPARK[ct]+1}"); e(f"v_mov_b32 v{rb+3}, s34")
            e(f"v_add_u32 v55, {ct*4096}, v54")
            e(f"global_store_dwordx4 v55, v[{rb}:{rb+3}], s[26:27] sc1")
        self.nop(2)
        self.stamp(2)
        self.lab("L_final")
        self.wait_lds_ge(F_LAND, "s37")
        loads = [f"global_load_dwordx4 v[{16+4*t}:{19+4*t}], v11, s[26:27] offset:{t*1024} sc1" for t in range(3)]
        loads += ["s_mov_b32 exec_hi, 0", "global_load_dwordx4 v[28:31], v11, s[26:27] offset:3072 sc1"]
        pre = ["v_mov_b32 v28, 0", "v_mov_b32 v29, s34", "v_mov_b32 v30, 0", "v_mov_b32 v31, s34"]
        self.poll(loads, [f"v{17+2*i}" for i in range(8)], "v12", "v13", sleep=4, pre=pre, ntn=self.opt.get("ntf", 0))
        self.stamp(3)
        e("v_add_f32 v32, v16, v20"); e("v_add_f32 v33, v18, v22"); e("v_add_f32 v34, v24, v28"); e("v_add_f32 v35, v26, v30")
        e("v_add_f32 v32, v32, v34"); e("v_add_f32 v33, v33, v35")
        self.nop(2)
        e("v_add_f32_dpp v32, v32, v32 row_ror:8 row_mask:0xf bank_mask:0xf"); e("v_add_f32_dpp v33, v33, v33 row_ror:8 row_mask:0xf bank_mask:0xf")
        self.xg_reduce(["v32", "v33"], "v_add_f32", ["v34", "v35"])
        e("v_cvt_pk_bf16_f32 v34, v32, v33"); e("v_lshlrev_b32 v32, 16, v34"); e("v_and_b32 v33, 0xffff0000, v34")
        self.silu("v32", "v32", "v34"); self.silu("v33", "v33", "v34")
        e("v_cvt_pk_bf16_f32 v34, v32, v33"); e("v_lshlrev_b32 v32, 16, v34"); e("v_and_b32 v33, 0xffff0000, v34")
        e("v_lshlrev_b32 v8, 16, v7"); e("v_and_b32 v9, 0xffff0000, v7")
        loads = [f"global_load_dwordx4 v[{16+4*t}:{19+4*t}], v10, s[26:27] offset:{t*1024} sc1" for t in range(4)]
        self.wait_lds_ge(F_RED, 4)
        if self.opt.get("sdelay", 0):
            e(f"s_sleep {self.opt['sdelay']}")
        self.poll(loads, [f"v{17+2*i}" for i in range(8)], "v12", "v13", sleep=self.opt.get("ssleep", 2), ntn=self.opt.get("nts", 0))
        self.stamp(4)
        e("v_add_f32 v36, v16, v20"); e("v_add_f32 v37, v18, v22"); e("v_add_f32 v34, v24, v28"); e("v_add_f32 v35, v26, v30")
        e("v_add_f32 v36, v36, v34"); e("v_add_f32 v37, v37, v35")
        self.nop(2)
        e("v_add_f32_dpp v36, v36, v36 row_ror:8 row_mask:0xf bank_mask:0xf"); e("v_add_f32_dpp v37, v37, v37 row_ror:8 row_mask:0xf bank_mask:0xf")
        self.xg_reduce(["v36", "v37"], "v_add_f32", ["v34", "v35"])
        e("v_cvt_pk_bf16_f32 v34, v36, v37"); e("v_lshlrev_b32 v36, 16, v34"); e("v_and_b32 v37, 0xffff0000, v34")
        e("v_mul_f32 v36, v36, v32"); e("v_mul_f32 v37, v37, v33")
        e("v_cvt_pk_bf16_f32 v34, v36, v37"); e("v_lshlrev_b32 v36, 16, v34"); e("v_and_b32 v37, 0xffff0000, v34")
        e("v_add_f32 v36, v36, v8"); e("v_add_f32 v37, v37, v9")
        e("v_cvt_pk_bf16_f32 v34, v36, v37")
        e("s_mov_b64 exec, 0xff")
        e("global_store_dword v6, v34, s[22:23]")
        e("s_cmp_lg_u32 s2, 0"); e("s_cbranch_scc1 L_noep")
        e("s_mov_b64 exec, 1")
        e("v_mov_b32 v35, s34"); e("v_mov_b32 v36, 0")
        e("global_store_dword v36, v35, s[26:27] sc1")
        if self.opt.get("dbg"):
            e("s_memrealtime s[84:85]"); e("s_memtime s[86:87]"); e("s_waitcnt lgkmcnt(0)")
            e("s_sub_u32 s84, s84, s80"); e("s_sub_u32 s86, s86, s82")
            e("v_mov_b32 v40, s84"); e("v_mov_b32 v41, s86")
            e("global_store_dwordx2 v36, v[40:41], s[24:25]")
        self.lab("L_noep")
        e("s_mov_b64 exec, -1")
        self.stamp(5)
        self.stamp_flush()

    def swave(self):
        self.role = "S"
        e = self.e
        self.lab("L_swave")
        e("v_and_b32 v1, 15, v0"); e("v_lshrrev_b32 v2, 4, v0")
        e("s_barrier")
        if self.opt.get("stop"):
            e("s_endpgm")
        self.wait_lds_ge(F_XN, 4, sleep=4)
        e(f"ds_read_b32 v4, v3 offset:{TAGW-FLG}")
        e("s_waitcnt lgkmcnt(0)")
        e("v_readfirstlane_b32 s34, v4")
        e("v_and_b32 v114, 3, v0")
        e("v_lshlrev_b32 v56, 2, v114"); e(f"v_add_u32 v56, {FLG}, v56")
        e("s_lshl_b32 s51, s28, 3"); e("s_add_u32 s51, s51, s30"); e("s_lshl_b32 s51, s51, 9"); e(f"s_add_u32 s51, s51, {STBUF}")
        e("v_lshlrev_b32 v57, 4, v114"); e("v_lshl_add_u32 v57, v2, 7, v57"); e("v_add_u32 v57, s51, v57")
        e("s_lshl_b32 s48, s31, 7"); e("s_add_u32 s48, s48, s51")
        e("v_lshlrev_b32 v58, 4, v0"); e("v_add_u32 v58, s48, v58")
        self.wait_lds_ge(F_P, 4, sleep=2)
        for w in range(4):
            e(f"ds_read_b32 v{20+w}, v56 offset:{WMAX-FLG+16*w}")
            e(f"ds_read_b32 v{28+w}, v56 offset:{WSUM-FLG+16*w}")
        e(f"ds_read_b32 v32, v3 offset:{F_MISM-FLG}")
        e("s_waitcnt lgkmcnt(0)")
        e("v_max3_f32 v62, v20, v21, v22"); e("v_max_f32 v62, v62, v23")
        e("v_add_f32 v28, v28, v29"); e("v_add_f32 v30, v30, v31"); e("v_add_f32 v26, v28, v30")
        e("v_mov_b32 v24, v62"); e("v_mov_b32 v25, s34"); e("v_mov_b32 v27, s34")
        e("v_readfirstlane_b32 s76, v32")
        e("s_mov_b64 exec, 0xff")
        e("s_cmp_eq_u32 s76, 0"); e("s_cbranch_scc0 L_ssc1")
        e("global_store_dwordx4 v58, v[24:27], s[26:27]")
        e("s_branch L_spub")
        self.lab("L_ssc1")
        e("global_store_dwordx4 v58, v[24:27], s[26:27] sc1")
        self.lab("L_spub")
        e("s_mov_b64 exec, -1")
        e(f"s_sleep {self.opt.get('stdelay', 8)}")
        self.poll(["global_load_dwordx4 v[40:43], v57, s[26:27] sc1"], ["v41", "v43"], "v44", "v45", sleep=8, ntn=self.opt.get("ntst", 16))
        e("v_mov_b32 v44, v40")
        self.xg_reduce(["v44"], "v_max_f32", ["v45"])
        e("v_sub_f32 v40, v40, v44"); e("v_exp_f32 v40, v40"); e("v_sub_f32 v46, v62, v44"); e("v_exp_f32 v46, v46")
        e("v_mul_f32 v42, v42, v40")
        self.xg_reduce(["v42"], "v_add_f32", ["v45"])
        e("v_rcp_f32 v42, v42")
        self.nop(1)
        e("v_mul_f32 v46, v46, v42")
        e(f"ds_write_b32 v56, v46 offset:{SCL-FLG}")
        e("s_waitcnt lgkmcnt(0)")
        self.lds_inc(F_SCL)
        e("s_endpgm")

    def build(self):
        hdr = open("recurrent_scan__sliding_block_cached__swiglu_ffn__decode.s.ref").read().split("\n")
        out = []
        for line in hdr:
            if line.startswith("; @launch"):
                out.append(f"; @launch grid=(256,1,1) block=(448,1,1) lds={LDS_BYTES}")
            elif line.startswith(";"):
                out.append(line)
            else:
                break
        out += ['.amdgcn_target "amdgcn-amd-amdhsa--gfx950"', ".text", f".globl {NAME}", ".p2align 8", f".type {NAME},@function", f"{NAME}:"]
        self.prologue()
        self.cwave()
        self.loader()
        self.swave()
        self.fwave()
        self.lab("L_end")
        self.e("s_endpgm")
        out += self.L
        out += ['.section .rodata,"a"', ".p2align 6", f".amdhsa_kernel {NAME}",
                "  .amdhsa_next_free_vgpr 128", "  .amdhsa_next_free_sgpr 102", "  .amdhsa_accum_offset 128",
                "  .amdhsa_group_segment_fixed_size 0", "  .amdhsa_kernarg_size 96", "  .amdhsa_user_sgpr_count 2",
                "  .amdhsa_user_sgpr_kernarg_segment_ptr 1", "  .amdhsa_system_sgpr_workgroup_id_x 1", ".end_amdhsa_kernel", ""]
        return "\n".join(out)

if __name__ == "__main__":
    import argparse
    ap = argparse.ArgumentParser()
    ap.add_argument("-o", default="recurrent_scan__sliding_block_cached__swiglu_ffn__decode.s")
    ap.add_argument("--depth", type=int, default=24)
    ap.add_argument("--stamps", action="store_true")
    ap.add_argument("--opt", default="")
    a = ap.parse_args()
    opt = {}
    for kv in a.opt.split(","):
        if kv:
            k, v = kv.split("="); opt[k] = int(v)
    g = G(depth=a.depth, stamps=a.stamps, opt=opt)
    open(a.o, "w").write(g.build())
    print("wrote", a.o, len(g.L), "lines")
```

```python
import sys, struct

NAME = "recurrent_scan__sliding_block_cached__swiglu_ffn__decode_kernel"

WS_EPOCH = 0
QBUF = 0x10000
STBUF = 0x90000
OBUF = 0xA0000
GUBUF = 0x120000
SBUF = 0x200000
FBUF = 0x300000
DBG = 0x800000

R_K = 0
R_V = 65536
R_Q = 131072
MISC = 147456
XN = MISC
QF = MISC + 8192
PB = MISC + 12288
FLG = MISC + 14336
F_LAND, F_XN, F_QDONE, F_QF, F_MAX, F_P, F_GUDONE, F_RED, F_SCL, F_MISM = [FLG + 4*i for i in range(10)]
WMAX = FLG + 64
WSUM = FLG + 128
TAGW = FLG + 192
SCL = FLG + 208
QST = FLG + 256
R_O = R_K
RED = R_K + 16384
R_GU = R_V + 32768
R_D = R_Q
LDS_BYTES = 163840
FPARK = [104, 106, 108, 110, 114, 116, 124, 126]

DOC = '''; ---------------------------------------------------------------------------------------------
; One persistent launch, 256 workgroups (one per CU), 7 waves each:
; wg -> (kvh = wg%8, idx = wg/8, b = idx/4, c = idx%4).  Hand-offs go through d_ws as 16-byte
; {data, tag, data, tag} granules, tag = (word 0 of d_ws at entry) + 1; whole 128-byte lines per store.
; the result does not depend on workgroup placement.  Every spin is bounded.
; ---------------------------------------------------------------------------------------------'''

def f32(x):
    return "0x%08x" % struct.unpack("<I", struct.pack("<f", x))[0]

class G:
    def __init__(self, depth=24, stamps=False, spin_limit=1 << 20, opt=None):
        self.opt = dict(sdelay=22, ssleep=1, cpf=0, dlate=0, osleep=0, dg=27, qtrig=48)
        self.opt.update(opt or {})
        self.L = []
        self.depth = depth
        self.stamps = stamps
        self.uid = 0
        self.spin_limit = spin_limit
    def e(self, s):
        self.L.append("    " + s)
    def lab(self, s):
        self.L.append(s + ":")
    def newlab(self, p="L"):
        self.uid += 1
        return f"{p}_{self.uid}"
    def c(self, s):
        self.L.append("    ; " + s)
    def nop(self, n):
        while n > 0:
            k = min(n, 16)
            self.e(f"s_nop {k-1}")
            n -= k
    def stamp(self, k):
        if not self.stamps:
            return
        if self.opt.get("lite") and (self.role, k) not in (("F", 0), ("F", 5), ("C", 9), ("C", 11), ("C", 12), ("L", 5), ("L", 3), ("L", 2), ("C", 5), ("C", 7)):
            return
        self.e("s_memrealtime s[90:91]")
        self.e("s_waitcnt lgkmcnt(0)")
        self.e("v_mov_b32 v120, s90")
        self.e(f"v_writelane_b32 v121, s90, {k}")
        if not self.opt.get("lite"):
            self.e("s_memtime s[90:91]")
            self.e("s_waitcnt lgkmcnt(0)")
            self.e(f"v_writelane_b32 v121, s90, {32+k}")
    def stop(self, n):
        if self.opt.get("stop") == n:
            self.stamp_flush()
            self.e("s_endpgm")
    def stamp_flush(self):
        if not self.stamps:
            return
        self.e("s_mov_b64 exec, -1")
        self.e("global_store_dword v122, v121, s[26:27]")
        self.e("s_waitcnt vmcnt(0)")

    def wait_lds_ge(self, flag, val, vaddr="v3", vtmp="v4", stmp="s60", sleep=1, onfail=None):
        l0 = self.newlab("WL"); l1 = self.newlab("WD")
        self.e("s_mov_b32 s61, 0")
        self.lab(l0)
        self.e(f"ds_read_b32 {vtmp}, {vaddr} offset:{flag - FLG}")
        self.e("s_waitcnt lgkmcnt(0)")
        self.e(f"v_readfirstlane_b32 {stmp}, {vtmp}")
        self.e("s_add_u32 s61, s61, 1")
        self.e(f"s_cmp_ge_i32 {stmp}, {val}")
        self.e(f"s_cbranch_scc1 {l1}")
        if onfail: onfail()
        if sleep:
            self.e(f"s_sleep {sleep}")
        self.e(f"s_cmp_lt_u32 s61, {self.spin_limit}")
        self.e(f"s_cbranch_scc1 {l0}")
        self.lab(l1)
    def lds_inc(self, flag, vaddr="v3", vone="v5"):
        self.e("s_mov_b64 exec, 1")
        self.e(f"ds_add_u32 {vaddr}, {vone} offset:{flag - FLG}")
        self.e("s_mov_b64 exec, -1")

    def allreduce(self, regs, op, tmp):
        for sh in (8, 4, 2, 1):
            self.nop(2 if len(regs) < 3 else 1)
            for r in regs:
                self.e(f"{op}_dpp {r}, {r}, {r} row_ror:{sh} row_mask:0xf bank_mask:0xf")
        self.xg_reduce(regs, op, tmp)
    def xg_reduce(self, regs, op, tmp):
        for sw in ("v_permlane16_swap_b32", "v_permlane32_swap_b32"):
            for r, t in zip(regs, tmp):
                self.e(f"v_mov_b32 {t}, {r}")
            self.nop(2)
            for r, t in zip(regs, tmp):
                self.e(f"{sw} {r}, {t}")
            self.nop(1)
            for r, t in zip(regs, tmp):
                self.e(f"{op} {r}, {r}, {t}")

    def tagcheck(self, tagregs, acc, t2, stag="s34", t3="v119", sm="s[64:65]"):
        first = True
        i = 0
        while i < len(tagregs):
            if first:
                self.e(f"v_xor_b32 {acc}, {stag}, {tagregs[i]}"); i += 1; first = False
            elif i + 1 < len(tagregs):
                self.e(f"v_xor_b32 {t2}, {stag}, {tagregs[i]}")
                self.e(f"v_xor_b32 {t3}, {stag}, {tagregs[i+1]}")
                self.e(f"v_or3_b32 {acc}, {acc}, {t2}, {t3}")
                i += 2
            else:
                self.e(f"v_xor_b32 {t2}, {stag}, {tagregs[i]}")
                self.e(f"v_or_b32 {acc}, {acc}, {t2}")
                i += 1
        self.e(f"v_cmp_ne_u32 {sm}, 0, {acc}")
        self.e(f"s_cmp_eq_u64 {sm}, 0")

    def repub(self, stores, cond="vland", sflag="s70", niter=3):
        e = self.e
        ls = self.newlab("RP")
        e(f"s_cmp_lg_u32 {sflag}, 0"); e(f"s_cbranch_scc1 {ls}")
        if cond == "vland":
            e(f"ds_read_b32 v4, v3 offset:{F_LAND-FLG}"); e("s_waitcnt lgkmcnt(0)"); e("v_readfirstlane_b32 s60, v4")
            e("s_add_u32 s71, s36, 64"); e("s_cmp_ge_i32 s60, s71"); e(f"s_cbranch_scc0 {ls}")
        elif cond == "iter":
            e(f"s_cmp_ge_u32 s61, {niter}"); e(f"s_cbranch_scc0 {ls}")
        e(f"s_mov_b32 {sflag}, 1")
        for st in stores: e(st)
        self.lab(ls)

    def poll(self, loads, tagregs, acc, t2, sleep=2, pre=None, skip_first=False, onfail=None, check=None, ntn=0):
        l0 = self.newlab("PL"); l1 = self.newlab("PD"); lc = self.newlab("PC")
        self.e("s_mov_b32 s61, 0")
        if pre:
            for p in pre: self.e(p)
        if skip_first:
            self.e(f"s_branch {lc}")
        else:
            self.e("s_mov_b64 s[64:65], -1")
        self.lab(l0)
        self.e("s_mov_b64 exec, s[64:65]")
        if ntn:
            l2 = self.newlab("PS")
            self.e(f"s_cmp_ge_u32 s61, {ntn}"); self.e(f"s_cbranch_scc1 {l2}")
            for s in loads:
                self.e(s.replace(" sc1", " nt"))
            self.e("s_mov_b64 exec, -1")
            self.e(f"s_branch {lc}")
            self.lab(l2)
        for s in loads:
            self.e(s)
        self.e("s_mov_b64 exec, -1")
        self.lab(lc)
        self.e("s_waitcnt vmcnt(0)")
        if check: check()
        else: self.tagcheck(tagregs, acc, t2)
        self.e(f"s_cbranch_scc1 {l1}")
        self.e("s_add_u32 s61, s61, 1")
        if onfail: onfail()
        if sleep:
            self.e(f"s_sleep {sleep}")
        self.e(f"s_cmp_lt_u32 s61, {self.spin_limit >> 3}")
        self.e(f"s_cbranch_scc1 {l0}")
        self.lab(l1)

    def mfma(self, d, a, b, c=None):
        cc = f"v[{d}:{d+3}]" if c is None else c
        self.e(f"v_mfma_f32_16x16x32_bf16 v[{d}:{d+3}], v[{a}:{a+3}], v[{b}:{b+3}], {cc}")

    def bf16r(self, dst, src, tmp=None):
        self.e(f"v_cvt_pk_bf16_f32 {dst}, {src}, {src}")
        self.e(f"v_lshlrev_b32 {dst}, 16, {dst}")

    def silu(self, dst, x, t):
        self.e(f"v_mul_f32 {t}, {f32(-1.4426950408889634)}, {x}")
        self.e(f"v_exp_f32 {t}, {t}")
        self.nop(1)
        self.e(f"v_add_f32 {t}, 1.0, {t}")
        self.e(f"v_rcp_f32 {t}, {t}")
        self.nop(1)
        self.e(f"v_mul_f32 {dst}, {x}, {t}")

    def prologue(self):
        e = self.e
        e("s_cmp_ge_u32 s2, 256")
        e("s_cbranch_scc1 L_end")
        e("s_load_dwordx16 s[4:19], s[0:1], 0")
        e("s_load_dwordx8 s[20:27], s[0:1], 64")
        e("v_lshrrev_b32 v1, 6, v0")
        e("v_and_b32 v0, 63, v0")
        e("s_and_b32 s28, s2, 7")
        e("v_readfirstlane_b32 s32, v1")
        e("s_lshr_b32 s29, s2, 3")
        e("s_lshr_b32 s30, s29, 2")
        e("s_and_b32 s31, s29, 3")
        e("s_bfe_u32 s33, s29, 0x10001")
        e("s_cmp_ge_u32 s29, 16"); e("s_cselect_b32 s33, 2, s33")
        e("s_cmp_eq_u32 s28, 7"); e("s_cselect_b32 s33, 3, s33")
        e("s_bfe_u32 s68, s29, 0x20002"); e("s_lshl_b32 s69, s28, 2"); e("s_add_u32 s68, s68, s69"); e("s_and_b32 s69, s29, 3")
        e("s_mov_b32 s70, 0")
        e("s_getreg_b32 s74, hwreg(HW_REG_XCC_ID)"); e("s_and_b32 s74, s74, 15"); e("s_lshl_b32 s74, s74, 28")
        e("s_cmp_lt_u32 s33, 2")
        e("s_cselect_b32 s35, 48, 16")
        e("s_cselect_b32 s38, 48, 0x60")
        e("s_add_u32 s36, s35, 64")
        e("s_cmp_eq_u32 s33, 2")
        if self.opt.get("dlate", 1):
            e("s_cselect_b32 s38, 0xb0, s38")
            e("s_add_u32 s37, s36, 0x50")
            e("s_cmp_eq_u32 s33, 2")
            e("s_cselect_b32 s55, 0xb0, s37")
        else:
            e("s_cselect_b32 s36, 0x60, s36")
            e("s_add_u32 s37, s36, 0x50")
            e("s_mov_b32 s55, s37")
        if self.opt.get("stag", 1):
            e("s_mul_i32 s39, s2, 0x9e3779b1"); e("s_lshr_b32 s39, s39, 26")
        else:
            e("s_mov_b32 s39, 0")
        e(f"v_mov_b32 v3, {FLG}")
        e("v_mov_b32 v5, 1")
        e("s_mov_b32 s58, 0x00ff00ff"); e("s_mov_b32 s59, 0x00ff00ff")
        if self.stamps:
            e("v_mov_b32 v121, 0")
            e("s_lshl_b32 s92, s2, 3"); e("s_add_u32 s92, s92, s32"); e("s_lshl_b32 s92, s92, 8"); e(f"s_add_u32 s92, s92, {DBG}")
            e("v_lshlrev_b32 v122, 2, v0"); e("v_add_u32 v122, s92, v122")
        if self.opt.get("lfirst", 1):
            e("s_cmp_lt_u32 s32, 4"); e("s_cbranch_scc1 L_cwave")
        else:
            e("s_cmp_eq_u32 s32, 4"); e("s_cbranch_scc1 L_loader")
        e("s_cmp_eq_u32 s32, 5"); e("s_cbranch_scc1 L_fwave")
        e("s_cmp_eq_u32 s32, 6"); e("s_cbranch_scc1 L_swave")

    def setdepth(self, Dold, Dnew):
        if Dnew != Dold:
            self.e(f"s_add_u32 s47, s47, {Dold - Dnew}")
    def seg(self, base, nrec, soff_code, step, lds, count, voffs, first=False, xor=False, D=None, t0=0):
        e = self.e
        D = D or self.depth
        assert count % 4 == 0
        if count == 0:
            return
        e(f"s_mov_b32 s40, s{base}"); e(f"s_and_b32 s41, s{base+1}, 0xffff"); e(f"s_mov_b32 s42, {nrec}"); e("s_mov_b32 s43, 0x20000")
        for s in soff_code: e(s)
        if xor:
            e("s_lshl_b32 s45, s39, 10")
            e(f"s_mov_b32 s49, {t0*1024}")
        else:
            e(f"s_mov_b32 s45, {lds}")
        e(f"s_mov_b32 s46, {count//4}")
        l0 = self.newlab("SEG")
        self.lab(l0)
        for u in range(4):
            if xor:
                e("s_xor_b32 s48, s49, s45")
                e("s_add_u32 s54, s44, s48")
            if not first:
                e(f"s_waitcnt vmcnt({D-1})")
                e("v_mov_b32 v20, s47")
                e(f"ds_write_b32 v3, v20 offset:{F_LAND-FLG}")
            if xor:
                e(f"s_add_u32 m0, s48, {lds}")
                e("s_add_u32 s47, s47, 1")
                e(f"buffer_load_dwordx4 {voffs[u]}, s[40:43], s54 offen nt lds")
                e("s_add_u32 s49, s49, 1024")
            else:
                e("s_mov_b32 m0, s45")
                e("s_add_u32 s47, s47, 1")
                e(f"buffer_load_dwordx4 {voffs[u]}, s[40:43], s44 offen nt lds")
                e("s_add_u32 s45, s45, 1024")
                e(f"s_add_u32 s44, s44, {step}")
        e("s_sub_u32 s46, s46, 1")
        e("s_cmp_lg_u32 s46, 0")
        e(f"s_cbranch_scc1 {l0}")

    def loader(self):
        self.role = "L"
        e = self.e
        D = self.depth
        assert D >= 17
        stop = self.opt.get("stop")
        self.lab("L_loader")
        e("s_setprio 3")
        e("v_mov_b32 v20, 0")
        e("v_lshlrev_b32 v21, 2, v0"); e(f"v_add_u32 v21, {FLG}, v21")
        e("ds_write_b32 v21, v20")
        e("v_lshrrev_b32 v6, 4, v0")
        e("v_lshrrev_b32 v7, 3, v0")
        e("v_and_b32 v8, 1, v0"); e("v_lshlrev_b32 v8, 4, v8")
        e("v_bfe_u32 v9, v0, 1, 2"); e("v_xor_b32 v9, v9, v6"); e("v_lshl_or_b32 v9, v9, 5, v8")
        e("v_lshl_add_u32 v10, v7, 13, v9")
        e(f"s_mov_b32 s47, {-(D-1)}")
        e("s_waitcnt lgkmcnt(0)")
        self.stamp(0)
        self.seg(10, 4 << 20, ["s_lshr_b32 s44, s29, 3", "s_lshl_b32 s44, s44, 20", "s_lshl_b32 s48, s28, 10", "s_add_u32 s44, s44, s48",
                               "s_and_b32 s48, s29, 7", "s_lshl_b32 s48, s48, 7", "s_add_u32 s44, s44, s48"],
                 65536, R_Q, 16, ["v10"]*4, first=True)
        e("s_barrier")
        self.stamp(1)
        e("v_and_b32 v11, 15, v0"); e("v_xor_b32 v11, v11, v6"); e("v_lshlrev_b32 v11, 4, v11"); e("v_lshl_add_u32 v11, v6, 8, v11")
        e("s_and_b32 s48, s39, 3"); e("s_lshl_b32 s48, s48, 6"); e("v_xor_b32 v11, s48, v11")
        e("v_xor_b32 v12, 64, v11"); e("v_xor_b32 v13, 0x80, v11"); e("v_xor_b32 v14, 0xc0, v11")
        e("v_bfe_u32 v15, v0, 1, 3"); e("v_xor_b32 v15, v15, v6"); e("v_lshl_or_b32 v15, v15, 5, v8")
        e("v_lshl_add_u32 v16, v6, 8, v15")
        e("s_and_b32 s48, s39, 1"); e("s_lshl_b32 s48, s48, 7"); e("v_xor_b32 v16, s48, v16")
        e("v_xor_b32 v17, 0x80, v16")
        e("v_lshl_add_u32 v18, v6, 10, v15"); e("v_xor_b32 v19, 0x80, v18")
        e("v_lshl_add_u32 v22, v7, 10, v9")
        e("s_movk_i32 s48, 3584"); e("v_mul_lo_u32 v23, v7, s48"); e("v_add_u32 v23, v23, v9")
        e("s_lshl_b32 s50, s30, 3"); e("s_add_u32 s50, s50, s28"); e("s_lshl_b32 s50, s50, 20")
        e("s_lshl_b32 s48, s31, 16"); e("s_add_u32 s50, s50, s48"); e("s_add_u32 s50, s50, 786432")
        DG = self.opt.get("dg", D); DE = self.opt.get("de", D); VS = self.opt.get("vsplit", 32)
        dlate = self.opt.get("dlate", 1)
        oseg = ["s_lshl_b32 s44, s28, 2", "s_lshr_b32 s48, s29, 3", "s_add_u32 s44, s44, s48", "s_lshl_b32 s44, s44, 17",
                "s_and_b32 s48, s29, 7", "s_lshl_b32 s48, s48, 7", "s_add_u32 s44, s44, s48"]
        dseg = ["s_lshl_b32 s44, s68, 16", "s_lshl_b32 s48, s69, 8", "s_add_u32 s44, s44, s48"]
        KV = ["v11", "v12", "v13", "v14"]; VV = ["v16", "v17", "v16", "v17"]
        e("s_cmp_lt_u32 s33, 2"); e("s_cbranch_scc0 L_noGU")
        e("s_cmp_eq_u32 s33, 0")
        e("s_cselect_b32 s52, s16, s18"); e("s_cselect_b32 s53, s17, s19")
        self.setdepth(D, DG)
        self.seg(52, 512*3584, ["s_and_b32 s44, s69, 1", f"s_mul_i32 s44, s44, {256*3584}", "s_lshl_b32 s48, s68, 7", "s_add_u32 s44, s44, s48"],
                 8*3584, R_GU, 32, ["v23"]*4, D=DG)
        self.seg(6, 64 << 20, ["s_mov_b32 s44, s50"], 1024, R_K, 64, KV, xor=True, D=DG)
        self.stamp(2)
        if not stop: self.wait_lds_ge(F_GUDONE, 1)
        self.seg(8, 64 << 20, ["s_mov_b32 s44, s50"], 1024, R_V, VS, VV, xor=True, D=DG)
        self.setdepth(DG, DE)
        e("s_branch L_vtail")
        self.lab("L_noGU")
        self.seg(6, 64 << 20, ["s_mov_b32 s44, s50"], 1024, R_K, 64, KV, xor=True)
        self.stamp(2)
        if not dlate:
            e("s_cmp_eq_u32 s33, 2"); e("s_cbranch_scc0 L_noD")
            if not stop: self.wait_lds_ge(F_QDONE, 2)
            self.seg(20, 1792*1024, dseg, 4096, R_D, 16, ["v18", "v19", "v18", "v19"])
            self.lab("L_noD")
        self.seg(8, 64 << 20, ["s_mov_b32 s44, s50"], 1024, R_V, VS, VV, xor=True)
        self.setdepth(D, DE)
        self.lab("L_vtail")
        self.seg(8, 64 << 20, ["s_mov_b32 s44, s50"], 1024, R_V, 64 - VS, VV, xor=True, D=DE, t0=VS)
        self.stamp(3)
        def qrepub(lazy=True):
            ls = self.newlab("QR")
            e("s_cmp_lg_u32 s70, 0"); e(f"s_cbranch_scc1 {ls}")
            if lazy:
                e("s_cmp_lt_u32 s61, 24"); e(f"s_cbranch_scc1 {ls}")
            else:
                e(f"ds_read_b32 v4, v3 offset:{F_MISM-FLG}"); e("s_waitcnt lgkmcnt(0)"); e("v_readfirstlane_b32 s76, v4")
                e("s_cmp_eq_u32 s76, 0"); e(f"s_cbranch_scc1 {ls}")
            e("s_mov_b32 s70, 1")
            e("s_mov_b32 s73, s61")
            self.wait_lds_ge(F_QDONE, 2)
            e("s_mov_b32 s61, s73")
            e(f"v_lshlrev_b32 v24, 3, v0"); e(f"v_add_u32 v24, {QST}, v24"); e("v_lshlrev_b32 v25, 2, v0"); e(f"v_add_u32 v25, {QST}, v25")
            e(f"ds_read_b32 v29, v3 offset:{TAGW-FLG}")
            e("ds_read_b64 v[26:27], v24"); e("ds_read_b32 v36, v25 offset:512")
            e("ds_read_b64 v[38:39], v24 offset:768"); e("ds_read_b32 v37, v25 offset:1280")
            e("s_waitcnt lgkmcnt(0)")
            e("v_mov_b32 v28, v26"); e("v_mov_b32 v30, v27"); e("v_xor_b32 v31, s74, v29")
            e("v_mov_b32 v32, v38"); e("v_mov_b32 v33, v29"); e("v_mov_b32 v34, v39"); e("v_xor_b32 v35, s74, v29")
            e("global_store_dwordx4 v36, v[28:31], s[26:27] sc1")
            e("global_store_dwordx4 v37, v[32:35], s[26:27] sc1")
            self.lab(ls)
        if not stop: self.wait_lds_ge(F_P, 4, onfail=qrepub)
        self.seg(12, 4 << 20, oseg, 8192, R_O, 16, ["v22"]*4, D=DE)
        if dlate:
            e("s_cmp_eq_u32 s33, 2"); e("s_cbranch_scc0 L_noD")
            if not stop: self.wait_lds_ge(F_QDONE, 2)
            self.seg(20, 1792*1024, dseg, 4096, R_D, 16, ["v18", "v19", "v18", "v19"], D=DE)
            self.lab("L_noD")
        self.stamp(4)
        ks = [k for k in range(DE-1, -1, -1) if (k % 8 == 0)]
        for k in ks:
            e(f"s_waitcnt vmcnt({k})")
            e(f"s_sub_u32 s48, s55, {k}")
            e("v_mov_b32 v20, s48")
            e(f"ds_write_b32 v3, v20 offset:{F_LAND-FLG}")
        self.stamp(5)
        if not stop: qrepub(lazy=False)
        self.stamp_flush()
        e("s_endpgm")

    def cwave(self):
        self.role = "C"
        e = self.e
        self.lab("L_cwave")
        e("s_lshl_b32 s48, s32, 11")
        e("v_lshlrev_b32 v6, 4, v0"); e("v_add_u32 v6, s48, v6")
        e("v_and_b32 v1, 15, v0")
        e("v_lshrrev_b32 v2, 4, v0")
        e("s_waitcnt lgkmcnt(0)")
        xnt = " nt" if self.opt.get("xnt") else ""
        e("global_load_dwordx4 v[8:11], v6, s[4:5]" + xnt)
        e("global_load_dwordx4 v[12:15], v6, s[4:5] offset:1024" + xnt)
        e("s_load_dword s34, s[26:27], 0")
        self.stamp(0)
        e("s_barrier")
        e("v_lshrrev_b32 v6, 2, v0"); e("v_lshlrev_b32 v6, 9, v6")
        e("v_and_b32 v7, 1, v0"); e("v_lshl_add_u32 v6, v7, 8, v6")
        e("v_bfe_u32 v7, v0, 1, 1"); e("v_lshl_add_u32 v6, v7, 3, v6")
        e("s_lshl_b32 s48, s32, 5"); e(f"s_add_u32 s48, s48, {XN}"); e("v_add_u32 v6, s48, v6")
        e("v_lshrrev_b32 v48, 2, v0")
        e("v_and_b32 v49, 3, v0"); e("v_lshlrev_b32 v49, 3, v49")
        e("v_bfe_u32 v50, v0, 3, 2"); e("v_lshl_or_b32 v50, v50, 5, v49"); e("v_lshl_add_u32 v50, v48, 7, v50")
        e("v_and_b32 v51, 7, v48"); e("v_lshl_or_b32 v51, v51, 5, v49"); e("v_lshl_add_u32 v51, v48, 8, v51")
        e("v_and_b32 v112, 7, v0")
        e("v_bfe_u32 v113, v0, 3, 1")
        e("v_and_b32 v114, 3, v0")
        e("v_lshlrev_b32 v52, 4, v112"); e("v_lshl_add_u32 v52, v2, 7, v52")
        e("s_lshr_b32 s49, s29, 3")
        e("s_lshl_b32 s48, s49, 11"); e(f"s_add_u32 s48, s48, {XN}"); e("v_add_u32 v52, s48, v52")
        e("s_lshl_b32 s48, s32, 6"); e("s_and_b32 s48, s48, 0x60"); e("v_xor_b32 v53, s48, v50"); e(f"v_add_u32 v53, {R_Q}, v53"); e("v_xor_b32 v115, 32, v53")
        e("s_lshl_b32 s48, s28, 5"); e("s_add_u32 s48, s48, s49"); e("s_lshl_b32 s48, s48, 11")
        e("s_and_b32 s50, s29, 7"); e("s_lshl_b32 s50, s50, 8"); e("s_add_u32 s48, s48, s50")
        e("s_lshl_b32 s50, s32, 7"); e("s_add_u32 s48, s48, s50"); e(f"s_add_u32 s48, s48, {QBUF}")
        e("v_lshlrev_b32 v54, 13, v112"); e("v_lshl_add_u32 v54, v113, 6, v54"); e("v_lshl_add_u32 v54, v2, 4, v54"); e("v_add_u32 v54, s48, v54")
        e("s_lshl_b32 s48, s28, 3"); e("s_add_u32 s48, s48, s30"); e("s_lshl_b32 s48, s48, 13")
        e("s_add_u32 s48, s48, s50"); e(f"s_add_u32 s48, s48, {QBUF}")
        e("v_lshrrev_b32 v55, 2, v1"); e("v_lshlrev_b32 v55, 11, v55")
        e("v_lshl_add_u32 v55, v114, 9, v55"); e("v_lshl_add_u32 v55, v2, 5, v55"); e("v_add_u32 v55, s48, v55")
        e("s_waitcnt vmcnt(0)")
        self.stamp(1)
        self.stop(1)
        for rb, src in ((16, 8), (24, 12)):
            for i in range(4):
                e(f"v_lshlrev_b32 v{rb+2*i}, 16, v{src+i}")
                e(f"v_and_b32 v{rb+2*i+1}, 0xffff0000, v{src+i}")
        for rb, d in ((16, 32), (24, 33)):
            e(f"v_add_f32 v{d}, v{rb}, v{rb+1}")
            e(f"v_add_f32 v34, v{rb+2}, v{rb+3}")
            e(f"v_add_f32 v35, v{rb+4}, v{rb+5}")
            e(f"v_add_f32 v36, v{rb+6}, v{rb+7}")
            e(f"v_add_f32 v{d}, v{d}, v34"); e("v_add_f32 v35, v35, v36"); e(f"v_add_f32 v{d}, v{d}, v35")
        self.allreduce(["v32", "v33"], "v_add_f32", ["v34", "v35"])
        e(f"v_mul_f32 v32, {f32(1/512)}, v32"); e(f"v_mul_f32 v33, {f32(1/512)}, v33")
        for rb, m, d in ((16, 32, 36), (24, 33, 37)):
            e(f"v_sub_f32 v38, v{rb}, v{m}"); e(f"v_mul_f32 v{d}, v38, v38")
            for i in range(1, 8):
                e(f"v_sub_f32 v38, v{rb+i}, v{m}"); e(f"v_fmac_f32 v{d}, v38, v38")
        self.allreduce(["v36", "v37"], "v_add_f32", ["v34", "v35"])
        e(f"v_mul_f32 v36, {f32(1/512)}, v36"); e(f"v_mul_f32 v37, {f32(1/512)}, v37")
        for m, v in ((32, 36), (33, 37)):
            e(f"v_cvt_pk_bf16_f32 v38, v{m}, v{v}")
            e(f"v_lshlrev_b32 v{m}, 16, v38")
            e(f"v_and_b32 v{v}, 0xffff0000, v38")
            e(f"v_add_f32 v{v}, {f32(1e-5)}, v{v}")
            self.bf16r(f"v{v}", f"v{v}")
            e(f"v_sqrt_f32 v{v}, v{v}")
            self.nop(1)
            self.bf16r(f"v{v}", f"v{v}")
            e(f"v_rcp_f32 v{v}, v{v}")
            self.nop(1)
        for rb, m, v, out in ((16, 32, 36, 40), (24, 33, 37, 44)):
            for i in range(4):
                e(f"v_sub_f32 v38, v{rb+2*i}, v{m}"); e(f"v_sub_f32 v39, v{rb+2*i+1}, v{m}")
                e("v_cvt_pk_bf16_f32 v38, v38, v39")
                e("v_and_b32 v39, 0xffff0000, v38"); e("v_lshlrev_b32 v38, 16, v38")
                e(f"v_mul_f32 v38, v38, v{v}"); e(f"v_mul_f32 v39, v39, v{v}")
                e(f"v_cvt_pk_bf16_f32 v{out+i}, v38, v39")
        e("ds_write_b64 v6, v[40:41]"); e("ds_write_b64 v6, v[42:43] offset:128")
        e("ds_write_b64 v6, v[44:45] offset:16"); e("ds_write_b64 v6, v[46:47] offset:144")
        e("s_waitcnt lgkmcnt(0)")
        e("s_add_u32 s34, s34, 1")
        e("s_xor_b32 s75, s34, s74")
        e("v_mov_b32 v125, s34"); e("v_mov_b32 v127, s75")
        e(f"ds_write_b32 v3, v125 offset:{TAGW-FLG}")
        e("s_waitcnt lgkmcnt(0)")
        self.lds_inc(F_XN)
        self.stamp(2)
        e("s_cmp_lt_u32 s32, 2"); e("s_cbranch_scc0 L_noq")
        self.wait_lds_ge(F_XN, 4, sleep=0)
        for j in range(4):
            e(f"ds_read_b128 v[{64+4*j}:{67+4*j}], v52 offset:{j*512}")
        self.wait_lds_ge(F_LAND, 16, sleep=0)
        self.stamp(3)
        for j in range(4):
            e(f"ds_read_b64_tr_b16 v[{80+4*j}:{81+4*j}], v53 offset:{(32*j)*128}")
            e(f"ds_read_b64_tr_b16 v[{82+4*j}:{83+4*j}], v53 offset:{(32*j+16)*128}")
        for j in range(3):
            e(f"ds_read_b64_tr_b16 v[{16+4*j}:{17+4*j}], v115 offset:{(32*j)*128}")
            e(f"ds_read_b64_tr_b16 v[{18+4*j}:{19+4*j}], v115 offset:{(32*j+16)*128}")
        for j in range(4):
            e(f"s_waitcnt lgkmcnt({12-2*j})")
            self.mfma(96, 80+4*j, 64+4*j, "0" if j == 0 else None)
            if j == 0:
                e(f"ds_read_b64_tr_b16 v[28:29], v115 offset:{(96)*128}")
                e(f"ds_read_b64_tr_b16 v[30:31], v115 offset:{(112)*128}")
        for j in range(4):
            e(f"s_waitcnt lgkmcnt({6-2*j})")
            self.mfma(104, 16+4*j, 64+4*j, "0" if j == 0 else None)
        e("s_mul_i32 s48, s32, 768"); e(f"s_add_u32 s48, s48, {QST}")
        e("v_lshlrev_b32 v16, 3, v0"); e("v_add_u32 v16, s48, v16"); e("v_lshlrev_b32 v17, 2, v0"); e("v_add_u32 v17, s48, v17")
        self.nop(3)
        e("v_cvt_pk_bf16_f32 v96, v96, v97"); e("v_cvt_pk_bf16_f32 v98, v98, v99")
        e("v_cvt_pk_bf16_f32 v104, v104, v105"); e("v_cvt_pk_bf16_f32 v106, v106, v107")
        e("v_cndmask_b32 v124, v104, v96, s[58:59]"); e("v_cndmask_b32 v126, v106, v98, s[58:59]")
        e("global_store_dwordx4 v54, v[124:127], s[26:27]")
        e("v_mov_b32 v18, v124"); e("v_mov_b32 v19, v126")
        e("ds_write_b64 v16, v[18:19]"); e("ds_write_b32 v17, v54 offset:512")
        e("s_waitcnt lgkmcnt(0)")
        self.lds_inc(F_QDONE)
        self.lab("L_noq")
        self.stamp(4)
        self.stop(2)
        e("v_xor_b32 v58, v2, v1"); e("v_lshlrev_b32 v58, 4, v58"); e("v_lshl_add_u32 v58, v1, 8, v58")
        e("s_lshl_b32 s48, s32, 14"); e(f"s_add_u32 s48, s48, {R_K}"); e("v_add_u32 v58, s48, v58")
        e("v_xor_b32 v59, 64, v58"); e("v_xor_b32 v60, 0x80, v58"); e("v_xor_b32 v61, 0xc0, v58")
        e("v_lshlrev_b32 v56, 4, v0"); e(f"v_add_u32 v56, {QF}, v56")
        e("s_lshl_b32 s48, s32, 10"); e("v_add_u32 v57, s48, v56")
        self.wait_lds_ge(F_LAND, self.opt.get('qtrig', 64))
        def qcheck():
            e("v_xor_b32 v72, s34, v65"); e("v_xor_b32 v73, s34, v69")
            e("v_xor_b32 v74, s75, v67"); e("v_xor_b32 v75, s75, v71")
            e("v_or_b32 v74, v74, v75"); e("v_and_b32 v75, 0x0fffffff, v74")
            e("v_or3_b32 v72, v72, v73, v75")
            e("v_cmp_ne_u32 s[64:65], 0, v72")
            e("s_cmp_eq_u64 s[64:65], 0")
        qp = {0: "sc1", 1: "nt", 2: "sc0 sc1", 3: "sc1 nt"}[self.opt.get("qpol", 0)]
        self.poll([f"global_load_dwordx4 v[64:67], v55, s[26:27] {qp}", f"global_load_dwordx4 v[68:71], v55, s[26:27] offset:16 {qp}"],
                  None, None, None, sleep=self.opt.get("qsleep", 8), check=qcheck, ntn=self.opt.get("ntq", 16))
        e("v_cmp_ne_u32 s[64:65], 0, v74")
        e("s_cmp_eq_u64 s[64:65], 0"); e("s_cbranch_scc1 L_samex")
        self.lds_inc(F_MISM)
        self.lab("L_samex")
        e("v_mov_b32 v65, v66"); e("v_mov_b32 v66, v68"); e("v_mov_b32 v67, v70")
        e("ds_write_b128 v57, v[64:67]")
        e("s_waitcnt lgkmcnt(0)")
        self.lds_inc(F_QF)
        self.stamp(5)
        self.stop(3)
        self.wait_lds_ge(F_QF, 4, sleep=0)
        e(f"ds_read_b32 v4, v3 offset:{F_MISM-FLG}"); e("s_waitcnt lgkmcnt(0)"); e("v_readfirstlane_b32 s76, v4")
        for j in range(4):
            e(f"ds_read_b128 v[{64+4*j}:{67+4*j}], v56 offset:{j*1024}")
        e("s_lshr_b32 s48, s39, 4"); e("s_xor_b32 s48, s48, s32"); e("s_lshl_b32 s48, s48, 4"); e("s_add_u32 s48, s48, s35"); e("s_add_u32 s48, s48, 16")
        self.wait_lds_ge(F_LAND, "s48")
        self.stamp(6)
        kaddr = ["v58", "v59", "v60", "v61"]
        def kread(T):
            for j in range(4):
                e(f"ds_read_b128 v[{16+16*(T%2)+4*j}:{19+16*(T%2)+4*j}], {kaddr[j]} offset:{T*4096}")
        kread(0)
        for T in range(4):
            if T < 3: kread(T+1)
            for j in range(4):
                e(f"s_waitcnt lgkmcnt({(7 if T < 3 else 3)-j})")
                self.mfma(96+4*T, 16+16*(T%2)+4*j, 64+4*j, "0" if j == 0 else None)
        self.nop(8)
        S = [f"v{96+i}" for i in range(16)]
        for sh in (4, 8):
            for r in S:
                e(f"v_add_f32_dpp {r}, {r}, {r} row_ror:{sh} row_mask:0xf bank_mask:0xf")
        c1 = 128 ** -0.5 * 1.4426950408889634
        for r in S:
            e(f"v_mul_f32 {r}, {f32(c1)}, {r}")
        e("v_max3_f32 v16, v96, v97, v98")
        for i in range(3, 15, 2):
            e(f"v_max3_f32 v16, v16, v{96+i}, v{97+i}")
        e("v_max_f32 v16, v16, v111")
        self.xg_reduce(["v16"], "v_max_f32", ["v17"])
        e("v_lshlrev_b32 v18, 2, v114"); e(f"v_add_u32 v19, {FLG}, v18"); e("v_mov_b32 v57, v19")
        e("s_lshl_b32 s48, s32, 4"); e("v_add_u32 v18, s48, v19")
        e(f"ds_write_b32 v18, v16 offset:{WMAX-FLG}")
        e("s_waitcnt lgkmcnt(0)")
        self.lds_inc(F_MAX)
        self.wait_lds_ge(F_MAX, 4, sleep=0)
        for w in range(4):
            e(f"ds_read_b32 v{20+w}, v19 offset:{WMAX-FLG+16*w}")
        e("s_waitcnt lgkmcnt(0)")
        e("v_max3_f32 v62, v20, v21, v22"); e("v_max_f32 v62, v62, v23")
        for r in S:
            e(f"v_sub_f32 {r}, {r}, v62")
        for r in S:
            e(f"v_exp_f32 {r}, {r}")
        self.nop(1)
        e("v_add_f32 v16, v96, v97")
        for i in range(2, 16):
            e(f"v_add_f32 v16, v16, v{96+i}")
        self.xg_reduce(["v16"], "v_add_f32", ["v17"])
        e(f"ds_write_b32 v18, v16 offset:{WSUM-FLG}")
        for h in range(2):
            for i in range(4):
                e(f"v_cvt_pk_bf16_f32 v{24+4*h+i}, v{96+8*h+2*i}, v{97+8*h+2*i}")
        e("v_lshl_add_u32 v63, v2, 2, v114"); e("v_lshlrev_b32 v63, 4, v63"); e(f"v_add_u32 v63, {PB}, v63")
        e("s_lshl_b32 s48, s32, 9"); e("v_add_u32 v21, s48, v63")
        e("ds_write_b128 v21, v[24:27]"); e("ds_write_b128 v21, v[28:31] offset:256")
        e("s_waitcnt lgkmcnt(0)")
        self.lds_inc(F_P)
        self.stamp(7)
        e("s_lshr_b32 s52, s39, 3")
        e("s_lshl_b32 s48, s32, 6"); e("s_lshl_b32 s50, s52, 13"); e("s_or_b32 s48, s48, s50"); e(f"s_or_b32 s48, s48, {R_V}")
        e("v_xor_b32 v58, s48, v51")
        e("s_lshl_b32 s48, s52, 8"); e("v_xor_b32 v63, s48, v63")
        e("s_lshl_b32 s48, s28, 7"); e("s_lshl_b32 s50, s31, 3"); e("s_add_u32 s48, s48, s50"); e("s_add_u32 s48, s48, s30"); e("s_lshl_b32 s48, s48, 9")
        e("s_lshl_b32 s50, s32, 7"); e("s_add_u32 s48, s48, s50"); e(f"s_add_u32 s48, s48, {OBUF}")
        e("v_lshlrev_b32 v60, 14, v114"); e("v_bfe_u32 v61, v0, 2, 1"); e("v_lshl_add_u32 v60, v61, 6, v60"); e("v_lshl_add_u32 v60, v2, 4, v60"); e("v_add_u32 v60, s48, v60")
        e("s_lshl_b32 s48, s28, 2"); e("s_add_u32 s48, s48, s49"); e("s_lshl_b32 s48, s48, 14")
        e("s_add_u32 s48, s48, s50"); e(f"s_add_u32 s48, s48, {OBUF}")
        e("v_lshlrev_b32 v61, 9, v1"); e("v_lshl_add_u32 v61, v2, 4, v61"); e("v_add_u32 v61, s48, v61")
        e("v_add_u32 v56, 0x2000, v61")
        e("v_lshl_add_u32 v116, v2, 3, v112"); e("v_lshlrev_b32 v116, 4, v116"); e(f"v_add_u32 v116, {RED}, v116")
        e("s_lshl_b32 s48, s32, 11"); e("v_add_u32 v117, s48, v116")
        e("s_lshl_b32 s48, s32, 9"); e("v_add_u32 v118, s48, v116")
        e("s_and_b32 s48, s29, 7"); e("s_lshl_b32 s48, s48, 2"); e("s_add_u32 s48, s48, s32"); e("s_lshl_b32 s48, s48, 5")
        e("s_lshl_b32 s50, s28, 2"); e("s_add_u32 s48, s48, s50"); e("s_add_u32 s48, s48, s49"); e("s_lshl_b32 s48, s48, 7"); e(f"s_add_u32 s48, s48, {SBUF}")
        e("v_lshlrev_b32 v55, 17, v112"); e("v_lshl_add_u32 v55, v2, 5, v55"); e("v_lshl_add_u32 v55, v113, 4, v55"); e("v_add_u32 v55, s48, v55")
        e("s_lshl_b32 s48, s32, 12"); e(f"s_add_u32 s48, s48, {R_O}"); e("v_add_u32 v53, s48, v50")
        e("s_mov_b32 s56, 0x0f0f0f0f"); e("s_mov_b32 s57, 0x0f0f0f0f")
        self.wait_lds_ge(F_P, 4, sleep=0)
        for p in range(8):
            if p: e(f"v_xor_b32 v52, {p<<8}, v63")
            e(f"ds_read_b128 v[{64+4*p}:{67+4*p}], {'v52' if p else 'v63'}")
        spf = self.opt.get("statp", 5)
        for p in range(8):
            rb = 16 + 8*(p % 2)
            if p:
                e(f"v_xor_b32 v52, {p<<13}, v58")
            a0 = "v52" if p else "v58"
            e(f"v_xor_b32 v59, 32, {a0}")
            e(f"s_add_u32 s48, s36, {8*(p+1)}")
            self.wait_lds_ge(F_LAND, "s48", sleep=(0 if p >= 6 else 1))
            e(f"ds_read_b64_tr_b16 v[{rb}:{rb+1}], {a0}")
            e(f"ds_read_b64_tr_b16 v[{rb+2}:{rb+3}], {a0} offset:4096")
            e(f"ds_read_b64_tr_b16 v[{rb+4}:{rb+5}], v59")
            e(f"ds_read_b64_tr_b16 v[{rb+6}:{rb+7}], v59 offset:4096")
            e("s_waitcnt lgkmcnt(2)")
            self.mfma(96, rb, 64+4*p, "0" if p == 0 else None)
            e("s_waitcnt lgkmcnt(0)")
            self.mfma(100, rb+4, 64+4*p, "0" if p == 0 else None)
            if p == 6:
                self.wait_lds_ge(F_SCL, 1)
                e(f"ds_read_b32 v46, v57 offset:{SCL-FLG}")
                e("v_mov_b32 v41, s34"); e("v_mov_b32 v43, s34")
        self.stamp(8)
        self.nop(7)
        for i in range(8):
            e(f"v_mul_f32 v{96+i}, v{96+i}, v46")
        e("v_cvt_pk_bf16_f32 v96, v96, v97"); e("v_cvt_pk_bf16_f32 v98, v98, v99")
        e("v_cvt_pk_bf16_f32 v100, v100, v101"); e("v_cvt_pk_bf16_f32 v102, v102, v103")
        e("v_cndmask_b32 v40, v100, v96, s[56:57]"); e("v_cndmask_b32 v42, v102, v98, s[56:57]")
        e("s_mov_b64 exec, s[58:59]")
        e("s_cmp_eq_u32 s76, 0"); e("s_cbranch_scc0 L_osc1")
        e("global_store_dwordx4 v60, v[40:43], s[26:27]")
        e("s_branch L_opub")
        self.lab("L_osc1")
        e("global_store_dwordx4 v60, v[40:43], s[26:27] sc1")
        self.lab("L_opub")
        e("s_mov_b64 exec, -1")
        self.stamp(9)
        oloads = ["global_load_dwordx4 v[24:27], v61, s[26:27] sc1", "global_load_dwordx4 v[28:31], v61, s[26:27] offset:64 sc1",
                  "global_load_dwordx4 v[32:35], v56, s[26:27] sc1", "global_load_dwordx4 v[36:39], v56, s[26:27] offset:64 sc1"]
        early = self.opt.get("oearly", 1)
        if early:
            if self.opt.get("odelay", 0):
                e(f"s_sleep {self.opt['odelay']}")
            for l in oloads: e(l.replace(" sc1", " nt"))
        self.wait_lds_ge(F_LAND, "s37", sleep=0 if early else 1)
        for ct in range(4):
            if ct: e(f"v_xor_b32 v52, {ct<<5}, v53")
            a = "v53" if ct == 0 else "v52"
            e(f"ds_read_b64_tr_b16 v[{64+4*ct}:{65+4*ct}], {a}")
            e(f"ds_read_b64_tr_b16 v[{66+4*ct}:{67+4*ct}], {a} offset:2048")
        self.stamp(10)
        self.poll(oloads, ["v25", "v27", "v29", "v31", "v33", "v35", "v37", "v39"], "v44", "v45", sleep=self.opt.get("osleep", 2), ntn=self.opt.get("nto", 32), skip_first=bool(early))
        self.stamp(11)
        e("v_mov_b32 v25, v26"); e("v_mov_b32 v26, v28"); e("v_mov_b32 v27, v30")
        e("v_mov_b32 v33, v34"); e("v_mov_b32 v34, v36"); e("v_mov_b32 v35, v38")
        e("s_waitcnt lgkmcnt(0)")
        self.nop(1)
        for ct in range(4):
            self.mfma(96+4*ct, 64+4*ct, 24, "0")
        for ct in range(4):
            self.mfma(96+4*ct, 64+4*ct, 32)
        e("v_mov_b32 v17, s34"); e("v_mov_b32 v19, s34")
        self.nop(4)
        for ct in range(4):
            if ct == 3: self.nop(3)
            for r in S[4*ct:4*ct+4]:
                e(f"v_add_f32_dpp {r}, {r}, {r} row_ror:8 row_mask:0xf bank_mask:0xf")
            e("s_mov_b64 exec, s[58:59]")
            e(f"ds_write_b128 v117, v[{96+4*ct}:{99+4*ct}] offset:{ct*512}")
            e("s_mov_b64 exec, -1")
        e("s_waitcnt lgkmcnt(0)")
        self.lds_inc(F_RED)
        self.wait_lds_ge(F_RED, 4, sleep=0)
        for j in range(4):
            e(f"ds_read_b128 v[{64+4*j}:{67+4*j}], v118 offset:{j*2048}")
        e("s_waitcnt lgkmcnt(2)")
        for i in range(4):
            e(f"v_add_f32 v{64+i}, v{64+i}, v{68+i}")
        e("s_waitcnt lgkmcnt(0)")
        for i in range(4):
            e(f"v_add_f32 v{72+i}, v{72+i}, v{76+i}")
        for i in range(4):
            e(f"v_add_f32 v{64+i}, v{64+i}, v{72+i}")
        e("v_cndmask_b32 v16, v66, v64, s[58:59]"); e("v_cndmask_b32 v18, v67, v65, s[58:59]")
        e("global_store_dwordx4 v55, v[16:19], s[26:27] sc1")
        self.stamp(12)

        self.stamp_flush()
        e("s_endpgm")

    def fwave(self):
        self.role = "F"
        e = self.e
        self.lab("L_fwave")
        if self.opt.get("dbg"):
            e("s_memrealtime s[80:81]"); e("s_memtime s[82:83]")
        if self.opt.get("lite"): self.stamp(0)
        e("v_and_b32 v1, 15, v0"); e("v_lshrrev_b32 v2, 4, v0")
        e("v_lshlrev_b32 v10, 4, v0")
        if not self.opt.get("lite"): self.stamp(0)
        e("s_barrier")
        if self.opt.get("stop"):
            e("s_waitcnt lgkmcnt(0)")
            self.stamp_flush(); e("s_endpgm")
        e("v_lshrrev_b32 v48, 2, v0")
        e("v_and_b32 v49, 3, v0"); e("v_lshlrev_b32 v49, 3, v49")
        e("v_bfe_u32 v50, v0, 3, 2"); e("v_lshl_or_b32 v50, v50, 5, v49"); e("v_lshl_add_u32 v50, v48, 7, v50")
        e("v_and_b32 v51, 7, v48"); e("v_lshl_or_b32 v51, v51, 5, v49"); e("v_lshl_add_u32 v51, v48, 8, v51")
        e("v_and_b32 v112, 7, v0"); e("v_bfe_u32 v113, v0, 3, 1")
        e("s_lshl_b32 s52, s28, 2"); e("s_add_u32 s52, s52, s31")
        e("s_lshl_b32 s53, s30, 10"); e("s_lshl_b32 s48, s52, 5"); e("s_add_u32 s53, s53, s48")
        e("v_lshlrev_b32 v6, 2, v112"); e("v_add_u32 v6, s53, v6")
        e("s_waitcnt lgkmcnt(0)")
        e("global_load_dword v7, v6, s[4:5]")
        e("s_lshl_b32 s48, s30, 5"); e("s_add_u32 s48, s48, s52"); e("s_lshl_b32 s48, s48, 12")
        e("v_add_u32 v10, s48, v10")
        e(f"v_add_u32 v11, {FBUF}, v10"); e(f"v_add_u32 v10, {SBUF}, v10")
        self.wait_lds_ge(F_XN, 4)
        e(f"ds_read_b32 v4, v3 offset:{TAGW-FLG}")
        e("s_waitcnt lgkmcnt(0)")
        e("v_readfirstlane_b32 s34, v4")
        e("s_cmp_eq_u32 s33, 3"); e("s_cbranch_scc1 L_final")
        e("s_cmp_eq_u32 s33, 2"); e("s_cbranch_scc1 L_dunit")
        e("s_lshl_b32 s51, s68, 1"); e("s_and_b32 s48, s69, 1"); e("s_add_u32 s51, s51, s48")
        e("v_lshlrev_b32 v52, 4, v112"); e("v_lshl_add_u32 v52, v2, 7, v52")
        e("s_and_b32 s48, s51, 1"); e("s_lshl_b32 s48, s48, 12"); e(f"s_add_u32 s48, s48, {XN}"); e("v_add_u32 v52, s48, v52")
        e(f"v_add_u32 v53, {R_GU}, v50")
        e("s_mul_i32 s48, s33, 56"); e("s_add_u32 s48, s48, s51"); e("s_lshl_b32 s48, s48, 11"); e(f"s_add_u32 s48, s48, {GUBUF}")
        e("v_lshlrev_b32 v54, 8, v112"); e("v_lshl_add_u32 v54, v113, 6, v54"); e("v_lshl_add_u32 v54, v2, 4, v54"); e("v_add_u32 v54, s48, v54")
        for j in range(8):
            e(f"ds_read_b128 v[{64+4*j}:{67+4*j}], v52 offset:{j*512}")
        self.wait_lds_ge(F_LAND, "s38")
        self.stamp(1)
        for ct in range(4):
            if ct: e(f"v_xor_b32 v55, {ct<<5}, v53")
            a = "v53" if ct == 0 else "v55"
            for jh in range(2):
                for j in range(4*jh, 4*jh+4):
                    rb = 16 + 4*j
                    e(f"ds_read_b64_tr_b16 v[{rb}:{rb+1}], {a} offset:{32*j*128}")
                    e(f"ds_read_b64_tr_b16 v[{rb+2}:{rb+3}], {a} offset:{(32*j+16)*128}")
                for j in range(4*jh, 4*jh+4):
                    e(f"s_waitcnt lgkmcnt({6-2*(j%4)})")
                    self.mfma(96+4*ct, 16+4*j, 64+4*j, "0" if j == 0 else None)
        self.lds_inc(F_GUDONE)
        self.nop(6)
        for pr in range(2):
            a = 96 + 8*pr
            rb = 16 + 4*pr
            e(f"v_cvt_pk_bf16_f32 v{a}, v{a}, v{a+1}"); e(f"v_cvt_pk_bf16_f32 v{a+2}, v{a+2}, v{a+3}")
            e(f"v_cvt_pk_bf16_f32 v{a+4}, v{a+4}, v{a+5}"); e(f"v_cvt_pk_bf16_f32 v{a+6}, v{a+6}, v{a+7}")
            e(f"v_cndmask_b32 v{rb}, v{a+4}, v{a}, s[58:59]"); e(f"v_mov_b32 v{rb+1}, s34")
            e(f"v_cndmask_b32 v{rb+2}, v{a+6}, v{a+2}, s[58:59]"); e(f"v_mov_b32 v{rb+3}, s34")
            e(f"global_store_dwordx4 v54, v[{rb}:{rb+3}], s[26:27] offset:{pr*128}")
        self.stamp(2)
        self.wait_lds_ge(F_QF, 4, sleep=4)
        e(f"ds_read_b32 v4, v3 offset:{F_MISM-FLG}"); e("s_waitcnt lgkmcnt(0)"); e("v_readfirstlane_b32 s76, v4")
        e("s_cmp_eq_u32 s76, 0"); e("s_cbranch_scc1 L_final")
        for pr in range(2):
            e(f"global_store_dwordx4 v54, v[{16+4*pr}:{19+4*pr}], s[26:27] offset:{pr*128} sc1")
        e("s_branch L_final")
        self.lab("L_dunit")
        e("s_mov_b32 s50, s68")
        e("s_lshl_b32 s48, s50, 12"); e(f"s_add_u32 s48, s48, {GUBUF}")
        e("v_lshlrev_b32 v52, 8, v112"); e("v_lshl_add_u32 v52, v113, 7, v52")
        e("v_lshl_add_u32 v52, v2, 4, v52"); e("v_add_u32 v52, s48, v52")
        e(f"v_add_u32 v53, {56*2048}, v52")
        loads = []
        tags = []
        for m, a in ((0, "v52"), (1, "v53")):
            for kh in range(2):
                for un in range(2):
                    rb = 16 + 16*m + 8*kh + 4*un
                    loads.append(f"global_load_dwordx4 v[{rb}:{rb+3}], {a}, s[26:27] offset:{kh*2048 + un*64} sc1")
                    tags += [f"v{rb+1}", f"v{rb+3}"]
        e(f"s_add_u32 s48, s36, {self.opt.get('dtrig', 0)}")
        self.wait_lds_ge(F_LAND, "s48")
        self.poll(loads, tags, "v54", "v55", sleep=self.opt.get("dsleep", 8), ntn=self.opt.get("ntd", 16))
        self.stamp(1)
        for un in range(2):
            for dd in range(2):
                g0 = 16 + 4*un + 2*dd; g1 = g0 + 8; u0 = g0 + 16; u1 = g0 + 24
                for hi in range(2):
                    ex = (lambda d, s: f"v_and_b32 {d}, 0xffff0000, {s}") if hi else (lambda d, s: f"v_lshlrev_b32 {d}, 16, {s}")
                    e(ex("v56", f"v{g0}")); e(ex("v57", f"v{g1}")); e("v_add_f32 v56, v56, v57")
                    e(ex("v58", f"v{u0}")); e(ex("v57", f"v{u1}")); e("v_add_f32 v58, v58, v57")
                    e("v_cvt_pk_bf16_f32 v57, v56, v58")
                    e("v_lshlrev_b32 v56, 16, v57"); e("v_and_b32 v58, 0xffff0000, v57")
                    self.silu("v56", "v56", "v57")
                    self.bf16r("v56", "v56")
                    e(f"v_mul_f32 v{60+hi}, v56, v58")
                e(f"v_cvt_pk_bf16_f32 v{64+2*un+dd}, v60, v61")
        e(f"v_add_u32 v53, {R_D}, v51")
        e("s_lshl_b32 s48, s69, 8"); e("s_add_u32 s48, s48, s50"); e("s_lshl_b32 s48, s48, 7"); e(f"s_add_u32 s48, s48, {FBUF}")
        e("v_lshlrev_b32 v54, 17, v112"); e("v_lshl_add_u32 v54, v2, 5, v54"); e("v_lshl_add_u32 v54, v113, 4, v54"); e("v_add_u32 v54, s48, v54")
        self.wait_lds_ge(F_LAND, "s38")
        for half in range(2):
            for c2 in range(2):
                for c4 in range(2*c2, 2*c2+2):
                    ct = 4*half + c4
                    e(f"v_xor_b32 v55, {ct<<5}, v53")
                    rb = 16 + 8*c4
                    for j in range(2):
                        e(f"ds_read_b64_tr_b16 v[{rb+4*j}:{rb+4*j+1}], v55 offset:{32*j*256}")
                        e(f"ds_read_b64_tr_b16 v[{rb+4*j+2}:{rb+4*j+3}], v55 offset:{(32*j+16)*256}")
                for c4 in range(2*c2, 2*c2+2):
                    rb = 16 + 8*c4
                    e(f"s_waitcnt lgkmcnt({6-4*(c4%2)})")
                    self.mfma(72+8*c4, rb, 64, "0")
                    e(f"s_waitcnt lgkmcnt({4-4*(c4%2)})")
                    self.mfma(76+8*c4, rb+4, 64, "0")
            self.nop(8)
            for c4 in range(4):
                ct = 4*half + c4
                a = 72 + 8*c4
                rb = (104 + 2*c4) if half == 0 else (114 + 2*c4)
                rb = FPARK[ct]
                e(f"v_add_f32_dpp v56, v{a+4}, v{a} row_ror:8 row_mask:0xf bank_mask:0xf")
                e(f"v_add_f32_dpp v57, v{a+5}, v{a+1} row_ror:8 row_mask:0xf bank_mask:0xf")
                e(f"v_add_f32_dpp v58, v{a+2}, v{a+6} row_ror:8 row_mask:0xf bank_mask:0xf")
                e(f"v_add_f32_dpp v59, v{a+3}, v{a+7} row_ror:8 row_mask:0xf bank_mask:0xf")
                e(f"v_cndmask_b32 v{rb}, v58, v56, s[58:59]")
                e(f"v_cndmask_b32 v{rb+1}, v59, v57, s[58:59]")
            self.nop(2)
        if self.opt.get("ftrig", 0):
            e(f"s_add_u32 s48, s36, {self.opt['ftrig']}")
            self.wait_lds_ge(F_LAND, "s48", sleep=4)
        for ct in range(8):
            rb = 16 + 4*ct
            e(f"v_mov_b32 v{rb}, v{FPARK[ct]}"); e(f"v_mov_b32 v{rb+1}, s34"); e(f"v_mov_b32 v{rb+2}, v{FPARK[ct]+1}"); e(f"v_mov_b32 v{rb+3}, s34")
            e(f"v_add_u32 v55, {ct*4096}, v54")
            e(f"global_store_dwordx4 v55, v[{rb}:{rb+3}], s[26:27] sc1")
        self.nop(2)
        self.stamp(2)
        self.lab("L_final")
        self.wait_lds_ge(F_LAND, "s37")
        loads = [f"global_load_dwordx4 v[{16+4*t}:{19+4*t}], v11, s[26:27] offset:{t*1024} sc1" for t in range(3)]
        loads += ["s_mov_b32 exec_hi, 0", "global_load_dwordx4 v[28:31], v11, s[26:27] offset:3072 sc1"]
        pre = ["v_mov_b32 v28, 0", "v_mov_b32 v29, s34", "v_mov_b32 v30, 0", "v_mov_b32 v31, s34"]
        self.poll(loads, [f"v{17+2*i}" for i in range(8)], "v12", "v13", sleep=4, pre=pre, ntn=self.opt.get("ntf", 0))
        self.stamp(3)
        e("v_add_f32 v32, v16, v20"); e("v_add_f32 v33, v18, v22"); e("v_add_f32 v34, v24, v28"); e("v_add_f32 v35, v26, v30")
        e("v_add_f32 v32, v32, v34"); e("v_add_f32 v33, v33, v35")
        self.nop(2)
        e("v_add_f32_dpp v32, v32, v32 row_ror:8 row_mask:0xf bank_mask:0xf"); e("v_add_f32_dpp v33, v33, v33 row_ror:8 row_mask:0xf bank_mask:0xf")
        self.xg_reduce(["v32", "v33"], "v_add_f32", ["v34", "v35"])
        e("v_cvt_pk_bf16_f32 v34, v32, v33"); e("v_lshlrev_b32 v32, 16, v34"); e("v_and_b32 v33, 0xffff0000, v34")
        self.silu("v32", "v32", "v34"); self.silu("v33", "v33", "v34")
        e("v_cvt_pk_bf16_f32 v34, v32, v33"); e("v_lshlrev_b32 v32, 16, v34"); e("v_and_b32 v33, 0xffff0000, v34")
        e("v_lshlrev_b32 v8, 16, v7"); e("v_and_b32 v9, 0xffff0000, v7")
        loads = [f"global_load_dwordx4 v[{16+4*t}:{19+4*t}], v10, s[26:27] offset:{t*1024} sc1" for t in range(4)]
        self.wait_lds_ge(F_RED, 4)
        if self.opt.get("sdelay", 0):
            e(f"s_sleep {self.opt['sdelay']}")
        self.poll(loads, [f"v{17+2*i}" for i in range(8)], "v12", "v13", sleep=self.opt.get("ssleep", 2), ntn=self.opt.get("nts", 0))
        self.stamp(4)
        e("v_add_f32 v36, v16, v20"); e("v_add_f32 v37, v18, v22"); e("v_add_f32 v34, v24, v28"); e("v_add_f32 v35, v26, v30")
        e("v_add_f32 v36, v36, v34"); e("v_add_f32 v37, v37, v35")
        self.nop(2)
        e("v_add_f32_dpp v36, v36, v36 row_ror:8 row_mask:0xf bank_mask:0xf"); e("v_add_f32_dpp v37, v37, v37 row_ror:8 row_mask:0xf bank_mask:0xf")
        self.xg_reduce(["v36", "v37"], "v_add_f32", ["v34", "v35"])
        e("v_cvt_pk_bf16_f32 v34, v36, v37"); e("v_lshlrev_b32 v36, 16, v34"); e("v_and_b32 v37, 0xffff0000, v34")
        e("v_mul_f32 v36, v36, v32"); e("v_mul_f32 v37, v37, v33")
        e("v_cvt_pk_bf16_f32 v34, v36, v37"); e("v_lshlrev_b32 v36, 16, v34"); e("v_and_b32 v37, 0xffff0000, v34")
        e("v_add_f32 v36, v36, v8"); e("v_add_f32 v37, v37, v9")
        e("v_cvt_pk_bf16_f32 v34, v36, v37")
        e("s_mov_b64 exec, 0xff")
        e("global_store_dword v6, v34, s[22:23]")
        e("s_cmp_lg_u32 s2, 0"); e("s_cbranch_scc1 L_noep")
        e("s_mov_b64 exec, 1")
        e("v_mov_b32 v35, s34"); e("v_mov_b32 v36, 0")
        e("global_store_dword v36, v35, s[26:27] sc1")
        if self.opt.get("dbg"):
            e("s_memrealtime s[84:85]"); e("s_memtime s[86:87]"); e("s_waitcnt lgkmcnt(0)")
            e("s_sub_u32 s84, s84, s80"); e("s_sub_u32 s86, s86, s82")
            e("v_mov_b32 v40, s84"); e("v_mov_b32 v41, s86")
            e("global_store_dwordx2 v36, v[40:41], s[24:25]")
        self.lab("L_noep")
        e("s_mov_b64 exec, -1")
        self.stamp(5)
        self.stamp_flush()

    def swave(self):
        self.role = "S"
        e = self.e
        self.lab("L_swave")
        if self.opt.get("cpf", 1):
            e(f"s_cmp_ge_u32 s29, {self.opt.get('cpfmin', 28)}"); e("s_cbranch_scc0 L_nocpf")
            e("s_getpc_b64 s[66:67]")
            self.lab("L_pcref")
            e(f"s_sub_u32 s66, s66, L_pcref-{NAME}"); e("s_subb_u32 s67, s67, 0")
            e("v_lshlrev_b32 v11, 4, v0")
            e(f"s_mov_b32 s48, (L_end-{NAME}+3)/1024")
            self.lab("L_cpf")
            e("global_load_dwordx4 v[12:15], v11, s[66:67]")
            e("v_add_u32 v11, 0x400, v11")
            e("s_sub_u32 s48, s48, 1"); e("s_cmp_lg_u32 s48, 0"); e("s_cbranch_scc1 L_cpf")
            self.lab("L_nocpf")
        e("v_and_b32 v1, 15, v0"); e("v_lshrrev_b32 v2, 4, v0")
        e("s_barrier")
        if self.opt.get("stop"):
            e("s_endpgm")
        self.wait_lds_ge(F_XN, 4, sleep=4)
        e(f"ds_read_b32 v4, v3 offset:{TAGW-FLG}")
        e("s_waitcnt lgkmcnt(0)")
        e("v_readfirstlane_b32 s34, v4")
        e("v_and_b32 v114, 3, v0")
        e("v_lshlrev_b32 v56, 2, v114"); e(f"v_add_u32 v56, {FLG}, v56")
        e("s_lshl_b32 s51, s28, 3"); e("s_add_u32 s51, s51, s30"); e("s_lshl_b32 s51, s51, 9"); e(f"s_add_u32 s51, s51, {STBUF}")
        e("v_lshlrev_b32 v57, 4, v114"); e("v_lshl_add_u32 v57, v2, 7, v57"); e("v_add_u32 v57, s51, v57")
        e("s_lshl_b32 s48, s31, 7"); e("s_add_u32 s48, s48, s51")
        e("v_lshlrev_b32 v58, 4, v0"); e("v_add_u32 v58, s48, v58")
        self.wait_lds_ge(F_P, 4, sleep=2)
        for w in range(4):
            e(f"ds_read_b32 v{20+w}, v56 offset:{WMAX-FLG+16*w}")
            e(f"ds_read_b32 v{28+w}, v56 offset:{WSUM-FLG+16*w}")
        e(f"ds_read_b32 v32, v3 offset:{F_MISM-FLG}")
        e("s_waitcnt lgkmcnt(0)")
        e("v_max3_f32 v62, v20, v21, v22"); e("v_max_f32 v62, v62, v23")
        e("v_add_f32 v28, v28, v29"); e("v_add_f32 v30, v30, v31"); e("v_add_f32 v26, v28, v30")
        e("v_mov_b32 v24, v62"); e("v_mov_b32 v25, s34"); e("v_mov_b32 v27, s34")
        e("v_readfirstlane_b32 s76, v32")
        e("s_mov_b64 exec, 0xff")
        e("s_cmp_eq_u32 s76, 0"); e("s_cbranch_scc0 L_ssc1")
        e("global_store_dwordx4 v58, v[24:27], s[26:27]")
        e("s_branch L_spub")
        self.lab("L_ssc1")
        e("global_store_dwordx4 v58, v[24:27], s[26:27] sc1")
        self.lab("L_spub")
        e("s_mov_b64 exec, -1")
        e(f"s_sleep {self.opt.get('stdelay', 8)}")
        self.poll(["global_load_dwordx4 v[40:43], v57, s[26:27] sc1"], ["v41", "v43"], "v44", "v45", sleep=8, ntn=self.opt.get("ntst", 16))
        e("v_mov_b32 v44, v40")
        self.xg_reduce(["v44"], "v_max_f32", ["v45"])
        e("v_sub_f32 v40, v40, v44"); e("v_exp_f32 v40, v40"); e("v_sub_f32 v46, v62, v44"); e("v_exp_f32 v46, v46")
        e("v_mul_f32 v42, v42, v40")
        self.xg_reduce(["v42"], "v_add_f32", ["v45"])
        e("v_rcp_f32 v42, v42")
        self.nop(1)
        e("v_mul_f32 v46, v46, v42")
        e(f"ds_write_b32 v56, v46 offset:{SCL-FLG}")
        e("s_waitcnt lgkmcnt(0)")
        self.lds_inc(F_SCL)
        e("s_endpgm")

    def build(self):
        hdr = open("recurrent_scan__sliding_block_cached__swiglu_ffn__decode.s.ref").read().split("\n")
        out = []
        for line in hdr:
            if line.startswith("; @launch"):
                out.append(f"; @launch grid=(256,1,1) block=(448,1,1) lds={LDS_BYTES}")
            elif line.startswith(";"):
                out.append(line)
            else:
                break
        out += DOC.split("\n")
        out += ['.amdgcn_target "amdgcn-amd-amdhsa--gfx950"', ".text", f".globl {NAME}", ".p2align 8", f".type {NAME},@function", f"{NAME}:"]
        self.prologue()
        if self.opt.get("lfirst", 1):
            self.loader(); self.cwave()
        else:
            self.cwave(); self.loader()
        self.swave()
        self.fwave()
        self.lab("L_end")
        self.e("s_endpgm")
        out += self.L
        out += ['.section .rodata,"a"', ".p2align 6", f".amdhsa_kernel {NAME}",
                "  .amdhsa_next_free_vgpr 128", "  .amdhsa_next_free_sgpr 102", "  .amdhsa_accum_offset 128",
                "  .amdhsa_group_segment_fixed_size 0", "  .amdhsa_kernarg_size 96", "  .amdhsa_user_sgpr_count 2",
                "  .amdhsa_user_sgpr_kernarg_segment_ptr 1", "  .amdhsa_system_sgpr_workgroup_id_x 1", ".end_amdhsa_kernel", ""]
        return "\n".join(out)

if __name__ == "__main__":
    import argparse
    ap = argparse.ArgumentParser()
    ap.add_argument("-o", default="recurrent_scan__sliding_block_cached__swiglu_ffn__decode.s")
    ap.add_argument("--depth", type=int, default=24)
    ap.add_argument("--stamps", action="store_true")
    ap.add_argument("--opt", default="")
    a = ap.parse_args()
    opt = {}
    for kv in a.opt.split(","):
        if kv:
            k, v = kv.split("="); opt[k] = int(v)
    g = G(depth=a.depth, stamps=a.stamps, opt=opt)
    open(a.o, "w").write(g.build())
    print("wrote", a.o, len(g.L), "lines")
```

```python
import sys, struct

NAME = "recurrent_scan__sliding_block_cached__swiglu_ffn__decode_kernel"

WS_EPOCH = 0
QBUF = 0x10000
STBUF = 0x90000
OBUF = 0xA0000
GUBUF = 0x120000
SBUF = 0x200000
FBUF = 0x300000
DBG = 0x800000

R_K = 0
R_V = 65536
R_Q = 131072
MISC = 147456
XN = MISC
QF = MISC + 8192
PB = MISC + 12288
FLG = MISC + 14336
F_LAND, F_XN, F_QDONE, F_QF, F_MAX, F_P, F_GUDONE, F_RED, F_SCL, F_MISM = [FLG + 4*i for i in range(10)]
WMAX = FLG + 64
WSUM = FLG + 128
TAGW = FLG + 192
SCL = FLG + 208
QST = FLG + 256
R_O = R_K
RED = R_K + 16384
R_GU = R_V + 32768
R_D = R_Q
LDS_BYTES = 163840
FPARK = [104, 106, 108, 110, 114, 116, 124, 126]

DOC = '''; ---------------------------------------------------------------------------------------------
; One persistent launch, 256 workgroups (one per CU), 7 waves each:
; wg -> (kvh = wg%8, idx = wg/8, b = idx/4, c = idx%4).  Hand-offs go through d_ws as 16-byte
; {data, tag, data, tag} granules, tag = (word 0 of d_ws at entry) + 1; whole 128-byte lines per store.
; the result does not depend on workgroup placement.  Every spin is bounded.
; ---------------------------------------------------------------------------------------------'''

def f32(x):
    return "0x%08x" % struct.unpack("<I", struct.pack("<f", x))[0]

class G:
    def __init__(self, depth=24, stamps=False, spin_limit=1 << 20, opt=None):
        self.opt = dict(sdelay=22, ssleep=1, cpf=0, dlate=0, osleep=0, dg=27, qtrig=48)
        self.opt.update(opt or {})
        self.LP = " nt" if self.opt.get("lpnt") else ""
        self.LPO = " nt" if self.opt.get("lpnt", 0) >= 2 else ""
        self.L = []
        self.depth = depth
        self.stamps = stamps
        self.uid = 0
        self.spin_limit = spin_limit
    def e(self, s):
        self.L.append("    " + s)
    def lab(self, s):
        self.L.append(s + ":")
    def newlab(self, p="L"):
        self.uid += 1
        return f"{p}_{self.uid}"
    def c(self, s):
        self.L.append("    ; " + s)
    def nop(self, n):
        while n > 0:
            k = min(n, 16)
            self.e(f"s_nop {k-1}")
            n -= k
    def stamp(self, k):
        if not self.stamps:
            return
        if self.opt.get("lite") and (self.role, k) not in (("F", 0), ("F", 5), ("C", 9), ("C", 11), ("C", 12), ("L", 5), ("L", 3), ("L", 2), ("C", 5), ("C", 7)):
            return
        self.e("s_memrealtime s[90:91]")
        self.e("s_waitcnt lgkmcnt(0)")
        self.e("v_mov_b32 v120, s90")
        self.e(f"v_writelane_b32 v121, s90, {k}")
        if not self.opt.get("lite"):
            self.e("s_memtime s[90:91]")
            self.e("s_waitcnt lgkmcnt(0)")
            self.e(f"v_writelane_b32 v121, s90, {32+k}")
    def stop(self, n):
        if self.opt.get("stop") == n:
            self.stamp_flush()
            self.e("s_endpgm")
    def stamp_flush(self):
        if not self.stamps:
            return
        self.e("s_mov_b64 exec, -1")
        self.e("global_store_dword v122, v121, s[26:27]")
        self.e("s_waitcnt vmcnt(0)")

    def wait_lds_ge(self, flag, val, vaddr="v3", vtmp="v4", stmp="s60", sleep=1, onfail=None):
        l0 = self.newlab("WL"); l1 = self.newlab("WD")
        self.e("s_mov_b32 s61, 0")
        self.lab(l0)
        self.e(f"ds_read_b32 {vtmp}, {vaddr} offset:{flag - FLG}")
        self.e("s_waitcnt lgkmcnt(0)")
        self.e(f"v_readfirstlane_b32 {stmp}, {vtmp}")
        self.e("s_add_u32 s61, s61, 1")
        self.e(f"s_cmp_ge_i32 {stmp}, {val}")
        self.e(f"s_cbranch_scc1 {l1}")
        if onfail: onfail()
        if sleep:
            self.e(f"s_sleep {sleep}")
        self.e(f"s_cmp_lt_u32 s61, {self.spin_limit}")
        self.e(f"s_cbranch_scc1 {l0}")
        self.lab(l1)
    def lds_inc(self, flag, vaddr="v3", vone="v5"):
        self.e("s_mov_b64 exec, 1")
        self.e(f"ds_add_u32 {vaddr}, {vone} offset:{flag - FLG}")
        self.e("s_mov_b64 exec, -1")

    def allreduce(self, regs, op, tmp):
        for sh in (8, 4, 2, 1):
            self.nop(2 if len(regs) < 3 else 1)
            for r in regs:
                self.e(f"{op}_dpp {r}, {r}, {r} row_ror:{sh} row_mask:0xf bank_mask:0xf")
        self.xg_reduce(regs, op, tmp)
    def xg_reduce(self, regs, op, tmp):
        for sw in ("v_permlane16_swap_b32", "v_permlane32_swap_b32"):
            for r, t in zip(regs, tmp):
                self.e(f"v_mov_b32 {t}, {r}")
            self.nop(2)
            for r, t in zip(regs, tmp):
                self.e(f"{sw} {r}, {t}")
            self.nop(1)
            for r, t in zip(regs, tmp):
                self.e(f"{op} {r}, {r}, {t}")

    def tagcheck(self, tagregs, acc, t2, stag="s34", t3="v119", sm="s[64:65]"):
        first = True
        i = 0
        while i < len(tagregs):
            if first:
                self.e(f"v_xor_b32 {acc}, {stag}, {tagregs[i]}"); i += 1; first = False
            elif i + 1 < len(tagregs):
                self.e(f"v_xor_b32 {t2}, {stag}, {tagregs[i]}")
                self.e(f"v_xor_b32 {t3}, {stag}, {tagregs[i+1]}")
                self.e(f"v_or3_b32 {acc}, {acc}, {t2}, {t3}")
                i += 2
            else:
                self.e(f"v_xor_b32 {t2}, {stag}, {tagregs[i]}")
                self.e(f"v_or_b32 {acc}, {acc}, {t2}")
                i += 1
        self.e(f"v_cmp_ne_u32 {sm}, 0, {acc}")
        self.e(f"s_cmp_eq_u64 {sm}, 0")

    def repub(self, stores, cond="vland", sflag="s70", niter=3):
        e = self.e
        ls = self.newlab("RP")
        e(f"s_cmp_lg_u32 {sflag}, 0"); e(f"s_cbranch_scc1 {ls}")
        if cond == "vland":
            e(f"ds_read_b32 v4, v3 offset:{F_LAND-FLG}"); e("s_waitcnt lgkmcnt(0)"); e("v_readfirstlane_b32 s60, v4")
            e("s_add_u32 s71, s36, 64"); e("s_cmp_ge_i32 s60, s71"); e(f"s_cbranch_scc0 {ls}")
        elif cond == "iter":
            e(f"s_cmp_ge_u32 s61, {niter}"); e(f"s_cbranch_scc0 {ls}")
        e(f"s_mov_b32 {sflag}, 1")
        for st in stores: e(st)
        self.lab(ls)

    def poll(self, loads, tagregs, acc, t2, sleep=2, pre=None, skip_first=False, onfail=None, check=None, ntn=0):
        l0 = self.newlab("PL"); l1 = self.newlab("PD"); lc = self.newlab("PC")
        self.e("s_mov_b32 s61, 0")
        if pre:
            for p in pre: self.e(p)
        if skip_first:
            self.e(f"s_branch {lc}")
        else:
            self.e("s_mov_b64 s[64:65], -1")
        self.lab(l0)
        self.e("s_mov_b64 exec, s[64:65]")
        if ntn:
            l2 = self.newlab("PS")
            self.e(f"s_cmp_ge_u32 s61, {ntn}"); self.e(f"s_cbranch_scc1 {l2}")
            for s in loads:
                self.e(s.replace(" sc1", " nt"))
            self.e("s_mov_b64 exec, -1")
            self.e(f"s_branch {lc}")
            self.lab(l2)
        for s in loads:
            self.e(s)
        self.e("s_mov_b64 exec, -1")
        self.lab(lc)
        self.e("s_waitcnt vmcnt(0)")
        if check: check()
        else: self.tagcheck(tagregs, acc, t2)
        self.e(f"s_cbranch_scc1 {l1}")
        self.e("s_add_u32 s61, s61, 1")
        if onfail: onfail()
        if sleep:
            self.e(f"s_sleep {sleep}")
        self.e(f"s_cmp_lt_u32 s61, {self.spin_limit >> 3}")
        self.e(f"s_cbranch_scc1 {l0}")
        self.lab(l1)

    def mfma(self, d, a, b, c=None):
        cc = f"v[{d}:{d+3}]" if c is None else c
        self.e(f"v_mfma_f32_16x16x32_bf16 v[{d}:{d+3}], v[{a}:{a+3}], v[{b}:{b+3}], {cc}")

    def bf16r(self, dst, src, tmp=None):
        self.e(f"v_cvt_pk_bf16_f32 {dst}, {src}, {src}")
        self.e(f"v_lshlrev_b32 {dst}, 16, {dst}")

    def silu(self, dst, x, t):
        self.e(f"v_mul_f32 {t}, {f32(-1.4426950408889634)}, {x}")
        self.e(f"v_exp_f32 {t}, {t}")
        self.nop(1)
        self.e(f"v_add_f32 {t}, 1.0, {t}")
        self.e(f"v_rcp_f32 {t}, {t}")
        self.nop(1)
        self.e(f"v_mul_f32 {dst}, {x}, {t}")

    def prologue(self):
        e = self.e
        e("s_cmp_ge_u32 s2, 256")
        e("s_cbranch_scc1 L_end")
        e("s_load_dwordx16 s[4:19], s[0:1], 0")
        e("s_load_dwordx8 s[20:27], s[0:1], 64")
        e("v_lshrrev_b32 v1, 6, v0")
        e("v_and_b32 v0, 63, v0")
        e("s_and_b32 s28, s2, 7")
        e("v_readfirstlane_b32 s32, v1")
        e("s_lshr_b32 s29, s2, 3")
        e("s_lshr_b32 s30, s29, 2")
        e("s_and_b32 s31, s29, 3")
        e("s_bfe_u32 s33, s29, 0x10001")
        e("s_cmp_ge_u32 s29, 16"); e("s_cselect_b32 s33, 2, s33")
        e("s_cmp_eq_u32 s28, 7"); e("s_cselect_b32 s33, 3, s33")
        e("s_bfe_u32 s68, s29, 0x20002"); e("s_lshl_b32 s69, s28, 2"); e("s_add_u32 s68, s68, s69"); e("s_and_b32 s69, s29, 3")
        e("s_mov_b32 s70, 0")
        e("s_getreg_b32 s74, hwreg(HW_REG_XCC_ID)"); e("s_and_b32 s74, s74, 15"); e("s_lshl_b32 s74, s74, 28")
        e("s_cmp_lt_u32 s33, 2")
        e("s_cselect_b32 s35, 48, 16")
        e("s_cselect_b32 s38, 48, 0x60")
        e("s_add_u32 s36, s35, 64")
        e("s_cmp_eq_u32 s33, 2")
        if self.opt.get("dlate", 1):
            e("s_cselect_b32 s38, 0xb0, s38")
            e("s_add_u32 s37, s36, 0x50")
            e("s_cmp_eq_u32 s33, 2")
            e("s_cselect_b32 s55, 0xb0, s37")
        else:
            e("s_cselect_b32 s36, 0x60, s36")
            e("s_add_u32 s37, s36, 0x50")
            e("s_mov_b32 s55, s37")
        if self.opt.get("stag", 1):
            e("s_mul_i32 s39, s2, 0x9e3779b1"); e("s_lshr_b32 s39, s39, 26")
        else:
            e("s_mov_b32 s39, 0")
        e(f"v_mov_b32 v3, {FLG}")
        e("v_mov_b32 v5, 1")
        e("s_mov_b32 s58, 0x00ff00ff"); e("s_mov_b32 s59, 0x00ff00ff")
        if self.stamps:
            e("v_mov_b32 v121, 0")
            e("s_lshl_b32 s92, s2, 3"); e("s_add_u32 s92, s92, s32"); e("s_lshl_b32 s92, s92, 8"); e(f"s_add_u32 s92, s92, {DBG}")
            e("v_lshlrev_b32 v122, 2, v0"); e("v_add_u32 v122, s92, v122")
        if self.opt.get("lfirst", 1):
            e("s_cmp_lt_u32 s32, 4"); e("s_cbranch_scc1 L_cwave")
        else:
            e("s_cmp_eq_u32 s32, 4"); e("s_cbranch_scc1 L_loader")
        e("s_cmp_eq_u32 s32, 5"); e("s_cbranch_scc1 L_fwave")
        e("s_cmp_eq_u32 s32, 6"); e("s_cbranch_scc1 L_swave")

    def setdepth(self, Dold, Dnew):
        if Dnew != Dold:
            self.e(f"s_add_u32 s47, s47, {Dold - Dnew}")
    def seg(self, base, nrec, soff_code, step, lds, count, voffs, first=False, xor=False, D=None, t0=0):
        e = self.e
        D = D or self.depth
        assert count % 4 == 0
        if count == 0:
            return
        e(f"s_mov_b32 s40, s{base}"); e(f"s_and_b32 s41, s{base+1}, 0xffff"); e(f"s_mov_b32 s42, {nrec}"); e("s_mov_b32 s43, 0x20000")
        for s in soff_code: e(s)
        if xor:
            e("s_lshl_b32 s45, s39, 10")
            e(f"s_mov_b32 s49, {t0*1024}")
        else:
            e(f"s_mov_b32 s45, {lds}")
        e(f"s_mov_b32 s46, {count//4}")
        l0 = self.newlab("SEG")
        self.lab(l0)
        for u in range(4):
            if xor:
                e("s_xor_b32 s48, s49, s45")
                e("s_add_u32 s54, s44, s48")
            if not first:
                e(f"s_waitcnt vmcnt({D-1})")
                e("v_mov_b32 v20, s47")
                e(f"ds_write_b32 v3, v20 offset:{F_LAND-FLG}")
            if xor:
                e(f"s_add_u32 m0, s48, {lds}")
                e("s_add_u32 s47, s47, 1")
                e(f"buffer_load_dwordx4 {voffs[u]}, s[40:43], s54 offen nt lds")
                e("s_add_u32 s49, s49, 1024")
            else:
                e("s_mov_b32 m0, s45")
                e("s_add_u32 s47, s47, 1")
                e(f"buffer_load_dwordx4 {voffs[u]}, s[40:43], s44 offen nt lds")
                e("s_add_u32 s45, s45, 1024")
                e(f"s_add_u32 s44, s44, {step}")
        e("s_sub_u32 s46, s46, 1")
        e("s_cmp_lg_u32 s46, 0")
        e(f"s_cbranch_scc1 {l0}")

    def loader(self):
        self.role = "L"
        e = self.e
        D = self.depth
        assert D >= 17
        stop = self.opt.get("stop")
        self.lab("L_loader")
        e("s_setprio 3")
        e("v_mov_b32 v20, 0")
        e("v_lshlrev_b32 v21, 2, v0"); e(f"v_add_u32 v21, {FLG}, v21")
        e("ds_write_b32 v21, v20")
        e("v_lshrrev_b32 v6, 4, v0")
        e("v_lshrrev_b32 v7, 3, v0")
        e("v_and_b32 v8, 1, v0"); e("v_lshlrev_b32 v8, 4, v8")
        e("v_bfe_u32 v9, v0, 1, 2"); e("v_xor_b32 v9, v9, v6"); e("v_lshl_or_b32 v9, v9, 5, v8")
        e("v_lshl_add_u32 v10, v7, 13, v9")
        e(f"s_mov_b32 s47, {-(D-1)}")
        e("s_waitcnt lgkmcnt(0)")
        self.stamp(0)
        self.seg(10, 4 << 20, ["s_lshr_b32 s44, s29, 3", "s_lshl_b32 s44, s44, 20", "s_lshl_b32 s48, s28, 10", "s_add_u32 s44, s44, s48",
                               "s_and_b32 s48, s29, 7", "s_lshl_b32 s48, s48, 7", "s_add_u32 s44, s44, s48"],
                 65536, R_Q, 16, ["v10"]*4, first=True)
        e("s_barrier")
        self.stamp(1)
        e("v_and_b32 v11, 15, v0"); e("v_xor_b32 v11, v11, v6"); e("v_lshlrev_b32 v11, 4, v11"); e("v_lshl_add_u32 v11, v6, 8, v11")
        e("s_and_b32 s48, s39, 3"); e("s_lshl_b32 s48, s48, 6"); e("v_xor_b32 v11, s48, v11")
        e("v_xor_b32 v12, 64, v11"); e("v_xor_b32 v13, 0x80, v11"); e("v_xor_b32 v14, 0xc0, v11")
        e("v_bfe_u32 v15, v0, 1, 3"); e("v_xor_b32 v15, v15, v6"); e("v_lshl_or_b32 v15, v15, 5, v8")
        e("v_lshl_add_u32 v16, v6, 8, v15")
        e("s_and_b32 s48, s39, 1"); e("s_lshl_b32 s48, s48, 7"); e("v_xor_b32 v16, s48, v16")
        e("v_xor_b32 v17, 0x80, v16")
        e("v_lshl_add_u32 v18, v6, 10, v15"); e("v_xor_b32 v19, 0x80, v18")
        e("v_lshl_add_u32 v22, v7, 10, v9")
        e("s_movk_i32 s48, 3584"); e("v_mul_lo_u32 v23, v7, s48"); e("v_add_u32 v23, v23, v9")
        e("s_lshl_b32 s50, s30, 3"); e("s_add_u32 s50, s50, s28"); e("s_lshl_b32 s50, s50, 20")
        e("s_lshl_b32 s48, s31, 16"); e("s_add_u32 s50, s50, s48"); e("s_add_u32 s50, s50, 786432")
        DG = self.opt.get("dg", D); DE = self.opt.get("de", D); VS = self.opt.get("vsplit", 32)
        dlate = self.opt.get("dlate", 1)
        oseg = ["s_lshl_b32 s44, s28, 2", "s_lshr_b32 s48, s29, 3", "s_add_u32 s44, s44, s48", "s_lshl_b32 s44, s44, 17",
                "s_and_b32 s48, s29, 7", "s_lshl_b32 s48, s48, 7", "s_add_u32 s44, s44, s48"]
        dseg = ["s_lshl_b32 s44, s68, 16", "s_lshl_b32 s48, s69, 8", "s_add_u32 s44, s44, s48"]
        KV = ["v11", "v12", "v13", "v14"]; VV = ["v16", "v17", "v16", "v17"]
        e("s_cmp_lt_u32 s33, 2"); e("s_cbranch_scc0 L_noGU")
        e("s_cmp_eq_u32 s33, 0")
        e("s_cselect_b32 s52, s16, s18"); e("s_cselect_b32 s53, s17, s19")
        self.setdepth(D, DG)
        self.seg(52, 512*3584, ["s_and_b32 s44, s69, 1", f"s_mul_i32 s44, s44, {256*3584}", "s_lshl_b32 s48, s68, 7", "s_add_u32 s44, s44, s48"],
                 8*3584, R_GU, 32, ["v23"]*4, D=DG)
        self.seg(6, 64 << 20, ["s_mov_b32 s44, s50"], 1024, R_K, 64, KV, xor=True, D=DG)
        self.stamp(2)
        if not stop: self.wait_lds_ge(F_GUDONE, 1)
        self.seg(8, 64 << 20, ["s_mov_b32 s44, s50"], 1024, R_V, VS, VV, xor=True, D=DG)
        self.setdepth(DG, DE)
        e("s_branch L_vtail")
        self.lab("L_noGU")
        self.seg(6, 64 << 20, ["s_mov_b32 s44, s50"], 1024, R_K, 64, KV, xor=True)
        self.stamp(2)
        if not dlate:
            e("s_cmp_eq_u32 s33, 2"); e("s_cbranch_scc0 L_noD")
            if not stop: self.wait_lds_ge(F_QDONE, 2)
            self.seg(20, 1792*1024, dseg, 4096, R_D, 16, ["v18", "v19", "v18", "v19"])
            self.lab("L_noD")
        self.seg(8, 64 << 20, ["s_mov_b32 s44, s50"], 1024, R_V, VS, VV, xor=True)
        self.setdepth(D, DE)
        self.lab("L_vtail")
        self.seg(8, 64 << 20, ["s_mov_b32 s44, s50"], 1024, R_V, 64 - VS, VV, xor=True, D=DE, t0=VS)
        self.stamp(3)
        def qrepub(lazy=True):
            ls = self.newlab("QR")
            e("s_cmp_lg_u32 s70, 0"); e(f"s_cbranch_scc1 {ls}")
            if lazy:
                e("s_cmp_lt_u32 s61, 24"); e(f"s_cbranch_scc1 {ls}")
            else:
                e(f"ds_read_b32 v4, v3 offset:{F_MISM-FLG}"); e("s_waitcnt lgkmcnt(0)"); e("v_readfirstlane_b32 s76, v4")
                e("s_cmp_eq_u32 s76, 0"); e(f"s_cbranch_scc1 {ls}")
            e("s_mov_b32 s70, 1")
            e("s_mov_b32 s73, s61")
            self.wait_lds_ge(F_QDONE, 2)
            e("s_mov_b32 s61, s73")
            e(f"v_lshlrev_b32 v24, 3, v0"); e(f"v_add_u32 v24, {QST}, v24"); e("v_lshlrev_b32 v25, 2, v0"); e(f"v_add_u32 v25, {QST}, v25")
            e(f"ds_read_b32 v29, v3 offset:{TAGW-FLG}")
            e("ds_read_b64 v[26:27], v24"); e("ds_read_b32 v36, v25 offset:512")
            e("ds_read_b64 v[38:39], v24 offset:768"); e("ds_read_b32 v37, v25 offset:1280")
            e("s_waitcnt lgkmcnt(0)")
            e("v_mov_b32 v28, v26"); e("v_mov_b32 v30, v27"); e("v_xor_b32 v31, s74, v29")
            e("v_mov_b32 v32, v38"); e("v_mov_b32 v33, v29"); e("v_mov_b32 v34, v39"); e("v_xor_b32 v35, s74, v29")
            e("global_store_dwordx4 v36, v[28:31], s[26:27] sc1")
            e("global_store_dwordx4 v37, v[32:35], s[26:27] sc1")
            self.lab(ls)
        if not stop: self.wait_lds_ge(F_P, 4, onfail=qrepub)
        self.seg(12, 4 << 20, oseg, 8192, R_O, 16, ["v22"]*4, D=DE)
        if dlate:
            e("s_cmp_eq_u32 s33, 2"); e("s_cbranch_scc0 L_noD")
            if not stop: self.wait_lds_ge(F_QDONE, 2)
            self.seg(20, 1792*1024, dseg, 4096, R_D, 16, ["v18", "v19", "v18", "v19"], D=DE)
            self.lab("L_noD")
        self.stamp(4)
        ks = [k for k in range(DE-1, -1, -1) if (k % 8 == 0)]
        for k in ks:
            e(f"s_waitcnt vmcnt({k})")
            e(f"s_sub_u32 s48, s55, {k}")
            e("v_mov_b32 v20, s48")
            e(f"ds_write_b32 v3, v20 offset:{F_LAND-FLG}")
        self.stamp(5)
        if not stop: qrepub(lazy=False)
        self.stamp_flush()
        e("s_endpgm")

    def cwave(self):
        self.role = "C"
        e = self.e
        self.lab("L_cwave")
        e("s_lshl_b32 s48, s32, 11")
        e("v_lshlrev_b32 v6, 4, v0"); e("v_add_u32 v6, s48, v6")
        e("v_and_b32 v1, 15, v0")
        e("v_lshrrev_b32 v2, 4, v0")
        e("s_waitcnt lgkmcnt(0)")
        xnt = " nt" if self.opt.get("xnt") else ""
        e("global_load_dwordx4 v[8:11], v6, s[4:5]" + xnt)
        e("global_load_dwordx4 v[12:15], v6, s[4:5] offset:1024" + xnt)
        e("s_load_dword s34, s[26:27], 0")
        self.stamp(0)
        e("s_barrier")
        e("v_lshrrev_b32 v6, 2, v0"); e("v_lshlrev_b32 v6, 9, v6")
        e("v_and_b32 v7, 1, v0"); e("v_lshl_add_u32 v6, v7, 8, v6")
        e("v_bfe_u32 v7, v0, 1, 1"); e("v_lshl_add_u32 v6, v7, 3, v6")
        e("s_lshl_b32 s48, s32, 5"); e(f"s_add_u32 s48, s48, {XN}"); e("v_add_u32 v6, s48, v6")
        e("v_lshrrev_b32 v48, 2, v0")
        e("v_and_b32 v49, 3, v0"); e("v_lshlrev_b32 v49, 3, v49")
        e("v_bfe_u32 v50, v0, 3, 2"); e("v_lshl_or_b32 v50, v50, 5, v49"); e("v_lshl_add_u32 v50, v48, 7, v50")
        e("v_and_b32 v51, 7, v48"); e("v_lshl_or_b32 v51, v51, 5, v49"); e("v_lshl_add_u32 v51, v48, 8, v51")
        e("v_and_b32 v112, 7, v0")
        e("v_bfe_u32 v113, v0, 3, 1")
        e("v_and_b32 v114, 3, v0")
        e("v_lshlrev_b32 v52, 4, v112"); e("v_lshl_add_u32 v52, v2, 7, v52")
        e("s_lshr_b32 s49, s29, 3")
        e("s_lshl_b32 s48, s49, 11"); e(f"s_add_u32 s48, s48, {XN}"); e("v_add_u32 v52, s48, v52")
        e("s_lshl_b32 s48, s32, 6"); e("s_and_b32 s48, s48, 0x60"); e("v_xor_b32 v53, s48, v50"); e(f"v_add_u32 v53, {R_Q}, v53"); e("v_xor_b32 v115, 32, v53")
        e("s_lshl_b32 s48, s28, 5"); e("s_add_u32 s48, s48, s49"); e("s_lshl_b32 s48, s48, 11")
        e("s_and_b32 s50, s29, 7"); e("s_lshl_b32 s50, s50, 8"); e("s_add_u32 s48, s48, s50")
        e("s_lshl_b32 s50, s32, 7"); e("s_add_u32 s48, s48, s50"); e(f"s_add_u32 s48, s48, {QBUF}")
        e("v_lshlrev_b32 v54, 13, v112"); e("v_lshl_add_u32 v54, v113, 6, v54"); e("v_lshl_add_u32 v54, v2, 4, v54"); e("v_add_u32 v54, s48, v54")
        e("s_lshl_b32 s48, s28, 3"); e("s_add_u32 s48, s48, s30"); e("s_lshl_b32 s48, s48, 13")
        e("s_add_u32 s48, s48, s50"); e(f"s_add_u32 s48, s48, {QBUF}")
        e("v_lshrrev_b32 v55, 2, v1"); e("v_lshlrev_b32 v55, 11, v55")
        e("v_lshl_add_u32 v55, v114, 9, v55"); e("v_lshl_add_u32 v55, v2, 5, v55"); e("v_add_u32 v55, s48, v55")
        e("s_waitcnt vmcnt(0)")
        self.stamp(1)
        self.stop(1)
        for rb, src in ((16, 8), (24, 12)):
            for i in range(4):
                e(f"v_lshlrev_b32 v{rb+2*i}, 16, v{src+i}")
                e(f"v_and_b32 v{rb+2*i+1}, 0xffff0000, v{src+i}")
        for rb, d in ((16, 32), (24, 33)):
            e(f"v_add_f32 v{d}, v{rb}, v{rb+1}")
            e(f"v_add_f32 v34, v{rb+2}, v{rb+3}")
            e(f"v_add_f32 v35, v{rb+4}, v{rb+5}")
            e(f"v_add_f32 v36, v{rb+6}, v{rb+7}")
            e(f"v_add_f32 v{d}, v{d}, v34"); e("v_add_f32 v35, v35, v36"); e(f"v_add_f32 v{d}, v{d}, v35")
        self.allreduce(["v32", "v33"], "v_add_f32", ["v34", "v35"])
        e(f"v_mul_f32 v32, {f32(1/512)}, v32"); e(f"v_mul_f32 v33, {f32(1/512)}, v33")
        for rb, m, d in ((16, 32, 36), (24, 33, 37)):
            e(f"v_sub_f32 v38, v{rb}, v{m}"); e(f"v_mul_f32 v{d}, v38, v38")
            for i in range(1, 8):
                e(f"v_sub_f32 v38, v{rb+i}, v{m}"); e(f"v_fmac_f32 v{d}, v38, v38")
        self.allreduce(["v36", "v37"], "v_add_f32", ["v34", "v35"])
        e(f"v_mul_f32 v36, {f32(1/512)}, v36"); e(f"v_mul_f32 v37, {f32(1/512)}, v37")
        for m, v in ((32, 36), (33, 37)):
            e(f"v_cvt_pk_bf16_f32 v38, v{m}, v{v}")
            e(f"v_lshlrev_b32 v{m}, 16, v38")
            e(f"v_and_b32 v{v}, 0xffff0000, v38")
            e(f"v_add_f32 v{v}, {f32(1e-5)}, v{v}")
            self.bf16r(f"v{v}", f"v{v}")
            e(f"v_sqrt_f32 v{v}, v{v}")
            self.nop(1)
            self.bf16r(f"v{v}", f"v{v}")
            e(f"v_rcp_f32 v{v}, v{v}")
            self.nop(1)
        for rb, m, v, out in ((16, 32, 36, 40), (24, 33, 37, 44)):
            for i in range(4):
                e(f"v_sub_f32 v38, v{rb+2*i}, v{m}"); e(f"v_sub_f32 v39, v{rb+2*i+1}, v{m}")
                e("v_cvt_pk_bf16_f32 v38, v38, v39")
                e("v_and_b32 v39, 0xffff0000, v38"); e("v_lshlrev_b32 v38, 16, v38")
                e(f"v_mul_f32 v38, v38, v{v}"); e(f"v_mul_f32 v39, v39, v{v}")
                e(f"v_cvt_pk_bf16_f32 v{out+i}, v38, v39")
        e("ds_write_b64 v6, v[40:41]"); e("ds_write_b64 v6, v[42:43] offset:128")
        e("ds_write_b64 v6, v[44:45] offset:16"); e("ds_write_b64 v6, v[46:47] offset:144")
        e("s_waitcnt lgkmcnt(0)")
        e("s_add_u32 s34, s34, 1")
        e("s_xor_b32 s75, s34, s74")
        e("v_mov_b32 v125, s34"); e("v_mov_b32 v127, s75")
        e(f"ds_write_b32 v3, v125 offset:{TAGW-FLG}")
        e("s_waitcnt lgkmcnt(0)")
        self.lds_inc(F_XN)
        self.stamp(2)
        e("s_cmp_lt_u32 s32, 2"); e("s_cbranch_scc0 L_noq")
        self.wait_lds_ge(F_XN, 4, sleep=0)
        for j in range(4):
            e(f"ds_read_b128 v[{64+4*j}:{67+4*j}], v52 offset:{j*512}")
        self.wait_lds_ge(F_LAND, 16, sleep=0)
        self.stamp(3)
        for j in range(4):
            e(f"ds_read_b64_tr_b16 v[{80+4*j}:{81+4*j}], v53 offset:{(32*j)*128}")
            e(f"ds_read_b64_tr_b16 v[{82+4*j}:{83+4*j}], v53 offset:{(32*j+16)*128}")
        for j in range(3):
            e(f"ds_read_b64_tr_b16 v[{16+4*j}:{17+4*j}], v115 offset:{(32*j)*128}")
            e(f"ds_read_b64_tr_b16 v[{18+4*j}:{19+4*j}], v115 offset:{(32*j+16)*128}")
        for j in range(4):
            e(f"s_waitcnt lgkmcnt({12-2*j})")
            self.mfma(96, 80+4*j, 64+4*j, "0" if j == 0 else None)
            if j == 0:
                e(f"ds_read_b64_tr_b16 v[28:29], v115 offset:{(96)*128}")
                e(f"ds_read_b64_tr_b16 v[30:31], v115 offset:{(112)*128}")
        for j in range(4):
            e(f"s_waitcnt lgkmcnt({6-2*j})")
            self.mfma(104, 16+4*j, 64+4*j, "0" if j == 0 else None)
        e("s_mul_i32 s48, s32, 768"); e(f"s_add_u32 s48, s48, {QST}")
        e("v_lshlrev_b32 v16, 3, v0"); e("v_add_u32 v16, s48, v16"); e("v_lshlrev_b32 v17, 2, v0"); e("v_add_u32 v17, s48, v17")
        self.nop(3)
        e("v_cvt_pk_bf16_f32 v96, v96, v97"); e("v_cvt_pk_bf16_f32 v98, v98, v99")
        e("v_cvt_pk_bf16_f32 v104, v104, v105"); e("v_cvt_pk_bf16_f32 v106, v106, v107")
        e("v_cndmask_b32 v124, v104, v96, s[58:59]"); e("v_cndmask_b32 v126, v106, v98, s[58:59]")
        e("global_store_dwordx4 v54, v[124:127], s[26:27]" + self.LP)
        e("v_mov_b32 v18, v124"); e("v_mov_b32 v19, v126")
        e("ds_write_b64 v16, v[18:19]"); e("ds_write_b32 v17, v54 offset:512")
        e("s_waitcnt lgkmcnt(0)")
        self.lds_inc(F_QDONE)
        self.lab("L_noq")
        self.stamp(4)
        self.stop(2)
        e("v_xor_b32 v58, v2, v1"); e("v_lshlrev_b32 v58, 4, v58"); e("v_lshl_add_u32 v58, v1, 8, v58")
        e("s_lshl_b32 s48, s32, 14"); e(f"s_add_u32 s48, s48, {R_K}"); e("v_add_u32 v58, s48, v58")
        e("v_xor_b32 v59, 64, v58"); e("v_xor_b32 v60, 0x80, v58"); e("v_xor_b32 v61, 0xc0, v58")
        e("v_lshlrev_b32 v56, 4, v0"); e(f"v_add_u32 v56, {QF}, v56")
        e("s_lshl_b32 s48, s32, 10"); e("v_add_u32 v57, s48, v56")
        self.wait_lds_ge(F_LAND, self.opt.get('qtrig', 64))
        def qcheck():
            e("v_xor_b32 v72, s34, v65"); e("v_xor_b32 v73, s34, v69")
            e("v_xor_b32 v74, s75, v67"); e("v_xor_b32 v75, s75, v71")
            e("v_or_b32 v74, v74, v75"); e("v_and_b32 v75, 0x0fffffff, v74")
            e("v_or3_b32 v72, v72, v73, v75")
            e("v_cmp_ne_u32 s[64:65], 0, v72")
            e("s_cmp_eq_u64 s[64:65], 0")
        qp = {0: "sc1", 1: "nt", 2: "sc0 sc1", 3: "sc1 nt"}[self.opt.get("qpol", 0)]
        self.poll([f"global_load_dwordx4 v[64:67], v55, s[26:27] {qp}", f"global_load_dwordx4 v[68:71], v55, s[26:27] offset:16 {qp}"],
                  None, None, None, sleep=self.opt.get("qsleep", 8), check=qcheck, ntn=self.opt.get("ntq", 16))
        e("v_cmp_ne_u32 s[64:65], 0, v74")
        e("s_cmp_eq_u64 s[64:65], 0"); e("s_cbranch_scc1 L_samex")
        self.lds_inc(F_MISM)
        self.lab("L_samex")
        e("v_mov_b32 v65, v66"); e("v_mov_b32 v66, v68"); e("v_mov_b32 v67, v70")
        e("ds_write_b128 v57, v[64:67]")
        e("s_waitcnt lgkmcnt(0)")
        self.lds_inc(F_QF)
        self.stamp(5)
        self.stop(3)
        self.wait_lds_ge(F_QF, 4, sleep=0)
        e(f"ds_read_b32 v4, v3 offset:{F_MISM-FLG}"); e("s_waitcnt lgkmcnt(0)"); e("v_readfirstlane_b32 s76, v4")
        for j in range(4):
            e(f"ds_read_b128 v[{64+4*j}:{67+4*j}], v56 offset:{j*1024}")
        e("s_lshr_b32 s48, s39, 4"); e("s_xor_b32 s48, s48, s32"); e("s_lshl_b32 s48, s48, 4"); e("s_add_u32 s48, s48, s35"); e("s_add_u32 s48, s48, 16")
        self.wait_lds_ge(F_LAND, "s48")
        self.stamp(6)
        kaddr = ["v58", "v59", "v60", "v61"]
        def kread(T):
            for j in range(4):
                e(f"ds_read_b128 v[{16+16*(T%2)+4*j}:{19+16*(T%2)+4*j}], {kaddr[j]} offset:{T*4096}")
        kread(0)
        for T in range(4):
            if T < 3: kread(T+1)
            for j in range(4):
                e(f"s_waitcnt lgkmcnt({(7 if T < 3 else 3)-j})")
                self.mfma(96+4*T, 16+16*(T%2)+4*j, 64+4*j, "0" if j == 0 else None)
        self.nop(8)
        S = [f"v{96+i}" for i in range(16)]
        for sh in (4, 8):
            for r in S:
                e(f"v_add_f32_dpp {r}, {r}, {r} row_ror:{sh} row_mask:0xf bank_mask:0xf")
        c1 = 128 ** -0.5 * 1.4426950408889634
        for r in S:
            e(f"v_mul_f32 {r}, {f32(c1)}, {r}")
        e("v_max3_f32 v16, v96, v97, v98")
        for i in range(3, 15, 2):
            e(f"v_max3_f32 v16, v16, v{96+i}, v{97+i}")
        e("v_max_f32 v16, v16, v111")
        self.xg_reduce(["v16"], "v_max_f32", ["v17"])
        e("v_lshlrev_b32 v18, 2, v114"); e(f"v_add_u32 v19, {FLG}, v18"); e("v_mov_b32 v57, v19")
        e("s_lshl_b32 s48, s32, 4"); e("v_add_u32 v18, s48, v19")
        e(f"ds_write_b32 v18, v16 offset:{WMAX-FLG}")
        e("s_waitcnt lgkmcnt(0)")
        self.lds_inc(F_MAX)
        self.wait_lds_ge(F_MAX, 4, sleep=0)
        for w in range(4):
            e(f"ds_read_b32 v{20+w}, v19 offset:{WMAX-FLG+16*w}")
        e("s_waitcnt lgkmcnt(0)")
        e("v_max3_f32 v62, v20, v21, v22"); e("v_max_f32 v62, v62, v23")
        for r in S:
            e(f"v_sub_f32 {r}, {r}, v62")
        for r in S:
            e(f"v_exp_f32 {r}, {r}")
        self.nop(1)
        e("v_add_f32 v16, v96, v97")
        for i in range(2, 16):
            e(f"v_add_f32 v16, v16, v{96+i}")
        self.xg_reduce(["v16"], "v_add_f32", ["v17"])
        e(f"ds_write_b32 v18, v16 offset:{WSUM-FLG}")
        for h in range(2):
            for i in range(4):
                e(f"v_cvt_pk_bf16_f32 v{24+4*h+i}, v{96+8*h+2*i}, v{97+8*h+2*i}")
        e("v_lshl_add_u32 v63, v2, 2, v114"); e("v_lshlrev_b32 v63, 4, v63"); e(f"v_add_u32 v63, {PB}, v63")
        e("s_lshl_b32 s48, s32, 9"); e("v_add_u32 v21, s48, v63")
        e("ds_write_b128 v21, v[24:27]"); e("ds_write_b128 v21, v[28:31] offset:256")
        e("s_waitcnt lgkmcnt(0)")
        self.lds_inc(F_P)
        self.stamp(7)
        e("s_lshr_b32 s52, s39, 3")
        e("s_lshl_b32 s48, s32, 6"); e("s_lshl_b32 s50, s52, 13"); e("s_or_b32 s48, s48, s50"); e(f"s_or_b32 s48, s48, {R_V}")
        e("v_xor_b32 v58, s48, v51")
        e("s_lshl_b32 s48, s52, 8"); e("v_xor_b32 v63, s48, v63")
        e("s_lshl_b32 s48, s28, 7"); e("s_lshl_b32 s50, s31, 3"); e("s_add_u32 s48, s48, s50"); e("s_add_u32 s48, s48, s30"); e("s_lshl_b32 s48, s48, 9")
        e("s_lshl_b32 s50, s32, 7"); e("s_add_u32 s48, s48, s50"); e(f"s_add_u32 s48, s48, {OBUF}")
        e("v_lshlrev_b32 v60, 14, v114"); e("v_bfe_u32 v61, v0, 2, 1"); e("v_lshl_add_u32 v60, v61, 6, v60"); e("v_lshl_add_u32 v60, v2, 4, v60"); e("v_add_u32 v60, s48, v60")
        e("s_lshl_b32 s48, s28, 2"); e("s_add_u32 s48, s48, s49"); e("s_lshl_b32 s48, s48, 14")
        e("s_add_u32 s48, s48, s50"); e(f"s_add_u32 s48, s48, {OBUF}")
        e("v_lshlrev_b32 v61, 9, v1"); e("v_lshl_add_u32 v61, v2, 4, v61"); e("v_add_u32 v61, s48, v61")
        e("v_add_u32 v56, 0x2000, v61")
        e("v_lshl_add_u32 v116, v2, 3, v112"); e("v_lshlrev_b32 v116, 4, v116"); e(f"v_add_u32 v116, {RED}, v116")
        e("s_lshl_b32 s48, s32, 11"); e("v_add_u32 v117, s48, v116")
        e("s_lshl_b32 s48, s32, 9"); e("v_add_u32 v118, s48, v116")
        e("s_and_b32 s48, s29, 7"); e("s_lshl_b32 s48, s48, 2"); e("s_add_u32 s48, s48, s32"); e("s_lshl_b32 s48, s48, 5")
        e("s_lshl_b32 s50, s28, 2"); e("s_add_u32 s48, s48, s50"); e("s_add_u32 s48, s48, s49"); e("s_lshl_b32 s48, s48, 7"); e(f"s_add_u32 s48, s48, {SBUF}")
        e("v_lshlrev_b32 v55, 17, v112"); e("v_lshl_add_u32 v55, v2, 5, v55"); e("v_lshl_add_u32 v55, v113, 4, v55"); e("v_add_u32 v55, s48, v55")
        e("s_lshl_b32 s48, s32, 12"); e(f"s_add_u32 s48, s48, {R_O}"); e("v_add_u32 v53, s48, v50")
        e("s_mov_b32 s56, 0x0f0f0f0f"); e("s_mov_b32 s57, 0x0f0f0f0f")
        self.wait_lds_ge(F_P, 4, sleep=0)
        for p in range(8):
            if p: e(f"v_xor_b32 v52, {p<<8}, v63")
            e(f"ds_read_b128 v[{64+4*p}:{67+4*p}], {'v52' if p else 'v63'}")
        spf = self.opt.get("statp", 5)
        for p in range(8):
            rb = 16 + 8*(p % 2)
            if p:
                e(f"v_xor_b32 v52, {p<<13}, v58")
            a0 = "v52" if p else "v58"
            e(f"v_xor_b32 v59, 32, {a0}")
            e(f"s_add_u32 s48, s36, {8*(p+1)}")
            self.wait_lds_ge(F_LAND, "s48", sleep=(0 if p >= 6 else 1))
            e(f"ds_read_b64_tr_b16 v[{rb}:{rb+1}], {a0}")
            e(f"ds_read_b64_tr_b16 v[{rb+2}:{rb+3}], {a0} offset:4096")
            e(f"ds_read_b64_tr_b16 v[{rb+4}:{rb+5}], v59")
            e(f"ds_read_b64_tr_b16 v[{rb+6}:{rb+7}], v59 offset:4096")
            e("s_waitcnt lgkmcnt(2)")
            self.mfma(96, rb, 64+4*p, "0" if p == 0 else None)
            e("s_waitcnt lgkmcnt(0)")
            self.mfma(100, rb+4, 64+4*p, "0" if p == 0 else None)
            if p == 6:
                self.wait_lds_ge(F_SCL, 1)
                e(f"ds_read_b32 v46, v57 offset:{SCL-FLG}")
                e("v_mov_b32 v41, s34"); e("v_mov_b32 v43, s34")
        self.stamp(8)
        self.nop(7)
        for i in range(8):
            e(f"v_mul_f32 v{96+i}, v{96+i}, v46")
        e("v_cvt_pk_bf16_f32 v96, v96, v97"); e("v_cvt_pk_bf16_f32 v98, v98, v99")
        e("v_cvt_pk_bf16_f32 v100, v100, v101"); e("v_cvt_pk_bf16_f32 v102, v102, v103")
        e("v_cndmask_b32 v40, v100, v96, s[56:57]"); e("v_cndmask_b32 v42, v102, v98, s[56:57]")
        e("s_mov_b64 exec, s[58:59]")
        e("s_cmp_eq_u32 s76, 0"); e("s_cbranch_scc0 L_osc1")
        e("global_store_dwordx4 v60, v[40:43], s[26:27]" + self.LPO)
        e("s_branch L_opub")
        self.lab("L_osc1")
        e("global_store_dwordx4 v60, v[40:43], s[26:27] sc1")
        self.lab("L_opub")
        e("s_mov_b64 exec, -1")
        self.stamp(9)
        oloads = ["global_load_dwordx4 v[24:27], v61, s[26:27] sc1", "global_load_dwordx4 v[28:31], v61, s[26:27] offset:64 sc1",
                  "global_load_dwordx4 v[32:35], v56, s[26:27] sc1", "global_load_dwordx4 v[36:39], v56, s[26:27] offset:64 sc1"]
        early = self.opt.get("oearly", 1)
        if early:
            if self.opt.get("odelay", 0):
                e(f"s_sleep {self.opt['odelay']}")
            for l in oloads: e(l.replace(" sc1", " nt"))
        self.wait_lds_ge(F_LAND, "s37", sleep=0 if early else 1)
        for ct in range(4):
            if ct: e(f"v_xor_b32 v52, {ct<<5}, v53")
            a = "v53" if ct == 0 else "v52"
            e(f"ds_read_b64_tr_b16 v[{64+4*ct}:{65+4*ct}], {a}")
            e(f"ds_read_b64_tr_b16 v[{66+4*ct}:{67+4*ct}], {a} offset:2048")
        self.stamp(10)
        self.poll(oloads, ["v25", "v27", "v29", "v31", "v33", "v35", "v37", "v39"], "v44", "v45", sleep=self.opt.get("osleep", 2), ntn=self.opt.get("nto", 32), skip_first=bool(early))
        self.stamp(11)
        e("v_mov_b32 v25, v26"); e("v_mov_b32 v26, v28"); e("v_mov_b32 v27, v30")
        e("v_mov_b32 v33, v34"); e("v_mov_b32 v34, v36"); e("v_mov_b32 v35, v38")
        e("s_waitcnt lgkmcnt(0)")
        self.nop(1)
        for ct in range(4):
            self.mfma(96+4*ct, 64+4*ct, 24, "0")
        for ct in range(4):
            self.mfma(96+4*ct, 64+4*ct, 32)
        e("v_mov_b32 v17, s34"); e("v_mov_b32 v19, s34")
        self.nop(4)
        for ct in range(4):
            if ct == 3: self.nop(3)
            for r in S[4*ct:4*ct+4]:
                e(f"v_add_f32_dpp {r}, {r}, {r} row_ror:8 row_mask:0xf bank_mask:0xf")
            e("s_mov_b64 exec, s[58:59]")
            e(f"ds_write_b128 v117, v[{96+4*ct}:{99+4*ct}] offset:{ct*512}")
            e("s_mov_b64 exec, -1")
        e("s_waitcnt lgkmcnt(0)")
        self.lds_inc(F_RED)
        self.wait_lds_ge(F_RED, 4, sleep=0)
        for j in range(4):
            e(f"ds_read_b128 v[{64+4*j}:{67+4*j}], v118 offset:{j*2048}")
        e("s_waitcnt lgkmcnt(2)")
        for i in range(4):
            e(f"v_add_f32 v{64+i}, v{64+i}, v{68+i}")
        e("s_waitcnt lgkmcnt(0)")
        for i in range(4):
            e(f"v_add_f32 v{72+i}, v{72+i}, v{76+i}")
        for i in range(4):
            e(f"v_add_f32 v{64+i}, v{64+i}, v{72+i}")
        e("v_cndmask_b32 v16, v66, v64, s[58:59]"); e("v_cndmask_b32 v18, v67, v65, s[58:59]")
        e("global_store_dwordx4 v55, v[16:19], s[26:27] sc1")
        self.stamp(12)

        self.stamp_flush()
        e("s_endpgm")

    def fwave(self):
        self.role = "F"
        e = self.e
        self.lab("L_fwave")
        if self.opt.get("dbg"):
            e("s_memrealtime s[80:81]"); e("s_memtime s[82:83]")
        if self.opt.get("lite"): self.stamp(0)
        e("v_and_b32 v1, 15, v0"); e("v_lshrrev_b32 v2, 4, v0")
        e("v_lshlrev_b32 v10, 4, v0")
        if not self.opt.get("lite"): self.stamp(0)
        e("s_barrier")
        if self.opt.get("stop"):
            e("s_waitcnt lgkmcnt(0)")
            self.stamp_flush(); e("s_endpgm")
        e("v_lshrrev_b32 v48, 2, v0")
        e("v_and_b32 v49, 3, v0"); e("v_lshlrev_b32 v49, 3, v49")
        e("v_bfe_u32 v50, v0, 3, 2"); e("v_lshl_or_b32 v50, v50, 5, v49"); e("v_lshl_add_u32 v50, v48, 7, v50")
        e("v_and_b32 v51, 7, v48"); e("v_lshl_or_b32 v51, v51, 5, v49"); e("v_lshl_add_u32 v51, v48, 8, v51")
        e("v_and_b32 v112, 7, v0"); e("v_bfe_u32 v113, v0, 3, 1")
        e("s_lshl_b32 s52, s28, 2"); e("s_add_u32 s52, s52, s31")
        e("s_lshl_b32 s53, s30, 10"); e("s_lshl_b32 s48, s52, 5"); e("s_add_u32 s53, s53, s48")
        e("v_lshlrev_b32 v6, 2, v112"); e("v_add_u32 v6, s53, v6")
        e("s_waitcnt lgkmcnt(0)")
        e("global_load_dword v7, v6, s[4:5]")
        e("s_lshl_b32 s48, s30, 5"); e("s_add_u32 s48, s48, s52"); e("s_lshl_b32 s48, s48, 12")
        e("v_add_u32 v10, s48, v10")
        e(f"v_add_u32 v11, {FBUF}, v10"); e(f"v_add_u32 v10, {SBUF}, v10")
        self.wait_lds_ge(F_XN, 4)
        e(f"ds_read_b32 v4, v3 offset:{TAGW-FLG}")
        e("s_waitcnt lgkmcnt(0)")
        e("v_readfirstlane_b32 s34, v4")
        e("s_cmp_eq_u32 s33, 3"); e("s_cbranch_scc1 L_final")
        e("s_cmp_eq_u32 s33, 2"); e("s_cbranch_scc1 L_dunit")
        e("s_lshl_b32 s51, s68, 1"); e("s_and_b32 s48, s69, 1"); e("s_add_u32 s51, s51, s48")
        e("v_lshlrev_b32 v52, 4, v112"); e("v_lshl_add_u32 v52, v2, 7, v52")
        e("s_and_b32 s48, s51, 1"); e("s_lshl_b32 s48, s48, 12"); e(f"s_add_u32 s48, s48, {XN}"); e("v_add_u32 v52, s48, v52")
        e(f"v_add_u32 v53, {R_GU}, v50")
        e("s_mul_i32 s48, s33, 56"); e("s_add_u32 s48, s48, s51"); e("s_lshl_b32 s48, s48, 11"); e(f"s_add_u32 s48, s48, {GUBUF}")
        e("v_lshlrev_b32 v54, 8, v112"); e("v_lshl_add_u32 v54, v113, 6, v54"); e("v_lshl_add_u32 v54, v2, 4, v54"); e("v_add_u32 v54, s48, v54")
        for j in range(8):
            e(f"ds_read_b128 v[{64+4*j}:{67+4*j}], v52 offset:{j*512}")
        self.wait_lds_ge(F_LAND, "s38")
        self.stamp(1)
        for ct in range(4):
            if ct: e(f"v_xor_b32 v55, {ct<<5}, v53")
            a = "v53" if ct == 0 else "v55"
            for jh in range(2):
                for j in range(4*jh, 4*jh+4):
                    rb = 16 + 4*j
                    e(f"ds_read_b64_tr_b16 v[{rb}:{rb+1}], {a} offset:{32*j*128}")
                    e(f"ds_read_b64_tr_b16 v[{rb+2}:{rb+3}], {a} offset:{(32*j+16)*128}")
                for j in range(4*jh, 4*jh+4):
                    e(f"s_waitcnt lgkmcnt({6-2*(j%4)})")
                    self.mfma(96+4*ct, 16+4*j, 64+4*j, "0" if j == 0 else None)
        self.lds_inc(F_GUDONE)
        self.nop(6)
        for pr in range(2):
            a = 96 + 8*pr
            rb = 16 + 4*pr
            e(f"v_cvt_pk_bf16_f32 v{a}, v{a}, v{a+1}"); e(f"v_cvt_pk_bf16_f32 v{a+2}, v{a+2}, v{a+3}")
            e(f"v_cvt_pk_bf16_f32 v{a+4}, v{a+4}, v{a+5}"); e(f"v_cvt_pk_bf16_f32 v{a+6}, v{a+6}, v{a+7}")
            e(f"v_cndmask_b32 v{rb}, v{a+4}, v{a}, s[58:59]"); e(f"v_mov_b32 v{rb+1}, s34")
            e(f"v_cndmask_b32 v{rb+2}, v{a+6}, v{a+2}, s[58:59]"); e(f"v_mov_b32 v{rb+3}, s34")
            e(f"global_store_dwordx4 v54, v[{rb}:{rb+3}], s[26:27] offset:{pr*128}" + self.LP)
        self.stamp(2)
        self.wait_lds_ge(F_QF, 4, sleep=4)
        e(f"ds_read_b32 v4, v3 offset:{F_MISM-FLG}"); e("s_waitcnt lgkmcnt(0)"); e("v_readfirstlane_b32 s76, v4")
        e("s_cmp_eq_u32 s76, 0"); e("s_cbranch_scc1 L_final")
        for pr in range(2):
            e(f"global_store_dwordx4 v54, v[{16+4*pr}:{19+4*pr}], s[26:27] offset:{pr*128} sc1")
        e("s_branch L_final")
        self.lab("L_dunit")
        e("s_mov_b32 s50, s68")
        e("s_lshl_b32 s48, s50, 12"); e(f"s_add_u32 s48, s48, {GUBUF}")
        e("v_lshlrev_b32 v52, 8, v112"); e("v_lshl_add_u32 v52, v113, 7, v52")
        e("v_lshl_add_u32 v52, v2, 4, v52"); e("v_add_u32 v52, s48, v52")
        e(f"v_add_u32 v53, {56*2048}, v52")
        loads = []
        tags = []
        for m, a in ((0, "v52"), (1, "v53")):
            for kh in range(2):
                for un in range(2):
                    rb = 16 + 16*m + 8*kh + 4*un
                    loads.append(f"global_load_dwordx4 v[{rb}:{rb+3}], {a}, s[26:27] offset:{kh*2048 + un*64} sc1")
                    tags += [f"v{rb+1}", f"v{rb+3}"]
        e(f"s_add_u32 s48, s36, {self.opt.get('dtrig', 0)}")
        self.wait_lds_ge(F_LAND, "s48")
        self.poll(loads, tags, "v54", "v55", sleep=self.opt.get("dsleep", 8), ntn=self.opt.get("ntd", 16))
        self.stamp(1)
        for un in range(2):
            for dd in range(2):
                g0 = 16 + 4*un + 2*dd; g1 = g0 + 8; u0 = g0 + 16; u1 = g0 + 24
                for hi in range(2):
                    ex = (lambda d, s: f"v_and_b32 {d}, 0xffff0000, {s}") if hi else (lambda d, s: f"v_lshlrev_b32 {d}, 16, {s}")
                    e(ex("v56", f"v{g0}")); e(ex("v57", f"v{g1}")); e("v_add_f32 v56, v56, v57")
                    e(ex("v58", f"v{u0}")); e(ex("v57", f"v{u1}")); e("v_add_f32 v58, v58, v57")
                    e("v_cvt_pk_bf16_f32 v57, v56, v58")
                    e("v_lshlrev_b32 v56, 16, v57"); e("v_and_b32 v58, 0xffff0000, v57")
                    self.silu("v56", "v56", "v57")
                    self.bf16r("v56", "v56")
                    e(f"v_mul_f32 v{60+hi}, v56, v58")
                e(f"v_cvt_pk_bf16_f32 v{64+2*un+dd}, v60, v61")
        e(f"v_add_u32 v53, {R_D}, v51")
        e("s_lshl_b32 s48, s69, 8"); e("s_add_u32 s48, s48, s50"); e("s_lshl_b32 s48, s48, 7"); e(f"s_add_u32 s48, s48, {FBUF}")
        e("v_lshlrev_b32 v54, 17, v112"); e("v_lshl_add_u32 v54, v2, 5, v54"); e("v_lshl_add_u32 v54, v113, 4, v54"); e("v_add_u32 v54, s48, v54")
        self.wait_lds_ge(F_LAND, "s38")
        for half in range(2):
            for c2 in range(2):
                for c4 in range(2*c2, 2*c2+2):
                    ct = 4*half + c4
                    e(f"v_xor_b32 v55, {ct<<5}, v53")
                    rb = 16 + 8*c4
                    for j in range(2):
                        e(f"ds_read_b64_tr_b16 v[{rb+4*j}:{rb+4*j+1}], v55 offset:{32*j*256}")
                        e(f"ds_read_b64_tr_b16 v[{rb+4*j+2}:{rb+4*j+3}], v55 offset:{(32*j+16)*256}")
                for c4 in range(2*c2, 2*c2+2):
                    rb = 16 + 8*c4
                    e(f"s_waitcnt lgkmcnt({6-4*(c4%2)})")
                    self.mfma(72+8*c4, rb, 64, "0")
                    e(f"s_waitcnt lgkmcnt({4-4*(c4%2)})")
                    self.mfma(76+8*c4, rb+4, 64, "0")
            self.nop(8)
            for c4 in range(4):
                ct = 4*half + c4
                a = 72 + 8*c4
                rb = (104 + 2*c4) if half == 0 else (114 + 2*c4)
                rb = FPARK[ct]
                e(f"v_add_f32_dpp v56, v{a+4}, v{a} row_ror:8 row_mask:0xf bank_mask:0xf")
                e(f"v_add_f32_dpp v57, v{a+5}, v{a+1} row_ror:8 row_mask:0xf bank_mask:0xf")
                e(f"v_add_f32_dpp v58, v{a+2}, v{a+6} row_ror:8 row_mask:0xf bank_mask:0xf")
                e(f"v_add_f32_dpp v59, v{a+3}, v{a+7} row_ror:8 row_mask:0xf bank_mask:0xf")
                e(f"v_cndmask_b32 v{rb}, v58, v56, s[58:59]")
                e(f"v_cndmask_b32 v{rb+1}, v59, v57, s[58:59]")
            self.nop(2)
        if self.opt.get("ftrig", 0):
            e(f"s_add_u32 s48, s36, {self.opt['ftrig']}")
            self.wait_lds_ge(F_LAND, "s48", sleep=4)
        for ct in range(8):
            rb = 16 + 4*ct
            e(f"v_mov_b32 v{rb}, v{FPARK[ct]}"); e(f"v_mov_b32 v{rb+1}, s34"); e(f"v_mov_b32 v{rb+2}, v{FPARK[ct]+1}"); e(f"v_mov_b32 v{rb+3}, s34")
            e(f"v_add_u32 v55, {ct*4096}, v54")
            e(f"global_store_dwordx4 v55, v[{rb}:{rb+3}], s[26:27] sc1")
        self.nop(2)
        self.stamp(2)
        self.lab("L_final")
        self.wait_lds_ge(F_LAND, "s37")
        loads = [f"global_load_dwordx4 v[{16+4*t}:{19+4*t}], v11, s[26:27] offset:{t*1024} sc1" for t in range(3)]
        loads += ["s_mov_b32 exec_hi, 0", "global_load_dwordx4 v[28:31], v11, s[26:27] offset:3072 sc1"]
        pre = ["v_mov_b32 v28, 0", "v_mov_b32 v29, s34", "v_mov_b32 v30, 0", "v_mov_b32 v31, s34"]
        self.poll(loads, [f"v{17+2*i}" for i in range(8)], "v12", "v13", sleep=4, pre=pre, ntn=self.opt.get("ntf", 0))
        self.stamp(3)
        e("v_add_f32 v32, v16, v20"); e("v_add_f32 v33, v18, v22"); e("v_add_f32 v34, v24, v28"); e("v_add_f32 v35, v26, v30")
        e("v_add_f32 v32, v32, v34"); e("v_add_f32 v33, v33, v35")
        self.nop(2)
        e("v_add_f32_dpp v32, v32, v32 row_ror:8 row_mask:0xf bank_mask:0xf"); e("v_add_f32_dpp v33, v33, v33 row_ror:8 row_mask:0xf bank_mask:0xf")
        self.xg_reduce(["v32", "v33"], "v_add_f32", ["v34", "v35"])
        e("v_cvt_pk_bf16_f32 v34, v32, v33"); e("v_lshlrev_b32 v32, 16, v34"); e("v_and_b32 v33, 0xffff0000, v34")
        self.silu("v32", "v32", "v34"); self.silu("v33", "v33", "v34")
        e("v_cvt_pk_bf16_f32 v34, v32, v33"); e("v_lshlrev_b32 v32, 16, v34"); e("v_and_b32 v33, 0xffff0000, v34")
        e("v_lshlrev_b32 v8, 16, v7"); e("v_and_b32 v9, 0xffff0000, v7")
        loads = [f"global_load_dwordx4 v[{16+4*t}:{19+4*t}], v10, s[26:27] offset:{t*1024} sc1" for t in range(4)]
        self.wait_lds_ge(F_RED, 4)
        if self.opt.get("sdelay", 0):
            e(f"s_sleep {self.opt['sdelay']}")
        self.poll(loads, [f"v{17+2*i}" for i in range(8)], "v12", "v13", sleep=self.opt.get("ssleep", 2), ntn=self.opt.get("nts", 0))
        self.stamp(4)
        e("v_add_f32 v36, v16, v20"); e("v_add_f32 v37, v18, v22"); e("v_add_f32 v34, v24, v28"); e("v_add_f32 v35, v26, v30")
        e("v_add_f32 v36, v36, v34"); e("v_add_f32 v37, v37, v35")
        self.nop(2)
        e("v_add_f32_dpp v36, v36, v36 row_ror:8 row_mask:0xf bank_mask:0xf"); e("v_add_f32_dpp v37, v37, v37 row_ror:8 row_mask:0xf bank_mask:0xf")
        self.xg_reduce(["v36", "v37"], "v_add_f32", ["v34", "v35"])
        e("v_cvt_pk_bf16_f32 v34, v36, v37"); e("v_lshlrev_b32 v36, 16, v34"); e("v_and_b32 v37, 0xffff0000, v34")
        e("v_mul_f32 v36, v36, v32"); e("v_mul_f32 v37, v37, v33")
        e("v_cvt_pk_bf16_f32 v34, v36, v37"); e("v_lshlrev_b32 v36, 16, v34"); e("v_and_b32 v37, 0xffff0000, v34")
        e("v_add_f32 v36, v36, v8"); e("v_add_f32 v37, v37, v9")
        e("v_cvt_pk_bf16_f32 v34, v36, v37")
        e("s_mov_b64 exec, 0xff")
        e("global_store_dword v6, v34, s[22:23]")
        e("s_cmp_lg_u32 s2, 0"); e("s_cbranch_scc1 L_noep")
        e("s_mov_b64 exec, 1")
        e("v_mov_b32 v35, s34"); e("v_mov_b32 v36, 0")
        e("global_store_dword v36, v35, s[26:27] sc1")
        if self.opt.get("dbg"):
            e("s_memrealtime s[84:85]"); e("s_memtime s[86:87]"); e("s_waitcnt lgkmcnt(0)")
            e("s_sub_u32 s84, s84, s80"); e("s_sub_u32 s86, s86, s82")
            e("v_mov_b32 v40, s84"); e("v_mov_b32 v41, s86")
            e("global_store_dwordx2 v36, v[40:41], s[24:25]")
        self.lab("L_noep")
        e("s_mov_b64 exec, -1")
        self.stamp(5)
        self.stamp_flush()

    def swave(self):
        self.role = "S"
        e = self.e
        self.lab("L_swave")
        if self.opt.get("cpf", 1):
            e(f"s_cmp_ge_u32 s29, {self.opt.get('cpfmin', 28)}"); e("s_cbranch_scc0 L_nocpf")
            e("s_getpc_b64 s[66:67]")
            self.lab("L_pcref")
            e(f"s_sub_u32 s66, s66, L_pcref-{NAME}"); e("s_subb_u32 s67, s67, 0")
            e("v_lshlrev_b32 v11, 4, v0")
            e(f"s_mov_b32 s48, (L_end-{NAME}+3)/1024")
            self.lab("L_cpf")
            e("global_load_dwordx4 v[12:15], v11, s[66:67]")
            e("v_add_u32 v11, 0x400, v11")
            e("s_sub_u32 s48, s48, 1"); e("s_cmp_lg_u32 s48, 0"); e("s_cbranch_scc1 L_cpf")
            self.lab("L_nocpf")
        e("v_and_b32 v1, 15, v0"); e("v_lshrrev_b32 v2, 4, v0")
        e("s_barrier")
        if self.opt.get("stop"):
            e("s_endpgm")
        self.wait_lds_ge(F_XN, 4, sleep=4)
        e(f"ds_read_b32 v4, v3 offset:{TAGW-FLG}")
        e("s_waitcnt lgkmcnt(0)")
        e("v_readfirstlane_b32 s34, v4")
        e("v_and_b32 v114, 3, v0")
        e("v_lshlrev_b32 v56, 2, v114"); e(f"v_add_u32 v56, {FLG}, v56")
        e("s_lshl_b32 s51, s28, 3"); e("s_add_u32 s51, s51, s30"); e("s_lshl_b32 s51, s51, 9"); e(f"s_add_u32 s51, s51, {STBUF}")
        e("v_lshlrev_b32 v57, 4, v114"); e("v_lshl_add_u32 v57, v2, 7, v57"); e("v_add_u32 v57, s51, v57")
        e("s_lshl_b32 s48, s31, 7"); e("s_add_u32 s48, s48, s51")
        e("v_lshlrev_b32 v58, 4, v0"); e("v_add_u32 v58, s48, v58")
        self.wait_lds_ge(F_P, 4, sleep=2)
        for w in range(4):
            e(f"ds_read_b32 v{20+w}, v56 offset:{WMAX-FLG+16*w}")
            e(f"ds_read_b32 v{28+w}, v56 offset:{WSUM-FLG+16*w}")
        e(f"ds_read_b32 v32, v3 offset:{F_MISM-FLG}")
        e("s_waitcnt lgkmcnt(0)")
        e("v_max3_f32 v62, v20, v21, v22"); e("v_max_f32 v62, v62, v23")
        e("v_add_f32 v28, v28, v29"); e("v_add_f32 v30, v30, v31"); e("v_add_f32 v26, v28, v30")
        e("v_mov_b32 v24, v62"); e("v_mov_b32 v25, s34"); e("v_mov_b32 v27, s34")
        e("v_readfirstlane_b32 s76, v32")
        e("s_mov_b64 exec, 0xff")
        e("s_cmp_eq_u32 s76, 0"); e("s_cbranch_scc0 L_ssc1")
        e("global_store_dwordx4 v58, v[24:27], s[26:27]" + self.LP)
        e("s_branch L_spub")
        self.lab("L_ssc1")
        e("global_store_dwordx4 v58, v[24:27], s[26:27] sc1")
        self.lab("L_spub")
        e("s_mov_b64 exec, -1")
        e(f"s_sleep {self.opt.get('stdelay', 8)}")
        self.poll(["global_load_dwordx4 v[40:43], v57, s[26:27] sc1"], ["v41", "v43"], "v44", "v45", sleep=8, ntn=self.opt.get("ntst", 16))
        e("v_mov_b32 v44, v40")
        self.xg_reduce(["v44"], "v_max_f32", ["v45"])
        e("v_sub_f32 v40, v40, v44"); e("v_exp_f32 v40, v40"); e("v_sub_f32 v46, v62, v44"); e("v_exp_f32 v46, v46")
        e("v_mul_f32 v42, v42, v40")
        self.xg_reduce(["v42"], "v_add_f32", ["v45"])
        e("v_rcp_f32 v42, v42")
        self.nop(1)
        e("v_mul_f32 v46, v46, v42")
        e(f"ds_write_b32 v56, v46 offset:{SCL-FLG}")
        e("s_waitcnt lgkmcnt(0)")
        self.lds_inc(F_SCL)
        e("s_endpgm")

    def build(self):
        hdr = open("recurrent_scan__sliding_block_cached__swiglu_ffn__decode.s.ref").read().split("\n")
        out = []
        for line in hdr:
            if line.startswith("; @launch"):
                out.append(f"; @launch grid=(256,1,1) block=(448,1,1) lds={LDS_BYTES}")
            elif line.startswith(";"):
                out.append(line)
            else:
                break
        out += DOC.split("\n")
        out += ['.amdgcn_target "amdgcn-amd-amdhsa--gfx950"', ".text", f".globl {NAME}", ".p2align 8", f".type {NAME},@function", f"{NAME}:"]
        self.prologue()
        if self.opt.get("lfirst", 1):
            self.loader(); self.cwave()
        else:
            self.cwave(); self.loader()
        self.swave()
        self.fwave()
        self.lab("L_end")
        self.e("s_endpgm")
        out += self.L
        out += ['.section .rodata,"a"', ".p2align 6", f".amdhsa_kernel {NAME}",
                "  .amdhsa_next_free_vgpr 128", "  .amdhsa_next_free_sgpr 102", "  .amdhsa_accum_offset 128",
                "  .amdhsa_group_segment_fixed_size 0", "  .amdhsa_kernarg_size 96", "  .amdhsa_user_sgpr_count 2",
                "  .amdhsa_user_sgpr_kernarg_segment_ptr 1", "  .amdhsa_system_sgpr_workgroup_id_x 1", ".end_amdhsa_kernel", ""]
        return "\n".join(out)

if __name__ == "__main__":
    import argparse
    ap = argparse.ArgumentParser()
    ap.add_argument("-o", default="recurrent_scan__sliding_block_cached__swiglu_ffn__decode.s")
    ap.add_argument("--depth", type=int, default=24)
    ap.add_argument("--stamps", action="store_true")
    ap.add_argument("--opt", default="")
    a = ap.parse_args()
    opt = {}
    for kv in a.opt.split(","):
        if kv:
            k, v = kv.split("="); opt[k] = int(v)
    g = G(depth=a.depth, stamps=a.stamps, opt=opt)
    open(a.o, "w").write(g.build())
    print("wrote", a.o, len(g.L), "lines")
```
